```python
import torch

def _softmax(x, axis=-1):
    return torch.softmax(x, dim=axis)
def _gelu(x):
    return torch.nn.functional.gelu(x, approximate="tanh")
def _silu(x):
    return torch.nn.functional.silu(x)
def _sigmoid(x):
    return torch.sigmoid(x)
def _layernorm(x, axis=-1, eps=1e-5):
    m = x.mean(dim=axis, keepdim=True)
    v = x.var(dim=axis, keepdim=True, unbiased=False)
    return (x - m) / torch.sqrt(v + eps)
def _scatter_add(tgt, idx, src, axis=0):
    return tgt.clone().index_add_(axis, idx, src)
def _segment_sum(src, seg, n):
    out = torch.zeros((n,) + src.shape[1:], dtype=src.dtype)
    return out.index_add_(0, seg, src)
def _pad(x, pw):
    flat = tuple(v for pair in reversed(pw) for v in pair)
    return torch.nn.functional.pad(x, flat)

kernel_name = 'gated_mix__softmax_full_mha__glu_gated_geglu__prompt'

def setup_inputs():

    _w = (lambda a: (lambda t: t.to(torch.bfloat16) if t.is_floating_point() else t)(torch.as_tensor(a)))
    def _A_setup():
        B, S, D = 1, 2048, 640
        return {
            "x": _w((lambda *s: torch.randn(*s, dtype=torch.bfloat16) * 0.05)(B, S, D)),
            "wqkv": _w((lambda *s: torch.randn(*s, dtype=torch.bfloat16) * 0.8)(D, 3 * D)),
            "wo": _w((lambda *s: torch.randn(*s, dtype=torch.bfloat16) * 0.05)(D, D)),
        }
    _A_in = _A_setup()

    def _B_setup():
        B, S, Dm, Df = 1, 2048, 640, 1536
        return {
            "x": _w((lambda *s: torch.randn(*s, dtype=torch.bfloat16) * 0.05)(B, S, Dm)),
            "w_gate": _w((lambda *s: torch.randn(*s, dtype=torch.bfloat16) * 3.2)(Dm, Df) * (Dm ** -0.5)),
            "w_up": _w((lambda *s: torch.randn(*s, dtype=torch.bfloat16) * 3.2)(Dm, Df) * (Dm ** -0.5)),
            "w_down": _w((lambda *s: torch.randn(*s, dtype=torch.bfloat16) * 3.2)(Df, Dm) * (Df ** -0.5)),
        }
    _B_in = _B_setup()

    return {
        "A_x": _A_in["x"],
        "A_wqkv": _A_in["wqkv"],
        "A_wo": _A_in["wo"],
        "B_x": _B_in["x"],
        "B_w_gate": _B_in["w_gate"],
        "B_w_up": _B_in["w_up"],
        "B_w_down": _B_in["w_down"],
        "gate_w": _w((lambda *s: torch.randn(*s, dtype=torch.bfloat16) * 0.05)(640) * 16.0),
    }

def reference(A_x, A_wqkv, A_wo, B_x, B_w_gate, B_w_up, B_w_down, gate_w):
    def _A_ref(x, wqkv, wo):
        B, S, D = x.shape
        H = 32; Dh = D // H
        qkv = (lambda x, *d: x.permute(*d))((x @ wqkv).reshape(B, S, 3, H, Dh), 2, 0, 3, 1, 4)
        q, k, v = qkv[0], qkv[1], qkv[2]
        scale = Dh ** -0.5
        scores = torch.einsum("bhqd,bhkd->bhqk", q, k) * scale
        p = _softmax(scores, axis=-1)
        o = torch.einsum("bhqk,bhkd->bhqd", p, v)
        return (lambda x, *d: x.permute(*d))(o, 0, 2, 1, 3).reshape(B, S, D) @ wo

    def _B_ref(x, w_gate, w_up, w_down):
        g = torch.einsum("bsd,df->bsf", x, w_gate)
        u = torch.einsum("bsd,df->bsf", x, w_up)
        h = _gelu(g) * u
        return torch.einsum("bsf,fd->bsd", h, w_down)

    x = A_x
    g = _sigmoid((x * gate_w).sum(-1, keepdims=True))
    a = _A_ref(x, A_wqkv, A_wo)
    b = _B_ref(x, B_w_gate, B_w_up, B_w_down)
    return g * a + (1 - g) * b
```

```python
import sys
sys.path.insert(0, "cdna_kernels")

HEAD = """.amdgcn_target "amdgcn-amd-amdhsa--gfx950"
.text
"""

def kernel(name, body, iters=200, nv=128, init=""):
    return f"""
.globl {name}
.p2align 8
.type {name},@function
{name}:
    s_load_dwordx2 s[4:5], s[0:1], 0
    v_lshrrev_b32 v1, 6, v0
    s_nop 0
    v_readfirstlane_b32 s3, v1
    s_lshl_b32 s6, s2, 4
    s_add_u32 s6, s6, s3
    s_lshl_b32 s6, s6, 3
{init}
    s_waitcnt lgkmcnt(0)
    s_barrier
    s_mov_b32 s7, {iters}
    s_memtime s[8:9]
    s_waitcnt lgkmcnt(0)
.p2align 6
L_{name}:
{body}
    s_sub_u32 s7, s7, 1
    s_cmp_lg_u32 s7, 0
    s_cbranch_scc1 L_{name}
    s_nop 15
    s_nop 15
    s_memtime s[10:11]
    s_waitcnt lgkmcnt(0)
    s_sub_u32 s10, s10, s8
    s_subb_u32 s11, s11, s9
    v_mov_b32 v2, s10
    v_mov_b32 v3, s11
    v_mov_b32 v4, s6
    v_cmp_eq_u32 vcc, 0, v0
    v_and_b32 v5, 63, v0
    v_cmp_eq_u32 vcc, 0, v5
    s_and_saveexec_b64 s[12:13], vcc
    global_store_dwordx2 v4, v[2:3], s[4:5]
    s_endpgm
.section .rodata,"a"
.p2align 6
.amdhsa_kernel {name}
  .amdhsa_next_free_vgpr {nv}
  .amdhsa_next_free_sgpr 32
  .amdhsa_accum_offset {nv}
  .amdhsa_group_segment_fixed_size 0
  .amdhsa_kernarg_size 8
  .amdhsa_user_sgpr_count 2
  .amdhsa_user_sgpr_kernarg_segment_ptr 1
  .amdhsa_system_sgpr_workgroup_id_x 1
.end_amdhsa_kernel
.text
"""

def meta(names, nvs):
    s = "\n.amdgpu_metadata\n---\namdhsa.version: [1, 2]\namdhsa.kernels:\n"
    for n, nv in zip(names, nvs):
        s += f"""  - .name: {n}
    .symbol: {n}.kd
    .kernarg_segment_size: 8
    .kernarg_segment_align: 8
    .group_segment_fixed_size: 0
    .private_segment_fixed_size: 0
    .wavefront_size: 64
    .sgpr_count: 40
    .vgpr_count: {nv}
    .max_flat_workgroup_size: 1024
    .args:
      - {{.name: kernargs, .size: 8, .offset: 0, .value_kind: by_value}}
"""
    s += "...\n.end_amdgpu_metadata\n"
    return s

def build(kernels, path):
    s = HEAD
    for k in kernels:
        s += kernel(*k)
    s += meta([k[0] for k in kernels], [k[3] for k in kernels])
    open(path, "w").write(s)
```

```python
from mbgen import build
import mbgen
ks = []
init = "\n".join(f"    v_mov_b32 v{i}, 1.0" for i in range(8, 40))
for nb in (1024, 4096, 16384):
    n = nb // 8
    body = "\n".join(f"    v_fma_f32 v{16+(i%16)}, v{16+(i%16)}, v8, v9" for i in range(n))
    ks.append((f"cold{nb}_1", body, 1, 64, init))
    ks.append((f"cold{nb}_2", body, 2, 64, init))
    ks.append((f"cold{nb}_e1", body.replace("v_fma_f32", "v_exp_f32_e64").replace(", v8, v9", ""), 1, 64, init))
body = "\n".join(f"    v_fma_f32 v{16+(i%16)}, v{16+(i%16)}, v8, v9" for i in range(16000))
ks.append(("evict", body, 1, 64, init))
build(ks, "mb4.s")
```

```python
import struct

NAME = "gated_mix__softmax_full_mha__glu_gated_geglu__prompt"

TILE = 2560
HEADB = 64 * TILE
QF = 0
KV = 32 * HEADB
FB = 68 * 1024
FX = 16 * 1024
FH = 20 * 1024
AF = 2 * KV
WF = AF + 128 * FB
GV = WF + 40 * FB
BP = GV + 8192
FLG = BP
FQKV = FLG + 8 * 4096
FALL = FQKV + 8 * 4096
WS_END = FALL + 4096
def f2u(x):
    return struct.unpack("<I", struct.pack("<f", x))[0]

class Asm:
    def __init__(self):
        self.lines = []
        self.uid = 0
    def __call__(self, s):
        for l in s.split("\n"):
            l = l.strip()
            if not l:
                continue
            if l.endswith(":") or l.startswith("."):
                self.lines.append(l)
            else:
                self.lines.append("    " + l)
    def c(self, text):
        for l in text.split("\n"):
            self.lines.append("; " + l)
    def label(self, base):
        self.uid += 1
        return f"L{base}_{self.uid}"
    def text(self):
        return "\n".join(self.lines) + "\n"

def vr(a, n=1):
    return f"v{a}" if n == 1 else f"v[{a}:{a+n-1}]"
def sr(a, n=1):
    return f"s{a}" if n == 1 else f"s[{a}:{a+n-1}]"

def kernel_head(a, name):
    a(f""".text
.globl {name}
.p2align 12
.p2align 8
.type {name},@function
{name}:""")

def kernel_desc(a, name, nvgpr, nsgpr=96, accum=None):
    nv = nvgpr
    acc = accum if accum is not None else (nv + 3) // 4 * 4
    a(f""".section .rodata,"a"
.p2align 6
.amdhsa_kernel {name}
.amdhsa_next_free_vgpr {nv}
.amdhsa_next_free_sgpr {nsgpr}
.amdhsa_accum_offset {acc}
.amdhsa_group_segment_fixed_size 0
.amdhsa_kernarg_size 88
.amdhsa_user_sgpr_count 2
.amdhsa_user_sgpr_kernarg_segment_ptr 1
.amdhsa_system_sgpr_workgroup_id_x 1
.end_amdhsa_kernel""")

def srd(a, d, base, size):
    a(f"""s_mov_b32 s{d}, s{base}
s_and_b32 s{d+1}, s{base+1}, 0xffff
s_mov_b32 s{d+2}, {size}
s_mov_b32 s{d+3}, 0x20000""")
```

```python
import sys
from common import *
import k1, k2f, stamp

HEADER = open("cdna_kernels/" + NAME + ".s.ref").read().split("; Override launch")[0]

def build(path, **opt):
    stamp.ENABLED = opt.get('stamp', False) or opt.get('todebug') is not None or opt.get('hold') is not None
    stamp.HOLD = opt.get('hold')
    stamp.REAL = opt.get('real', False)
    stamp.TODEBUG = opt.get('todebug')
    a = Asm()
    a.lines.append(HEADER.rstrip())
    L = {"1": f"; @launch kernel=k1_proj_kernel grid=(256,1,1) block=(512,1,1) lds={k1.K1_LDS}",
         "2": f"; @launch kernel=k2_attn_kernel grid=(256,1,1) block=(512,1,1) lds={k2f.K2_LDS}",
         "a": f"; @launch kernel=k0_tlb_kernel grid=(256,1,1) block=(64,1,1) lds=0",
         "b": f"; @launch kernel=k0_all_kernel grid=(256,1,1) block=(256,1,1) lds=0",
         "n": f"; @launch kernel=k0_nop_kernel grid=(256,1,1) block=(256,1,1) lds=0"}
    if opt.get("fused"):
        kn = NAME + "_kernel"
        a.lines.append(f"; @launch {'kernel=' + kn + ' ' if opt.get('aslist') else ''}grid=(256,1,1) block=(512,1,1) lds={k2f.K2_LDS}")
        a('.amdgcn_target "amdgcn-amd-amdhsa--gfx950"')
        k1.gen_k1(a, kn, fused=True, **opt.get("k1", {}))
        k2f.gen_k2(a, kn, fused=True, **opt.get("k2", {}))
        open(path, "w").write(a.text())
        return
    order = opt.get("order", "12")
    for c in order:
        a.lines.append(L[c])
    a('.amdgcn_target "amdgcn-amd-amdhsa--gfx950"')
    k1.gen_k1(a, "k1_proj_kernel", **opt.get("k1", {}))
    k2f.gen_k2(a, "k2_attn_kernel", **opt.get("k2", {}))
    if "n" in order:
        kernel_head(a, "k0_nop_kernel")
        a("s_endpgm")
        kernel_desc(a, "k0_nop_kernel", 8, 16)
    sizes = [(0, 2621440), (8, 2457600), (16, 819200), (32, 1966080), (40, 1966080), (48, 1966080), (80, WS_END)]
    if "a" in order:
        kernel_head(a, "k0_tlb_kernel")
        a("v_lshlrev_b32 v1, 16, v0")
        for i, (off, sz) in enumerate(sizes):
            a(f"s_load_dwordx2 s[4:5], s[0:1], {off}\ns_waitcnt lgkmcnt(0)")
            srd(a, 8, 4, sz)
            for k in range((sz + (1 << 22) - 1) >> 22):
                a(f"s_mov_b32 s12, {k << 22}\nbuffer_load_dword v{2+i}, v1, s[8:11], s12 offen")
        a("s_waitcnt vmcnt(0)\ns_endpgm")
        kernel_desc(a, "k0_tlb_kernel", 16, 16)
    if "b" in order:
        kernel_head(a, "k0_all_kernel")
        a("s_lshl_b32 s3, s2, 8\nv_add_u32 v1, s3, v0\nv_lshlrev_b32 v1, 7, v1")
        for i, (off, sz) in enumerate(sizes[:6]):
            a(f"s_load_dwordx2 s[4:5], s[0:1], {off}\ns_waitcnt lgkmcnt(0)")
            srd(a, 8, 4, sz)
            a(f"buffer_load_dword v{2+i}, v1, s[8:11], 0 offen")
        a("s_waitcnt vmcnt(0)\ns_endpgm")
        kernel_desc(a, "k0_all_kernel", 16, 16)
    open(path, "w").write(a.text())

if __name__ == "__main__":
    build("cdna_kernels/" + NAME + ".s", fused=True)
    build("main_list.s", fused=True, aslist=True)
    build("diag.s", stamp=True, fused=True, aslist=True, real=True)
```

```python
from common import *
import stamp

SLOT = 53248
NSLOT = 3
K1_LDS = NSLOT * SLOT
NST = 10
XR = 8
WR = 48
ACC = 80
VXB, VXS, VX = 240, 241, 242
VWB, VW = 243, 247
VEP = 251
NV = 256
MM = "v_mfma_f32_16x16x32_bf16"

def acc(mi, nj):
    return ACC + (mi * 4 + nj) * 4

UNR = [1]
def hout(mi):
    return 240 if mi == 0 else ACC + 16 * mi

def xoffs(mi, perm):
    return 4096 * (mi >> 1) + 1024 * (mi & 1)

def xread(mi, perm):
    return f"ds_read_b128 {vr(XR+4*mi,4)}, v{VX} offset:{xoffs(mi, perm)}"

def wreads(buf, ks):
    r = []
    for nj in range(4):
        for hf in range(2):
            r.append(f"ds_read_b64_tr_b16 {vr(WR+16*buf+4*nj+2*hf,2)}, v{VW+nj} offset:{8192*ks + 1024*hf}")
    return r

def step(a, buf, swap, ks_next, pend, pre=None, mid=None):
    w = [(("w", i), r) for i, r in enumerate(wreads(1 - buf, ks_next))]
    x = [(("x", mi), xread(mi, swap)) for mi in range(10)]
    sched = {}
    if mid is None:
        for mi in range(10): sched[(mi, 3)] = x[mi]
        for i in range(8): sched[(i, 1)] = w[i]
    else:
        sched[(1, 3)] = x[0]; sched[(2, 1)] = x[1]
        for mi in range(2, 10): sched[(mi, 3)] = x[mi]
        for i in range(7): sched[(3 + i, 1)] = w[i]
        sched[(9, 0)] = w[6]; sched[(8, 1)] = w[5]; sched[(9, 1)] = w[7]
    pre = list(pre or [])
    old = list(pend); new = []
    def need(pred):
        idx = [i for i, t in enumerate(old) if pred(t)]
        if idx:
            n = len(old) - 1 - max(idx) + len(new)
            k = min(n, 15)
            a(f"s_waitcnt lgkmcnt({k})")
            keep = max(0, k - len(new))
            del old[:len(old) - min(keep, len(old))]
    for mi in range(10):
        for nj in range(4):
            if mi == 0:
                need(lambda t: t == ("w", 2 * nj) or t == ("w", 2 * nj + 1) or t == ("x", 0))
            elif nj == 0 and ("x", mi) in old:
                need(lambda t: t[0] == "x" and t[1] <= min(mi + 3, 9))
            W = vr(WR + 16 * buf + 4 * nj, 4); X = vr(XR + 4 * mi, 4)
            A, B = (X, W) if swap else (W, X)
            c = vr(acc(mi, nj), 4)
            a(f"{MM} {c}, {A}, {B}, {c}")
            if mi == 1 and nj == 3 and mid is not None:
                assert not pre
                mid(); old = []
            if (mi, nj) in sched:
                t, r = sched[(mi, nj)]
                a(r); new.append(t)
            elif pre:
                a(pre.pop(0))
                if pre and mid is not None:
                    a(pre.pop(0))
    return new

def mainloop(a, swap):
    L = a.label("k1loop"); Lnb = a.label("k1nb")
    a(f"""s_mov_b32 s36, 0
s_mov_b32 s37, 0
v_mov_b32 v{VXS}, v{VXB}
v_mov_b32 v{VX}, v{VXB}""")
    for nj in range(4):
        a(f"v_mov_b32 v{VW+nj}, v{VWB+nj}")
    stamp.mark(a, 1)
    a("s_barrier")
    stamp.mark(a, 4 if stamp.TODEBUG is not None else 2)
    pre = [f"s_add_u32 s36, s36, {SLOT}", f"s_cmp_eq_u32 s36, {SLOT*NSLOT}", "s_cselect_b32 s36, 0, s36", "s_add_u32 s37, s37, 1",
           f"v_add_u32 v{VXS}, s36, v{VXB}", f"v_add_u32 v{VX}, s36, v{VXB}"] + [f"v_add_u32 v{VW+nj}, s36, v{VWB+nj}" for nj in range(4)] + [f"s_cmp_eq_u32 s37, {NST}"]
    def mid():
        a(f"""s_waitcnt lgkmcnt(0)
s_cbranch_scc1 {Lnb}
s_barrier
{Lnb}:""")
    scratch = Asm()
    entry = step(scratch, 1, swap, 0, [], pre, lambda: None)
    rd = {("x", mi): xread(mi, swap) for mi in range(10)}
    rd.update({("w", i): r for i, r in enumerate(wreads(0, 0))})
    for t in entry:
        a(rd[t])
    a(".p2align 5")
    a(f"{L}:")
    for u in range(UNR[0]):
        if u < UNR[0] - 1:
            m = lambda: a("s_waitcnt lgkmcnt(0)\ns_barrier")
        else:
            m = mid
        p = step(a, 0, swap, 1, entry, [f"v_xor_b32 v{VX}, 64, v{VXS}"])
        p = step(a, 1, swap, 0, p, pre, m)
        assert p == entry, p
    a(f"""s_cmp_lg_u32 s37, {NST}
s_cbranch_scc1 {L}
s_waitcnt lgkmcnt(0)
s_nop 7""")
    stamp.mark(a, 5 if stamp.TODEBUG is not None else 4 if stamp.REAL else 3)

def gen_k1(a, name, rot_enable="xcdw", nvar=3, nt_x="", nt_w="", st_h="sc1", st_qk="sc1", st_v="sc1", st_w="sc1", wb=False, codepf=True, fast=True, delay=None, mix=True, pfd=0, fused=False, defer=False, unr=1, vperm=False, clus=False, ldfirst=True, earlyx=True):
    UNR[0] = unr
    def done():
        if fused:
            a(f"s_branch {name}_join")
        else:
            stamp.flush(a, 0, 4, 0)
            a("s_endpgm")
    kernel_head(a, name)
    Lend = f"{name}_end"
    a(f"s_cmp_ge_u32 s2, 256\ns_cbranch_scc1 {Lend}")
    stamp.init(a)
    if delay:
        mask, ticks = delay
        a(f"""s_and_b32 s40, s2, 7
s_lshr_b32 s41, {mask}, s40
s_bitcmp1_b32 s41, 0
s_cbranch_scc0 {name}_nodelay
s_memrealtime s[42:43]
s_waitcnt lgkmcnt(0)
s_add_u32 s44, s42, {ticks}
{name}_dl:
s_memrealtime s[42:43]
s_waitcnt lgkmcnt(0)
s_cmp_lt_u32 s42, s44
s_cbranch_scc1 {name}_dl
{name}_nodelay:""")
    a(f"""s_load_dwordx4 s[4:7], s[0:1], 0
s_load_dwordx2 s[8:9], s[0:1], 16
s_load_dwordx4 s[12:15], s[0:1], 32
s_load_dwordx2 s[10:11], s[0:1], 48
s_load_dwordx2 s[16:17], s[0:1], 80
s_load_dwordx2 s[78:79], s[0:1], 56
v_lshrrev_b32 v1, 6, v0
v_and_b32 v0, 63, v0
v_readfirstlane_b32 s3, v1
s_and_b32 s40, s2, 7
s_mov_b32 s55, s3
s_lshl_b32 s40, s40, 5
s_lshr_b32 s41, s2, 3
s_add_u32 s38, s40, s41
s_cmp_eq_u32 s38, 255
s_cbranch_scc1 {name}_idle
s_mul_i32 s42, s38, 1009
s_lshr_b32 s42, s42, 16
s_mul_i32 s43, s42, 65
s_sub_u32 s43, s38, s43
s_mul_i32 s18, s43, 205
s_lshr_b32 s18, s18, 10
s_mul_i32 s39, s18, 5
s_sub_u32 s39, s43, s39
s_cmp_lt_u32 s38, 235
s_cbranch_scc1 {name}_dec
s_sub_u32 s43, s38, 235
s_lshr_b32 s18, s43, 2
s_add_u32 s18, s18, 8
s_and_b32 s39, s43, 3
{name}_dec:
s_mul_i32 s19, s42, 3
s_lshl_b32 s43, s42, 1
s_add_u32 s43, s43, 9
s_cmp_lt_u32 s39, 3
s_cselect_b32 s19, s19, s43
s_add_u32 s19, s19, s39
s_cmp_ge_u32 s3, 4
{"s_cbranch_scc0 " + name + "_compute" if ldfirst else "s_cbranch_scc1 " + name + "_loader"}""")
    mark_c = len(a.lines)
    a(f"{name}_compute:")
    if codepf:
        a(f"""s_cmp_lg_u32 s3, 0
s_cbranch_scc1 {name}_nocp
s_getpc_b64 s[56:57]
{name}_pc:
s_sub_u32 s56, s56, {name}_pc-{name}
s_subb_u32 s57, s57, 0
s_mul_i32 s58, s41, 1280
v_lshlrev_b32 v1, 7, v0
v_add_u32 v1, s58, v1
s_mov_b32 s59, code_end-{name}
v_cmp_gt_u32 vcc, s59, v1
s_and_b64 exec, vcc, 0x3ff
s_cbranch_execz {name}_cpx
global_load_dword v255, v1, s[56:57]
{name}_cpx:
s_mov_b64 exec, -1
{name}_nocp:""")
    if fused:
        a(f"""s_lshl_b32 s56, s2, 3
s_add_u32 s56, s56, s3
s_cmp_lg_u32 s56, 1
s_cbranch_scc1 {name}_notag
s_load_dwordx2 s[56:57], s[0:1], 72
s_memrealtime s[58:59]
v_mov_b32 v1, 0
s_waitcnt lgkmcnt(0)
s_or_b32 s58, s58, 1
v_mov_b32 v2, s58
s_mov_b64 exec, 1
global_store_dword v1, v2, s[56:57] sc1
s_mov_b64 exec, -1
{name}_notag:""")
    a(f"""v_and_b32 v1, 15, v0
v_lshrrev_b32 v2, 4, v0
v_bfe_u32 v3, v0, 2, 2
v_lshl_add_u32 v6, v2, 3, v3
v_lshlrev_b32 v6, 8, v6
v_and_b32 v4, 3, v0
v_lshl_add_u32 v6, v4, 3, v6
v_and_b32 v5, 1, v2
v_lshl_add_u32 v5, v5, 2, v3
v_lshrrev_b32 v3, 1, v1
v_xor_b32 v3, v3, v2
v_lshlrev_b32 v3, 4, v3
v_and_b32 v4, 8, v1
v_lshl_add_u32 v3, v1, 7, v3
v_lshl_add_u32 v{VXB}, v4, 7, v3
s_mul_i32 s46, s18, 5
s_mov_b32 s47, 5
s_cmp_eq_u32 s18, 12
s_cmov_b32 s47, 4
s_cmp_eq_u32 s19, 19
s_cbranch_scc1 {name}_spec
s_lshl_b32 s45, s3, 1
v_xor_b32 v5, s45, v5
v_lshl_add_u32 v6, v5, 5, v6
v_add_u32 v{VWB}, 20480, v6
v_xor_b32 v{VWB+1}, 32, v{VWB}
v_add_u32 v{VWB+2}, 16384, v{VWB}
v_add_u32 v{VWB+3}, 16384, v{VWB+1}
s_sub_u32 s48, s19, 17
s_lshl_b32 s48, s48, 8
s_lshl_b32 s49, s3, 5
s_add_u32 s48, s48, s49
s_movk_i32 s49, 128
s_branch {name}_cont
{name}_spec:
s_and_b32 s45, s3, 1
s_lshl_b32 s48, s45, 6
s_add_u32 s48, s48, 512
s_lshl_b32 s45, s45, 2
v_xor_b32 v5, s45, v5
v_lshl_add_u32 v6, v5, 5, v6
v_add_u32 v{VWB}, 32768, v6
v_xor_b32 v{VWB+1}, 32, v{VWB}
v_xor_b32 v{VWB+2}, 64, v{VWB}
v_xor_b32 v{VWB+3}, 96, v{VWB}
s_lshr_b32 s45, s3, 1
s_lshl_b32 s46, s18, 3
s_lshl_b32 s49, s45, 2
s_add_u32 s46, s46, s49
s_lshl_b32 s45, s45, 14
v_add_u32 v{VXB}, s45, v{VXB}
s_mov_b32 s47, 4
s_mov_b32 s49, 32
{name}_cont:""")
    for i in range(160):
        a(f"v_mov_b32 v{ACC+i}, 0")
    a("s_waitcnt lgkmcnt(0)")
    srd(a, 20, 16, WS_END)
    a(f"""s_cmp_ge_u32 s19, 17
s_cbranch_scc1 {name}_v
s_cmp_ge_u32 s19, 12
s_cbranch_scc1 {name}_qk""")
    mainloop(a, False)
    CA, CB, ONE = 8, 10, 12
    A_ = -2.0 * 0.7978845608028654 * 1.4426950408889634 * 0.044715
    B_ = -2.0 * 0.7978845608028654 * 1.4426950408889634
    a(f"""v_mov_b32 v{CA}, {hex(f2u(A_))}
v_mov_b32 v{CA+1}, {hex(f2u(A_))}
v_mov_b32 v{CB}, {hex(f2u(B_))}
v_mov_b32 v{CB+1}, {hex(f2u(B_))}
v_mov_b32 v{ONE}, 1.0
v_mov_b32 v{ONE+1}, 1.0
v_lshrrev_b32 v14, 3, v1
v_mul_u32_u24 v14, {FB - 128}, v14
v_lshl_add_u32 v14, v1, 4, v14
v_lshl_add_u32 v14, v2, 8, v14
s_lshl_b32 s48, s19, {1 if mix else 2}
s_add_u32 s48, s48, s3
s_cmp_ge_u32 s3, 2
s_cselect_b32 s50, {22 if mix else 0}, 0
s_add_u32 s48, s48, s50
s_lshl_b32 s48, s48, 10
s_mul_i32 s49, s46, {2*FB}
s_add_u32 s49, s49, s48
s_add_u32 s49, s49, {AF + FH}""")
    Ldone = f"{name}_gu_done"
    T0 = 16
    cnt = 0
    for mi in range(10):
        if mi == 8:
            a(f"s_cmp_eq_u32 s47, 4\ns_cbranch_scc1 {Ldone}")
        b = acc(mi, 0)
        pairs = [(b + 0, b + 8), (b + 2, b + 10), (b + 4, b + 12), (b + 6, b + 14)]
        out = hout(mi) if defer else 32 + 4 * (mi % 2)
        for q, (g, u) in enumerate(pairs):
            a(f"v_pk_mul_f32 {vr(T0+2*q,2)}, {vr(g,2)}, {vr(g,2)}")
        for q, (g, u) in enumerate(pairs):
            a(f"v_pk_fma_f32 {vr(T0+2*q,2)}, {vr(T0+2*q,2)}, {vr(CA,2)}, {vr(CB,2)}")
        for q, (g, u) in enumerate(pairs):
            a(f"v_pk_mul_f32 {vr(T0+2*q,2)}, {vr(T0+2*q,2)}, {vr(g,2)}")
        for q in range(8):
            a(f"v_exp_f32 v{T0+q}, v{T0+q}")
        for q, (g, u) in enumerate(pairs):
            a(f"v_pk_mul_f32 {vr(24+2*q,2)}, {vr(g,2)}, {vr(u,2)}")
        for q, (g, u) in enumerate(pairs):
            a(f"v_pk_add_f32 {vr(T0+2*q,2)}, {vr(T0+2*q,2)}, {vr(ONE,2)}")
        for q in range(8):
            a(f"v_rcp_f32 v{T0+q}, v{T0+q}")
        a("s_nop 0")
        for q in range(4):
            a(f"v_pk_mul_f32 {vr(24+2*q,2)}, {vr(24+2*q,2)}, {vr(T0+2*q,2)}")
        for q in range(4):
            a(f"v_cvt_pk_bf16_f32 v{out+q}, v{24+2*q}, v{25+2*q}")
        if not defer:
            a(f"buffer_store_dwordx4 {vr(out,4)}, v14, s[20:23], s49 offen offset:{128*(mi&1)} {st_h}")
            if mi & 1 and mi < 9:
                a(f"s_add_u32 s49, s49, {2*FB}")
    a(f"{Ldone}:")
    if defer == "post":
        a(f"""v_mov_b32 v244, v14
s_mov_b32 s79, s49
s_add_u32 s78, s49, {8*FB}
s_cmp_eq_u32 s47, 4
s_cselect_b32 s78, 0x80000000, s78
s_branch {name}_join""")
    elif defer:
        for mi in range(10):
            if mi == 8:
                a(f"s_cmp_eq_u32 s47, 4\ns_cbranch_scc1 {name}_join2")
            a(f"buffer_store_dwordx4 {vr(hout(mi),4)}, v14, s[20:23], s49 offen offset:{128*(mi&1)} {st_h}")
            if mi & 1 and mi < 9:
                a(f"s_add_u32 s49, s49, {2*FB}")
        a(f"s_branch {name}_join")
    done()
    a(f"{name}_qk:")
    c = 1.4426950408889634 * (20.0 ** -0.5)
    a(f"""s_sub_u32 s48, s19, 12
s_lshl_b32 s48, s48, 6
s_lshl_b32 s49, s3, 3
s_add_u32 s48, s48, s49
s_add_u32 s49, s48, 32""")
    for sd in range(2):
        a(f"""s_cmp_lt_u32 s{48+sd}, 160
s_cselect_b32 s{52+sd}, {hex(f2u(c))}, 1.0
s_cselect_b32 s{50+sd}, {QF}, {KV}
s_cselect_b32 s54, 0, 160
s_sub_u32 s{48+sd}, s{48+sd}, s54""")
    a(f"""v_lshlrev_b32 v11, 4, v1
s_mov_b32 s54, {HEADB}""")
    for sd in range(2):
        for j in range(2):
            if True:
                e = VEP + sd * 2 + j
                a(f"""v_add_u32 v8, s{48+sd}, v2
v_add_u32 v8, {4*j}, v8
v_mul_u32_u24 v9, 205, v8
v_lshrrev_b32 v9, 10, v9
v_mul_u32_u24 v12, 5, v9
v_sub_u32 v8, v8, v12
v_lshrrev_b32 v12, 1, v8
v_and_b32 v13, 1, v8
v_lshl_add_u32 v13, v13, 1, v12
v_cmp_eq_u32 vcc, 4, v8
v_mad_u32_u24 v9, v9, s54, v11
v_add_u32 v9, s{50+sd}, v9
v_cndmask_b32 v12, v13, v8, vcc
v_lshlrev_b32 v12, 8, v12
v_add_u32 v{e}, v9, v12""")
    mainloop(a, False)
    a(f"""v_mov_b32 v8, s52
v_mov_b32 v9, s52
v_mov_b32 v10, s53
v_mov_b32 v11, s53
s_mul_i32 s49, s46, {TILE}""")
    Ldq = f"{name}_qk_done"
    for p in range(5):
        if p == 4:
            a(f"s_cmp_eq_u32 s47, 4\ns_cbranch_scc1 {Ldq}")
        for nj in range(4):
            sc = 8 + 2 * (nj >> 1)
            r, r2 = acc(2 * p, nj), acc(2 * p + 1, nj)
            for x in (r, r + 2, r2, r2 + 2):
                a(f"v_pk_mul_f32 {vr(x,2)}, {vr(x,2)}, {vr(sc,2)}")
            a(f"""v_cvt_pk_bf16_f32 v{r}, v{r}, v{r+1}
v_cvt_pk_bf16_f32 v{r+1}, v{r+2}, v{r+3}
v_cvt_pk_bf16_f32 v{r+2}, v{r2}, v{r2+1}
v_cvt_pk_bf16_f32 v{r+3}, v{r2+2}, v{r2+3}
buffer_store_dwordx4 {vr(r,4)}, v{VEP+nj}, s[20:23], s49 offen {st_qk}""")
        if p < 4:
            a(f"s_add_u32 s49, s49, {TILE}")
    a(f"{Ldq}:")
    if wb:
        stamp.mark(a, 5)
        a(f"s_waitcnt vmcnt(0)\ns_cmp_lg_u32 s3, 0\ns_cbranch_scc1 {Ldq}x\nbuffer_wbl2 sc1\n{Ldq}x:")
    done()
    a(f"{name}_v:")
    a(f"s_mov_b32 s54, {HEADB}")
    if vperm:
        a("v_lshrrev_b32 v13, 2, v0\nv_and_b32 v14, 3, v0")
    col, pc = ("v13", "v14") if vperm else ("v1", "v2")
    for nj in range(4):
        a(f"""v_add_u32 v8, s48, {col}
v_add_u32 v8, {16*(nj&1)}, v8""")
        if nj >= 2:
            a("v_add_u32 v8, s49, v8")
        a(f"""v_mul_u32_u24 v11, 205, v8
v_lshrrev_b32 v11, 12, v11
v_mul_u32_u24 v12, 20, v11
v_sub_u32 v10, v8, v12
v_bfe_u32 v12, v10, 2, 2
v_xor_b32 v12, v12, {pc}
v_lshlrev_b32 v12, 4, v12
v_lshl_add_u32 v12, v10, 6, v12
v_mad_u32_u24 v11, v11, s54, v12
v_add_u32 v{VEP+nj}, {KV + 1280}, v11""")
    mainloop(a, True)
    a(f"s_mul_i32 s49, s46, {TILE}")
    Ldv = f"{name}_v_done"
    if vperm:
        a(f"""s_mul_i32 s50, s3, 20480
s_add_u32 s50, s50, {SLOT + 20480}
v_lshrrev_b32 v8, 2, v1
v_add_u32 v8, v8, v2
v_and_b32 v8, 3, v8
v_lshlrev_b32 v8, 4, v8
v_lshl_add_u32 v8, v1, 6, v8
v_add_u32 v8, s50, v8
v_lshrrev_b32 v9, 4, v0
v_add_u32 v9, v9, v0
v_and_b32 v9, 3, v9
v_and_b32 v10, 60, v0
v_add_u32 v9, v9, v10
v_lshlrev_b32 v9, 4, v9
v_add_u32 v9, s50, v9""")
    def cvt(p, nj):
        r, r2 = acc(2 * p, nj), acc(2 * p + 1, nj)
        a(f"""v_cvt_pk_bf16_f32 v{r}, v{r}, v{r+1}
v_cvt_pk_bf16_f32 v{r+1}, v{r+2}, v{r+3}
v_cvt_pk_bf16_f32 v{r+2}, v{r2}, v{r2+1}
v_cvt_pk_bf16_f32 v{r+3}, v{r2+2}, v{r2+3}""")
    for p in range(5):
        if p == 4:
            a(f"s_cmp_eq_u32 s47, 4\ns_cbranch_scc1 {Ldv}")
        for nj in range(4):
            cvt(p, nj)
            r = acc(2 * p, nj)
            if vperm:
                a(f"ds_write_b128 v8, {vr(r,4)} offset:{1024*(4*p+nj)}")
            else:
                a(f"buffer_store_dwordx4 {vr(r,4)}, v{VEP+nj}, s[20:23], s49 offen {st_v}")
        if vperm:
            for nj in range(4):
                a(f"ds_read_b128 {vr(acc(2*p+1, nj),4)}, v9 offset:{1024*(4*p+nj)}")
            for nj in range(4):
                a(f"s_waitcnt lgkmcnt({3-nj})")
                a(f"buffer_store_dwordx4 {vr(acc(2*p+1, nj),4)}, v{VEP+nj}, s[20:23], s49 offen {st_v}")
        if p < 4:
            a(f"s_add_u32 s49, s49, {TILE}")
    a(f"{Ldv}:")
    if wb:
        stamp.mark(a, 5)
        a(f"s_waitcnt vmcnt(0)\ns_cmp_lg_u32 s3, 0\ns_cbranch_scc1 {Ldv}x\nbuffer_wbl2 sc1\n{Ldv}x:")
    done()
    mark_l = len(a.lines)
    a(f"{name}_loader:")
    if fast:
        a("s_setprio 3")
    a(f"""s_sub_u32 s3, s3, 4
v_lshrrev_b32 v10, 3, v0
v_mul_u32_u24 v10, 1280, v10
v_and_b32 v11, 7, v0
v_lshrrev_b32 v12, 4, v0""")
    def wcols():
        a(f"""s_lshr_b32 s54, s3, 1
s_movk_i32 s56, 3072
s_lshl_b32 s57, s19, {7 if mix else 8}
s_cmp_ge_u32 s19, 12
s_cmovk_i32 s56, 3840
s_sub_u32 s58, s19, 12
s_lshl_b32 s58, s58, 9
s_lshl_b32 s60, s54, 8
s_add_u32 s58, s58, s60
s_cmp_ge_u32 s19, 12
s_cselect_b32 s57, s58, s57
s_cmp_eq_u32 s19, 19
s_cmovk_i32 s57, 3584
v_and_b32 v13, 15, v0
v_mul_u32_u24 v14, s56, v12
v_add_u32 v14, s57, v14
s_lshl_b32 s63, s56, 6""")
    if rot_enable == "xcd":
        a("s_and_b32 s59, s2, 7\ns_mul_i32 s59, s59, 5\ns_lshr_b32 s59, s59, 2")
    elif rot_enable == "xcdw":
        a(f"s_and_b32 s59, s2, 1\ns_mul_i32 s59, s59, {4 if clus else 5}")
    elif rot_enable == "xcdx":
        a("s_bfe_u32 s59, s2, 0x20001\ns_mul_i32 s59, s59, 5\ns_lshr_b32 s59, s59, 1")
    elif rot_enable:
        a(f"""s_lshl_b32 s59, s39, 1
s_mul_i32 s60, s18, 3
s_add_u32 s59, s59, s60
s_mul_i32 s60, s59, 205
s_lshr_b32 s60, s60, 11
s_mul_i32 s60, s60, 10
s_sub_u32 s59, s59, s60""")
    else:
        a("s_mov_b32 s59, 0")
    a(f"""s_mov_b32 s36, 0
s_cmp_eq_u32 s19, 19
s_cbranch_scc1 {name}_ldspec""")
    def srdw():
        a(f"""s_cmp_eq_u32 s54, 0
s_cselect_b32 s24, s12, s14
s_cselect_b32 s25, s13, s15
s_mov_b32 s26, {640*3072}
s_cmp_ge_u32 s19, 12
s_cselect_b32 s24, s6, s24
s_cselect_b32 s25, s7, s25
s_cmov_b32 s26, {640*3840}
s_and_b32 s25, s25, 0xffff
s_mov_b32 s27, 0x20000""")
    def srds():
        a("s_waitcnt lgkmcnt(0)")
        srd(a, 20, 4, 2048 * 1280)
        srdw()
    def xoff(dst, e, top):
        a(f"""v_add_u32 v15, {top}, v12
v_xor_b32 v15, v15, v11
v_lshl_add_u32 v15, v15, 4, v10
v_add_u32 v{dst}, {e*8*1280 - 1024*(e%4)}, v15""")
    def woffs(regular):
        a(f"""s_lshl_b32 s60, s56, 2
s_sub_u32 s60, s60, 1024""")
        if regular:
            a(f"""s_cmp_lt_u32 s19, 12
s_cselect_b32 s69, {1536 - 128 if mix else 0}, 0
s_cselect_b32 s68, 3, 0""")
        for hf in range(2):
            d = 6 + 2 * hf
            a(f"v_lshlrev_b32 v15, 1, v12\nv_xor_b32 v15, v15, v13")
            if hf:
                a("v_xor_b32 v15, 8, v15")
            if regular:
                a(f"""v_lshrrev_b32 v16, 1, v15
v_xor_b32 v16, v16, v15
v_and_b32 v16, 1, v16
v_mul_u32_u24 v16, s68, v16
v_xor_b32 v15, v15, v16""")
            a(f"v_lshl_add_u32 v{d}, v15, 4, v14")
            if regular:
                a(f"v_lshrrev_b32 v15, 3, v15\nv_mad_u32_u24 v{d}, v15, s69, v{d}")
            if hf:
                a(f"v_add_u32 v{d}, s60, v{d}\nv_add_u32 v{d}, s60, v{d}")
            a(f"v_add_u32 v{d+1}, s60, v{d}")
    def advance():
        a(f"""s_add_u32 s59, s59, 1
s_cmp_eq_u32 s59, {NST}
s_cselect_b32 s59, 0, s59
s_add_u32 s36, s36, {SLOT}
s_cmp_eq_u32 s36, {SLOT*NSLOT}
s_cselect_b32 s36, 0, s36""")
    def tail(nper):
        Ll = a.label("k1ld")
        return Ll
    a("s_mul_i32 s61, s3, 5")
    for e in range(5):
        a(f"""s_add_u32 s60, s61, {e}
s_and_b32 s60, s60, 2
s_lshl_b32 s60, s60, 1""")
        xoff(1 + e, e, "s60")
    a(f"""s_mul_i32 s61, s18, 160
s_mul_i32 s60, s3, 40
s_add_u32 s61, s61, s60
s_mul_i32 s61, s61, 1280
s_mul_i32 s65, s3, 5120
s_lshl_b32 s62, s59, 7
s_add_u32 s62, s62, s61
s_mov_b32 m0, s65""")
    stamp.mark(a, 1)
    a("s_waitcnt lgkmcnt(0)")
    stamp.mark(a, 2)
    srd(a, 20, 4, 2048 * 1280)
    if earlyx:
        a(f"""buffer_load_dwordx4 v1, s[20:23], s62 offen {nt_x} lds
buffer_load_dwordx4 v2, s[20:23], s62 offen offset:1024 {nt_x} lds
buffer_load_dwordx4 v3, s[20:23], s62 offen offset:2048 {nt_x} lds
buffer_load_dwordx4 v4, s[20:23], s62 offen offset:3072 {nt_x} lds
s_add_u32 m0, m0, 4096
s_nop 0
buffer_load_dwordx4 v5, s[20:23], s62 offen {nt_x} lds""")
    wcols()
    woffs(True)
    a(f"""s_and_b32 s60, s3, 1
s_lshl_b32 s67, s60, 5
s_mul_i32 s67, s67, s56
s_lshl_b32 s66, s3, 13
s_add_u32 s66, s66, 20480
s_lshl_b32 s68, s56, 4""")
    srdw()
    def mk_issue_reg(var):
        X = f"""s_add_u32 m0, s36, s65
s_nop 0
buffer_load_dwordx4 v1, s[20:23], s62 offen {nt_x} lds
buffer_load_dwordx4 v2, s[20:23], s62 offen offset:1024 {nt_x} lds
buffer_load_dwordx4 v3, s[20:23], s62 offen offset:2048 {nt_x} lds
buffer_load_dwordx4 v4, s[20:23], s62 offen offset:3072 {nt_x} lds
s_add_u32 m0, m0, 4096
s_nop 0
buffer_load_dwordx4 v5, s[20:23], s62 offen {nt_x} lds"""
        def W(so, lo):
            return f"""s_add_u32 m0, s36, {lo}
s_nop 0
buffer_load_dwordx4 v6, s[24:27], {so} offen {nt_w} lds
buffer_load_dwordx4 v7, s[24:27], {so} offen offset:1024 {nt_w} lds
buffer_load_dwordx4 v8, s[24:27], {so} offen offset:2048 {nt_w} lds
buffer_load_dwordx4 v9, s[24:27], {so} offen offset:3072 {nt_w} lds"""
        blocks = [X, W("s64", "s66"), W("s69", "s73")]
        blocks = blocks[var:] + blocks[:var]
        lines = "\n".join(blocks).split("\n")
        k = [i for i, l in enumerate(lines) if l.startswith("buffer_load")][3]
        def issue(part=None):
            if part == "w":
                a(f"""s_mul_i32 s64, s59, s63
s_add_u32 s64, s64, s67
s_add_u32 s69, s64, s68""")
                a(W("s64", "s66")); a(W("s69", "s73"))
                advance()
                return
            if part in (None, 0):
                a(f"""s_lshl_b32 s62, s59, 7
s_add_u32 s62, s62, s61
s_mul_i32 s64, s59, s63
s_add_u32 s64, s64, s67
s_add_u32 s69, s64, s68""")
                a("\n".join(lines[:k+1]))
            if part in (None, 1):
                a("\n".join(lines[k+1:]))
            if part == 0: return
            advance()
        return issue
    def clus_setup():
        a(f"""s_mul_i32 s70, s18, 37
s_lshr_b32 s70, s70, 8
s_mul_i32 s70, s70, 7
s_sub_u32 s70, s18, s70
v_lshrrev_b32 v17, 1, v0
v_mul_u32_u24 v17, 7, v17
v_add_u32 v17, s70, v17
v_cmp_gt_u32 vcc, 0x80, v17
v_mul_u32_u24 v17, s56, v17
v_add_u32 v17, s57, v17
s_movk_i32 s70, 128
s_movk_i32 s71, 256
s_cmp_lt_u32 s19, 12
s_cmovk_i32 s70, {1536 if mix else 128}
s_cmovk_i32 s71, 0
s_cselect_b32 s28, s12, s6
s_cselect_b32 s29, s13, s7
s_and_b32 s29, s29, 0xffff
s_mov_b32 s30, s26
s_mov_b32 s31, 0x20000
v_and_b32 v18, 1, v0
v_mad_u32_u24 v17, v18, s70, v17
v_subrev_u32 v20, s71, v17
v_mov_b32 v18, -1
v_cndmask_b32 v17, v18, v17, vcc
v_cndmask_b32 v20, v18, v20, vcc
v_and_b32 v18, 31, v0
v_mul_u32_u24 v18, 1280, v18
v_lshrrev_b32 v19, 5, v0
v_lshl_add_u32 v18, v19, 7, v18
s_lshl_b32 s70, s39, 5
s_mul_i32 s71, s18, 160
s_add_u32 s70, s70, s71
s_mul_i32 s70, s70, 1280""")
    def cluster(ahead):
        L = a.label("clus")
        a(f"""s_cmp_lg_u32 s3, 3
s_cbranch_scc1 {L}
s_add_u32 s71, s59, {ahead}
s_cmp_ge_u32 s71, {NST}
s_cselect_b32 s72, {NST}, 0
s_sub_u32 s71, s71, s72
s_lshl_b32 s72, s71, 7
s_add_u32 s72, s72, s70
s_mul_i32 s71, s71, s63
buffer_load_dword v19, v18, s[20:23], s72 offen
buffer_load_dword v19, v17, s[24:27], s71 offen
buffer_load_dword v19, v20, s[28:31], s71 offen
{L}:""")
    def ring(issue, nper):
        Ll = a.label("k1ld"); Ls = a.label("k1sk")
        cl = clus and nper == 13
        issue("w" if earlyx and nper == 13 else None)
        stamp.mark(a, 3)
        if cl:
            clus_setup()
            cluster(1)
        issue(0)
        stamp.mark(a, 5)
        a(f"s_waitcnt vmcnt({NFIRST})")
        stamp.mark(a, 6)
        a("s_barrier")
        issue(1)
        a(f"s_mov_b32 s37, 1\n{Ll}:")
        issue()
        if cl:
            a(f"s_bitcmp1_b32 0x2a, s37\ns_cbranch_scc0 {Ls}")
            cluster(1)
            a(f"{Ls}:")
        a(f"""s_waitcnt vmcnt({nper})
s_barrier
s_add_u32 s37, s37, 1
s_cmp_lt_u32 s37, {NST-1}
s_cbranch_scc1 {Ll}
s_branch {name}_tjob""")
    NFIRST = 4
    a("s_add_u32 s73, s66, 4096")
    if nvar > 1:
        a(f"""s_add_u32 s60, s39, s18
s_mul_i32 s72, s60, {(256 + nvar - 1)//nvar}
s_lshr_b32 s72, s72, 8
s_mul_i32 s72, s72, {nvar}
s_sub_u32 s60, s60, s72""")
        for v in range(1, nvar):
            a(f"s_cmp_eq_u32 s60, {v}\ns_cbranch_scc1 {name}_var{v}")
    ring(mk_issue_reg(0), 13)
    for v in range(1, nvar):
        a(f"{name}_var{v}:")
        ring(mk_issue_reg(v if nvar == 3 else 2 * v - 0 if False else (v if nvar == 3 else 1)), 13)
    a(f"{name}_ldspec:")
    for e in range(4):
        xoff(1 + e, e, 4 * (e >> 1))
    wcols()
    woffs(False)
    a(f"""s_lshl_b32 s61, s18, 8
s_lshl_b32 s60, s3, 6
s_add_u32 s61, s61, s60
s_mul_i32 s61, s61, 1280
s_lshl_b32 s65, s3, 13
s_lshl_b32 s67, s3, 4
s_mul_i32 s67, s67, s56
s_lshl_b32 s66, s3, 12
s_add_u32 s66, s66, 32768""")
    srds()
    def issue_spec(part=None):
        if part in (None, 0):
            a(f"""s_lshl_b32 s62, s59, 7
s_add_u32 s62, s62, s61
s_mul_i32 s64, s59, s63
s_add_u32 m0, s36, s65
s_add_u32 s64, s64, s67
buffer_load_dwordx4 v1, s[20:23], s62 offen {nt_x} lds
buffer_load_dwordx4 v2, s[20:23], s62 offen offset:1024 {nt_x} lds
buffer_load_dwordx4 v3, s[20:23], s62 offen offset:2048 {nt_x} lds
buffer_load_dwordx4 v4, s[20:23], s62 offen offset:3072 {nt_x} lds""")
        if part in (None, 1):
            a(f"""s_add_u32 m0, m0, 4096
s_add_u32 s69, s62, {32*1280}
buffer_load_dwordx4 v1, s[20:23], s69 offen {nt_x} lds
buffer_load_dwordx4 v2, s[20:23], s69 offen offset:1024 {nt_x} lds
buffer_load_dwordx4 v3, s[20:23], s69 offen offset:2048 {nt_x} lds
buffer_load_dwordx4 v4, s[20:23], s69 offen offset:3072 {nt_x} lds
s_add_u32 m0, s36, s66
s_nop 0
buffer_load_dwordx4 v6, s[24:27], s64 offen {nt_w} lds
buffer_load_dwordx4 v7, s[24:27], s64 offen offset:1024 {nt_w} lds
buffer_load_dwordx4 v8, s[24:27], s64 offen offset:2048 {nt_w} lds
buffer_load_dwordx4 v9, s[24:27], s64 offen offset:3072 {nt_w} lds""")
        if part == 0: return
        advance()
    ring(issue_spec, 12)
    a(f"""{name}_tjob:
s_mul_i32 s70, s3, 255
s_add_u32 s70, s70, s38
s_cmp_lt_u32 s70, 544
s_cselect_b32 s71, s70, 0
s_lshr_b32 s72, s71, 2
s_and_b32 s73, s71, 3
s_mul_i32 s76, s72, 20
s_sub_u32 s74, s72, 32
s_mul_i32 s74, s74, 80
s_add_u32 s74, s74, 16
s_cmp_ge_u32 s72, 32
s_cselect_b32 s76, s74, s76
s_cselect_b32 s77, 16, 0
s_sub_u32 s74, s72, 40
s_lshl_b32 s74, s74, 4
s_cmp_lt_u32 s72, 40
s_cselect_b32 s28, s8, s10
s_cselect_b32 s29, s9, s11
s_mov_b32 s30, {1536*1280}
s_cmov_b32 s30, {640*1280}
s_cselect_b32 s74, s76, s74
s_cselect_b32 s77, s77, 0
s_and_b32 s29, s29, 0xffff
s_mov_b32 s31, 0x20000
s_mul_i32 s74, s74, 1280
s_mul_i32 s75, s73, 320
s_add_u32 s74, s74, s75
s_mul_i32 s75, s3, 5120
s_add_u32 s75, s75, {SLOT}""")
    for i in range(5):
        a(f"""v_add_u32 v8, {64*i}, v0
v_mul_u32_u24 v9, 205, v8
v_lshrrev_b32 v9, 12, v9
v_mul_u32_u24 v10, 20, v9
v_sub_u32 v8, v8, v10
v_lshrrev_b32 v10, 2, v9
v_mad_u32_u24 v9, v10, s77, v9
v_mul_u32_u24 v9, 1280, v9
v_lshl_add_u32 v11, v8, 4, v9
s_add_u32 m0, s75, {1024*i}
s_nop 0
buffer_load_dwordx4 v11, s[28:31], s74 offen lds""")
    srd(a, 32, 16, WS_END)
    a(f"""s_waitcnt vmcnt(5)
s_barrier""")
    a(f"""s_cmp_ge_u32 s70, 544
s_cbranch_scc1 {name}_gate""")
    a(f"""v_lshrrev_b32 v1, 5, v0
v_bfe_u32 v2, v0, 2, 2
v_lshl_add_u32 v1, v1, 2, v2
v_mul_u32_u24 v1, 320, v1
v_bfe_u32 v2, v0, 4, 1
v_lshl_add_u32 v1, v2, 5, v1
v_and_b32 v2, 3, v0
v_lshl_add_u32 v1, v2, 3, v1
v_add_u32 v1, s75, v1
v_bfe_u32 v2, v0, 4, 1
v_mul_u32_u24 v2, {FB}, v2
v_and_b32 v3, 15, v0
v_lshrrev_b32 v4, 5, v0
v_lshl_add_u32 v3, v4, 4, v3
v_lshl_add_u32 v4, v3, 3, v2
v_lshl_add_u32 v2, v3, 4, v2
s_mul_i32 s76, s73, {10*FB}
s_add_u32 s76, s76, {WF}
s_lshl_b32 s74, s72, 9
s_add_u32 s76, s76, s74
s_waitcnt vmcnt(0)""")
    for j in range(5):
        a(f"ds_read_b64_tr_b16 {vr(16+4*j,2)}, v1 offset:{64*j}")
        a(f"ds_read_b64_tr_b16 {vr(18+4*j,2)}, v1 offset:{64*j+8*320}")
    a(f"s_cmp_eq_u32 s77, 16\ns_cbranch_scc1 {name}_tx")
    for j in range(5):
        a(f"s_waitcnt lgkmcnt({8-2*j})")
        a(f"buffer_store_dwordx4 {vr(16+4*j,4)}, v2, s[32:35], s76 offen {st_w}")
        if j < 4:
            a(f"s_add_u32 s76, s76, {2*FB}")
    a(f"s_branch {name}_gate\n{name}_tx:")
    for j in range(5):
        a(f"s_waitcnt lgkmcnt({8-2*j})")
        a(f"buffer_store_dwordx2 {vr(16+4*j,2)}, v4, s[32:35], s76 offen {st_w}")
        a(f"buffer_store_dwordx2 {vr(18+4*j,2)}, v4, s[32:35], s76 offen offset:256 {st_w}")
        if j < 4:
            a(f"s_add_u32 s76, s76, {2*FB}")
    a(f"s_branch {name}_gate")
    a(f"""{name}_idle:
s_mov_b32 s19, 0
s_waitcnt lgkmcnt(0)
s_cmp_lt_u32 s3, 4
s_cbranch_scc1 {name + "_join" if fused else Lend}
s_sub_u32 s3, s3, 4
s_waitcnt lgkmcnt(0)""")
    srd(a, 20, 4, 2048 * 1280)
    srd(a, 32, 16, WS_END)
    a(f"{name}_gate:")
    srd(a, 24, 78, 1280)
    a(f"""v_mul_u32_u24 v1, 20, v0
s_lshl_b32 s47, s2, 3
s_lshl_b32 s48, s3, 1
s_add_u32 s47, s47, s48
s_mul_i32 s48, s47, 1280
buffer_load_dwordx4 v[40:43], v1, s[24:27], 0 offen
buffer_load_dword v44, v1, s[24:27], 0 offen offset:16
buffer_load_dwordx4 v[48:51], v1, s[20:23], s48 offen
buffer_load_dword v52, v1, s[20:23], s48 offen offset:16
buffer_load_dwordx4 v[56:59], v1, s[20:23], s48 offen offset:1280
buffer_load_dword v60, v1, s[20:23], s48 offen offset:1296
v_mov_b32 v2, 0
v_mov_b32 v3, 0
v_lshlrev_b32 v4, 2, v0
s_cmp_lg_u32 s3, {99 if fused else 3}
s_cbranch_scc1 {name}_nofl
s_cmp_ge_u32 s2, 8
s_cbranch_scc1 {name}_nofl
s_lshl_b32 s49, s2, 12
s_add_u32 s49, s49, {FLG}
s_mov_b32 exec_hi, 0
buffer_store_dword v2, v4, s[32:35], s49 offen sc1
s_mov_b32 exec_hi, -1
{name}_nofl:
s_waitcnt vmcnt(0)""")
    for i in range(5):
        a(f"v_dot2_f32_bf16 v2, v{48+i}, v{40+i}, v2")
        a(f"v_dot2_f32_bf16 v3, v{56+i}, v{40+i}, v3")
    a("s_nop 3")
    for d in ("row_shr:1 row_mask:0xf bank_mask:0xf bound_ctrl:0", "row_shr:2 row_mask:0xf bank_mask:0xf bound_ctrl:0",
              "row_shr:4 row_mask:0xf bank_mask:0xf bound_ctrl:0", "row_shr:8 row_mask:0xf bank_mask:0xf bound_ctrl:0",
              "row_bcast:15 row_mask:0xa bank_mask:0xf", "row_bcast:31 row_mask:0xc bank_mask:0xf"):
        a(f"v_add_f32_dpp v2, v2, v2 {d}\nv_add_f32_dpp v3, v3, v3 {d}\ns_nop 0")
    a(f"""v_mul_f32 v2, {hex(f2u(-1.4426950408889634))}, v2
v_mul_f32 v3, {hex(f2u(-1.4426950408889634))}, v3
v_exp_f32 v2, v2
v_exp_f32 v3, v3
s_nop 0
v_add_f32 v2, 1.0, v2
v_add_f32 v3, 1.0, v3
v_rcp_f32 v2, v2
v_rcp_f32 v3, v3
s_lshl_b32 s49, s47, 2
s_add_u32 s49, s49, {GV}
v_mov_b32 v4, 0
s_mov_b32 exec_lo, 0
s_mov_b32 exec_hi, 0x80000000
buffer_store_dwordx2 v[2:3], v4, s[32:35], s49 offen sc1""")
    if fused:
        if ldfirst:
            a(f"s_branch {name}_join")
            a.lines[mark_c:] = a.lines[mark_l:] + a.lines[mark_c:mark_l]
        return
    stamp.flush(a, 0, 4, 0)
    a(f"{Lend}:\ns_endpgm")
    kernel_desc(a, name, NV, 102 if stamp.ENABLED else 96)
```

```python
from common import *
import stamp

K2_LDS = HEADB
Q16, Q8 = 4, 8
K16, K8 = 10, 14
V0, V1 = 16, 20
P = 24
S = [32, 48]
O = 64
VA, VB, VG, VK, VA2 = 80, 81, 82, 83, 84
VL = 3
RING = 88
NSL = 7
GA = 8
M16 = "v_mfma_f32_32x32x16_bf16"
M8 = "v_mfma_f32_32x32x8bf16_1k"
U = 8

def tile(a, t, base, job0=None, job1=None):
    s0, s1 = S[t % 2], S[(t + 1) % 2]
    ko = (t + 2 - base) * TILE
    vo = (t - base) * TILE
    assert ko + 16 < 65536
    def ex(lo, hi):
        for i in range(lo, hi):
            a(f"v_exp_f32 v{s0+i}, v{s0+i}")
    def cv(lo, hi):
        for i in range(lo, hi):
            a(f"v_cvt_pk_bf16_f32 v{P+i}, v{s0+2*i}, v{s0+2*i+1}")
    last = t == 63
    if not last:
        a("s_waitcnt lgkmcnt(3)" if t < 62 else "s_waitcnt lgkmcnt(2)")
        a(f"{M16} {vr(s1,16)}, {vr(K16,4)}, {vr(Q16,4)}, 0")
    if t < 62:
        a(f"ds_read2st64_b64 {vr(K16,4)}, v{VK} offset0:{ko//512} offset1:{ko//512+1}")
    ex(0, 5)
    a("s_waitcnt lgkmcnt(1)" if t < 62 else "s_waitcnt lgkmcnt(0)")
    a(f"{M16} {vr(O,16)}, {vr(V0,4)}, {vr(P,4)}, {vr(O,16)}")
    if job0: job0()
    ex(5, 8)
    cv(0, 4)
    if not last:
        a(f"{M8} {vr(s1,16)}, {vr(K8,2)}, {vr(Q8,2)}, {vr(s1,16)}")
    if t < 62:
        a(f"ds_read_b64 {vr(K8,2)}, v{VB} offset:{ko}")
    ex(8, 13)
    a(f"{M16} {vr(O,16)}, {vr(V1,4)}, {vr(P+4,4)}, {vr(O,16)}")
    a("s_mov_b64 exec, s[30:31]")
    a(f"ds_read_b128 {vr(V0,4)}, v{VA} offset:{vo}")
    a(f"ds_read_b128 {vr(V1,4)}, v{VA2} offset:{vo}")
    a("s_mov_b64 exec, -1")
    if job1: job1()
    ex(13, 16)
    cv(4, 8)

MM = "v_mfma_f32_16x16x32_bf16"
MX = "v_mfma_f32_16x16x16bf16_1k"
RDY = 102400
PTMP = 252
NFR = 41
LDF = [""]
def bfrag(n, reg):
    i, c = n // 9, n % 9
    pre = ""
    if i == 4:
        pre = f"s_add_u32 s{62+c}, s{62+c}, 4096\n"
    return pre + f"buffer_load_dwordx4 {vr(reg,4)}, v{VL}, s[20:23], s{62+c} offen offset:{(i%4)*1024} {LDF[0]}"

def gen_k2(a, name, prios={0:3, 2:2, 3:1, 4:3, 11:2, 14:1, 16:3, 34:2, 39:1, 41:0, 42:3, 56:2, 61:1, 63:0}, lead=4, lead2=0, pubo=2, puby=0,
           st_o="sc1", pf0=18, rot=True, slp=2, nosync=False, tailmarks=False, b1=3, fused=True, st_out=""):
    hm = lambda i: stamp.mark(a, 6) if i == 2 else None
    tm = (lambda i: stamp.mark(a, i)) if tailmarks else (lambda i: None)
    defer = False; tall = None
    Lend = f"{name}_end"
    LD = "sc1"
    LDF[0] = LD
    Lj = a.label("join")
    a(f"""{name}_join:
s_mov_b64 exec, -1
s_setprio 0
s_mov_b32 s3, s55
s_mov_b32 s74, s19
s_load_dwordx2 s[6:7], s[0:1], 72
s_load_dwordx2 s[4:5], s[0:1], 64
v_mbcnt_lo_u32_b32 v0, -1, 0
v_mbcnt_hi_u32_b32 v0, -1, v0
s_and_b32 s40, s2, 7
s_lshr_b32 s41, s2, 3
s_lshl_b32 s18, s40, 2
s_lshr_b32 s42, s41, 3
s_add_u32 s18, s18, s42
s_mul_i32 s43, s18, {HEADB}
v_lshlrev_b32 v{VL}, 4, v0
s_lshl_b32 s45, s3, 10
s_add_u32 s46, s43, s45
s_add_u32 s46, s46, {KV}
s_mov_b32 m0, s45
s_and_b32 s19, s41, 7
s_lshl_b32 s19, s19, 3
s_add_u32 s19, s19, s3
v_and_b32 v1, 31, v0
v_lshrrev_b32 v2, 5, v0
v_bfe_u32 v85, v1, 2, 2
v_xor_b32 v85, v85, v2
v_lshlrev_b32 v85, 4, v85
v_lshl_add_u32 v{VA}, v1, 6, v85
v_add_u32 v{VA}, 1280, v{VA}
v_xor_b32 v{VA2}, 32, v{VA}
v_and_b32 v{VB}, 7, v1
v_lshlrev_b32 v{VB}, 4, v{VB}
v_and_b32 v85, 8, v1
v_add_u32 v{VB}, v85, v{VB}
v_and_b32 v85, 16, v1
v_lshl_add_u32 v{VB}, v85, 3, v{VB}
v_lshl_add_u32 v{VK}, v2, 8, v{VB}
v_add_u32 v{VB}, 1024, v{VB}
s_mul_i32 s44, s19, {TILE}
s_add_u32 s44, s44, s43
s_lshl_b32 s47, s19, 7
s_add_u32 s47, s47, {GV}
v_lshlrev_b32 v{VG}, 2, v1
v_mov_b32 v37, 0
s_waitcnt lgkmcnt(0)
s_cmp_lg_u32 s3, {lead}
s_cbranch_scc1 {Lj}s
global_load_dword v36, v37, s[6:7] sc1
{Lj}s:""")
    srd(a, 20, 16, WS_END)
    srd(a, 24, 4, 2048 * 1280)
    a(f"""s_lshl_b32 s60, s40, 2
s_lshr_b32 s42, s41, 3
s_add_u32 s60, s60, s42
s_and_b32 s61, s41, 7
s_add_u32 s75, s3, {"s61" if rot else "0"}
s_and_b32 s75, s75, 7
s_mul_i32 s48, s75, 6144
s_add_u32 s48, s48, {FH}
s_mul_i32 s71, s60, {4*FB}
s_add_u32 s71, s71, {AF}
s_add_u32 s62, s71, s48
s_mul_i32 s72, s61, {5*FB}
s_add_u32 s72, s72, {WF}
s_add_u32 s66, s72, s48
s_mul_i32 s76, s3, 12800""")
    for j in range(1, 4):
        a(f"s_add_u32 s{62+j}, s{61+j}, {FB}")
    for j in range(1, 5):
        a(f"s_add_u32 s{66+j}, s{65+j}, {FB}")
    a(f"""s_mov_b32 s30, 0x000fffff
s_mov_b32 s31, 0x000fffff
v_cmp_eq_u32 vcc, 20, v1
v_mov_b32 v85, 0x3f803f80
v_mov_b32 v86, 0
v_cndmask_b32 v{V0}, v86, v85, vcc
v_mov_b32 v{Q8}, 0
v_mov_b32 v{Q8+1}, 0""")
    for i in range(1, 8):
        a(f"v_mov_b32 v{V0+i}, v{V0}")
    for i in range(16):
        a(f"v_mov_b32 v{O+i}, 0")
    for i in range(8):
        a(f"v_mov_b32 v{P+i}, 0")
    stamp.mark(a, 1)
    a("s_waitcnt vmcnt(0)\ns_barrier")
    if stamp.TODEBUG is None: stamp.mark(a, 5)
    a(f"""s_cmp_lg_u32 s3, {lead}
s_cbranch_scc1 {Lj}d
s_mov_b32 s49, 0
{Lj}t:
v_readfirstlane_b32 s77, v36
s_add_u32 s49, s49, 1
s_cmp_ge_u32 s49, 0x40000
s_cbranch_scc1 {Lj}u
s_cmp_lg_u32 s77, 0
s_cbranch_scc1 {Lj}u
global_load_dword v36, v37, s[6:7] sc1
s_waitcnt vmcnt(0)
s_branch {Lj}t
{Lj}u:
v_mov_b32 v34, s77
s_lshl_b32 s48, s2, 2
s_add_u32 s48, s48, {FALL}
s_mov_b32 s50, {FQKV}
v_lshlrev_b32 v33, 11, v0
s_mov_b64 exec, 1
s_cmp_lt_u32 s74, 12
s_cbranch_scc1 {Lj}n
v_mov_b32 v35, 1
global_atomic_add v35, v37, v35, s[6:7] offset:128 sc0 sc1
s_waitcnt vmcnt(0)
v_readfirstlane_b32 s49, v35
s_cmp_lg_u32 s49, 98
s_cbranch_scc1 {Lj}n
s_mov_b64 exec, 0xffff
buffer_store_dword v34, v33, s[20:23], s50 offen sc1
s_mov_b64 exec, 1
global_store_dword v37, v37, s[6:7] offset:128 sc1
{Lj}n:
buffer_store_dword v34, v37, s[20:23], s48 offen sc1
s_and_b32 s48, s2, 15
s_lshl_b32 s48, s48, 11
s_add_u32 s48, s48, {FQKV}
s_mov_b32 s49, 0
{Lj}:
buffer_load_dword v33, v37, s[20:23], s48 offen sc1
s_add_u32 s49, s49, 1
s_waitcnt vmcnt(0)
v_cmp_ne_u32 vcc, s77, v33
s_cmp_ge_u32 s49, 0x40000
s_cbranch_scc1 {Lj}x
s_cbranch_vccnz {Lj}
{Lj}x:
s_mov_b64 exec, -1
{Lj}d:
s_barrier""")
    stamp.mark(a, 2)
    a(f"""buffer_load_dwordx4 v{VL}, s[20:23], s46 offen {LD} lds
buffer_load_dwordx2 {vr(Q16,2)}, v{VK}, s[20:23], s44 offen {LD}
buffer_load_dwordx2 {vr(Q16+2,2)}, v{VK}, s[20:23], s44 offen offset:512 {LD}
s_mov_b32 exec_hi, 0
buffer_load_dwordx2 {vr(Q8,2)}, v{VB}, s[20:23], s44 offen {LD}
s_mov_b32 exec_hi, -1""")
    for i in range(3):
        a(f"s_add_u32 m0, m0, 8192\ns_add_u32 s46, s46, 8192\nbuffer_load_dwordx4 v{VL}, s[20:23], s46 offen {LD} lds")
    a(f"""v_lshl_add_u32 v{VB}, v2, 18, v{VB}
s_waitcnt vmcnt({2 if b1 == 3 else 0})
s_barrier""")
    hm(2)
    a(f"""ds_read2st64_b64 {vr(K16,4)}, v{VK} offset0:0 offset1:1
ds_read_b64 {vr(K8,2)}, v{VB}
s_waitcnt lgkmcnt(0)
{M16} {vr(S[0],16)}, {vr(K16,4)}, {vr(Q16,4)}, 0
{M8} {vr(S[0],16)}, {vr(K8,2)}, {vr(Q8,2)}, {vr(S[0],16)}
ds_read2st64_b64 {vr(K16,4)}, v{VK} offset0:5 offset1:6
ds_read_b64 {vr(K8,2)}, v{VB} offset:{TILE}
s_mov_b64 exec, s[30:31]
ds_read_b128 {vr(V0,4)}, v{VA}
ds_read_b128 {vr(V1,4)}, v{VA2}
s_mov_b64 exec, -1
s_nop 7
s_nop 3""")
    def kv():
        a(f"s_add_u32 m0, m0, 8192\ns_add_u32 s46, s46, 8192\nbuffer_load_dwordx4 v{VL}, s[20:23], s46 offen {LD} lds")
    wl = []
    for j in range(5):
        pre = f"s_lshl_b32 s73, s75, 11\ns_add_u32 s73, s73, s72\n" if j == 0 else f"s_add_u32 s73, s73, {FB}\n"
        wl.append(pre + f"s_add_u32 m0, s76, {2048*j}\ns_nop 0\nbuffer_load_dwordx4 v{VL}, s[20:23], s73 offen {LD} lds")
        wl.append(f"buffer_load_dwordx4 v{VL}, s[20:23], s73 offen offset:1024 {LD} lds")
    for j in range(5):
        pre = f"s_lshl_b32 s73, s75, 9\ns_add_u32 s73, s73, s72\ns_add_u32 s73, s73, {FX}\n" if j == 0 else f"s_add_u32 s73, s73, {FB}\n"
        wl.append(pre + f"s_add_u32 m0, s76, {10240 + 512*j}\ns_mov_b32 exec_hi, 0\nbuffer_load_dwordx4 v{VL}, s[20:23], s73 offen {LD} lds\ns_mov_b32 exec_hi, -1")
    pf = [bfrag(n, RING + 4 * n) for n in range(NFR)]
    def pub_all():
        Lf = a.label("fall")
        a(f"""s_cmp_lg_u32 s3, {lead}
s_cbranch_scc1 {Lf}
s_lshl_b32 s48, s2, 2
s_add_u32 s48, s48, {FALL}
v_mov_b32 v85, s77
v_mov_b32 v86, 0
s_mov_b64 exec, 1
buffer_store_dword v85, v86, s[20:23], s48 offen sc1
s_mov_b64 exec, -1
{Lf}:""")
    def chk_all():
        La = a.label("alld")
        a(f"""s_cmp_lg_u32 s3, {lead}
s_cbranch_scc1 {La}d
s_mov_b32 s48, {FALL}
s_mov_b32 s49, 0
{La}:
buffer_load_dwordx4 v[88:91], v{VL}, s[20:23], s48 offen sc1
s_add_u32 s49, s49, 1
s_waitcnt vmcnt(0)
v_xor_b32 v88, s77, v88
v_xor_b32 v89, s77, v89
v_xor_b32 v90, s77, v90
v_xor_b32 v91, s77, v91
v_or3_b32 v88, v88, v89, v90
v_or_b32 v88, v88, v91
v_cmp_ne_u32 vcc, 0, v88
s_cmp_ge_u32 s49, 0x40000
s_cbranch_scc1 {La}d
s_cbranch_vccz {La}d
s_sleep {slp}
s_branch {La}
{La}d:""")
    post = defer == 'post'
    if post:
        pf0 = tall + 1
    base = 0
    for t in range(64):
        if t in prios:
            a(f"s_setprio {prios[t]}")
        if t in (23, 46):
            a(f"v_add_u32 v{VA}, {23*TILE}, v{VA}\nv_add_u32 v{VB}, {23*TILE}, v{VB}\nv_add_u32 v{VK}, {23*TILE}, v{VK}\nv_add_u32 v{VA2}, {23*TILE}, v{VA2}")
            base = t
        j0 = j1 = None
        if t < 8:
            j0 = j1 = kv
        elif post and 8 <= t < 13:
            import k1
            def hs(mi):
                so = "s78" if mi >= 8 else "s79"
                a(f"buffer_store_dwordx4 {vr(k1.hout(mi),4)}, v244, s[20:23], {so} offen offset:{128*(mi&1)} sc1")
                if mi & 1 and mi < 7:
                    a(f"s_add_u32 s79, s79, {2*FB}")
            j0 = (lambda m=2*(t-8): hs(m)); j1 = (lambda m=2*(t-8)+1: hs(m))
        elif post and t >= pf0:
            if pf: j1 = (lambda x=pf.pop(0): a(x))
            if pf and t < 41 and len(pf) > 62 - t: j0 = (lambda x=pf.pop(0): a(x))
        elif pf0 <= t < pf0 + len(pf):
            j1 = (lambda x=pf[t - pf0]: a(x))
        if 42 <= t < 42 + len(wl):
            j0 = (lambda x=wl[t - 42]: a(x))
        tile(a, t, base, j0, j1)
        if fused and 24 <= t < 40 and t % 2 == 0:
            Lt = a.label("tag2")
            a(f"s_cmp_lg_u32 s3, {(t - 24) // 2}\ns_cbranch_scc1 {Lt}\nv_mov_b32 v85, 0\nglobal_load_dword v87, v85, s[6:7] sc1\n{Lt}:")
        if t == 41:
            a("s_barrier")
            a(f"v_mov_b32 v85, {RDY}\nv_mov_b32 v86, 0\nds_write_b32 v85, v86\nds_write_b32 v85, v86 offset:4")
        if t == b1:
            a("s_waitcnt vmcnt(14)" if b1 == 7 else "s_waitcnt vmcnt(6)")
            hm(5)
            a("s_barrier")
            if defer and not post:
                pub_all()
        if t == 15:
            if fused and not post:
                chk_all()
            a("s_waitcnt vmcnt(0)\ns_barrier")
            if post:
                pub_all()
            elif fused:
                a(f"buffer_load_dword v{VG}, v{VG}, s[20:23], s47 offen sc1")
            hm(6)
        if post and t == tall:
            chk_all()
            a(f"s_barrier\nbuffer_load_dword v{VG}, v{VG}, s[20:23], s47 offen sc1")
    assert (not pf) if post else pf0 + len(pf) <= 64
    a(f"""s_waitcnt lgkmcnt(0)
{M16} {vr(O,16)}, {vr(V0,4)}, {vr(P,4)}, {vr(O,16)}
{M16} {vr(O,16)}, {vr(V1,4)}, {vr(P+4,4)}, {vr(O,16)}""")
    Lfin = a.label("k2fin"); Lfb = a.label("k2fb")
    stamp.mark(a, 3)
    T = 32
    a(f"""s_mul_i32 s48, s19, {2*FB}
s_add_u32 s48, s48, {AF}
s_lshl_b32 s50, s18, 9
s_add_u32 s50, s50, s48
s_lshl_b32 s49, s18, 7
s_add_u32 s49, s49, s48
s_add_u32 s49, s49, {FX}
v_lshrrev_b32 v{T+4}, 4, v1
v_mul_u32_u24 v{T+4}, {FB}, v{T+4}
v_and_b32 v{T+5}, 15, v1
v_lshl_add_u32 v{T+6}, v{T+5}, 3, v{T+4}
v_lshl_add_u32 v{T+4}, v{T+5}, 4, v{T+4}
v_lshl_add_u32 v{T+7}, v2, 8, v{T+4}
s_lshr_b32 s51, s19, 3
s_lshl_b32 s51, s51, 12
s_lshl_b32 s48, s18, 2
s_add_u32 s51, s51, s48
s_add_u32 s51, s51, {FLG}
s_mov_b32 s54, {hex(f2u(2.0**100))}
s_mov_b32 s55, {hex(f2u(2.0**-40))}
s_nop 3
v_mov_b32 v{T}, v{O+8}
v_mov_b32 v{T+1}, v{O+8}
s_nop 1
v_permlane32_swap_b32 v{T}, v{T+1}""")
    a(f"v_add_f32 v{T+2}, abs(v{O}), abs(v{O+1})\nv_add_f32 v{T+3}, abs(v{O+2}), v{T+1}")
    for i in range(3, 12):
        r = T + 2 + (i & 1)
        a(f"v_add_f32 v{r}, abs(v{O+i}), v{r}")
    a(f"""v_add_f32 v{T+2}, v{T+2}, v{T+3}
v_cmp_nge_f32 s[56:57], v{T+1}, s55
v_cmp_nle_f32 vcc, v{T+2}, s54
s_or_b64 vcc, vcc, s[56:57]
s_cbranch_vccnz {Lfb}
{Lfin}:
v_rcp_f32 v{T+1}, v{T+1}
s_nop 0
v_mul_f32 v{T+1}, v{VG}, v{T+1}""")
    for i in range(12):
        a(f"v_mul_f32 v{O+i}, v{T+1}, v{O+i}")
    for i in range(6):
        a(f"v_cvt_pk_bf16_f32 v{T+8+i}, v{O+2*i}, v{O+2*i+1}")
    a(f"""buffer_store_dwordx4 {vr(T+8,4)}, v{T+7}, s[20:23], s50 offen {st_o}
s_mov_b32 exec_hi, 0
buffer_store_dwordx2 {vr(T+12,2)}, v{T+6}, s[20:23], s49 offen {st_o}
s_mov_b32 exec_hi, -1
s_setprio 0""")
    a(f"""v_and_b32 v1, 15, v0
v_lshlrev_b32 v1, 2, v1
s_lshl_b32 s48, s60, 8
s_add_u32 s48, s48, {GV}""")
    for mi in range(4):
        a(f"buffer_load_dword v{4+mi}, v1, s[20:23], s48 offen offset:{64*mi} {LD}")
    a("s_waitcnt vmcnt(6)")
    if fused:
        a("v_readfirstlane_b32 s77, v87\ns_nop 1")
    a(f"""v_lshlrev_b32 v2, 2, v0
v_mov_b32 v1, {"s77" if fused else "1"}
s_lshr_b32 s48, s60, 2
s_lshl_b32 s48, s48, 12
s_add_u32 s48, s48, {FLG}""")
    out = ["st", "st"] + ["g"] * 4
    def wait_for(pred):
        idx = [i for i, x in enumerate(out) if pred(x)]
        if not idx:
            return
        a(f"s_waitcnt vmcnt({len(out) - 1 - max(idx)})")
        del out[:max(idx) + 1]
    reg = {n: RING + 4 * n for n in range(NFR)}
    Lw = a.label("k2poll"); Lw2 = a.label("k2polld")
    nxt = NFR
    def ready(i):
        busy = {reg[n] for n in range(9 * (i + 1), 54)}
        free = [RING + 4 * n for n in range(NFR) if RING + 4 * n not in busy]
        WR = free[:10]; AR = free[10:18]; XW = [free[18 + k // 2] + 2 * (k % 2) for k in range(5)]; XA = [free[21 + k // 2] + 2 * (k % 2) for k in range(4)]
        tmp = PTMP
        a(f"""v_add_u32 v{tmp}, s76, v{VL}
v_lshlrev_b32 v{tmp+1}, 3, v0
v_add_u32 v{tmp+2}, s76, v{tmp+1}""")
        for j in range(5):
            for k in range(2):
                a(f"ds_read_b128 {vr(WR[2*j+k],4)}, v{tmp} offset:{2048*j + 1024*k}")
        for j in range(5):
            a(f"ds_read_b64 {vr(XW[j],2)}, v{tmp+2} offset:{10240 + 512*j}")
        return WR, AR, XW, XA, tmp
    def await_o(WR, AR, XW, XA, tmp):
        a(f"""s_lshl_b32 s52, s75, 11
s_add_u32 s52, s52, s71
s_lshl_b32 s49, s75, 9
s_add_u32 s49, s49, s71
s_add_u32 s49, s49, {FX}
s_lshl_b32 s53, s75, 2
s_lshl_b32 s53, 15, s53
v_mov_b32 v{tmp}, {RDY}
s_mov_b32 s55, 0
s_cmp_lg_u32 s3, {lead2}
s_cbranch_scc1 {Lw2}""")
        def poll(L, Lx, want):
            a(f"""s_mov_b32 exec_hi, 0
{L}:
buffer_load_dword v1, v2, s[20:23], s48 offen sc1
s_add_u32 s55, s55, 1
s_waitcnt vmcnt(0)
v_cmp_eq_u32 vcc, {"s77" if fused else "1"}, v1
s_cmp_ge_u32 s55, {1 if nosync else 0x40000}
s_cselect_b32 s54, -1, vcc_lo
v_mov_b32 v1, s54
ds_write_b32 v{tmp}, v1
s_and_b32 s56, s54, {want}
s_cmp_lg_u32 s56, {want}
s_cbranch_scc1 {L}
s_mov_b32 exec_hi, -1""")
        poll(Lw, None, "s53")
        a(f"""s_branch {Lw2}x
{Lw2}:
ds_read_b32 v1, v{tmp}
s_add_u32 s55, s55, 1
s_waitcnt lgkmcnt(0)
v_readfirstlane_b32 s54, v1
s_cmp_ge_u32 s55, 0x400000
s_cselect_b32 s54, -1, s54
s_and_b32 s54, s54, s53
s_cmp_eq_u32 s54, s53
s_cbranch_scc1 {Lw2}x
s_sleep 1
s_branch {Lw2}
{Lw2}x:""")
        tm(1)
        for mi in range(4):
            for k in range(2):
                a(f"buffer_load_dwordx4 {vr(AR[4*k+mi],4)}, v{VL}, s[20:23], s52 offen offset:{1024*k} sc1")
            a(f"buffer_load_dwordx2 {vr(XA[mi],2)}, v{tmp+1}, s[20:23], s49 offen sc1")
            if mi < 3:
                a(f"s_add_u32 s52, s52, {FB}\ns_add_u32 s49, s49, {FB}")
            out.extend(["o"] * 3)
        Lr = a.label("k2rest")
        a(f"""s_cmp_lg_u32 s3, {lead2}
s_cbranch_scc1 {Lr}x
s_cmp_eq_u32 s54, -1
s_cbranch_scc1 {Lr}x""")
        poll(Lr, None, "-1")
        a(f"{Lr}x:")
    def publish(i):
        for pos, br in ((pubo, "s_cbranch_scc0"), (puby, "s_cbranch_scc1")):
            if i != pos:
                continue
            n = len(out) - 1 - max(k for k, x in enumerate(out) if x == "st")
            assert pos < 4
            Lnp = a.label("k2np")
            a(f"""s_cmp_lt_u32 s3, 4
{br} {Lnp}
s_waitcnt vmcnt({n})
s_mov_b64 exec, 1
v_mov_b32 v{PT}, {RDY}
v_mov_b32 v{PT+1}, 1
ds_add_rtn_u32 v{PT+1}, v{PT}, v{PT+1} offset:4
s_waitcnt lgkmcnt(0)
v_readfirstlane_b32 s54, v{PT+1}
s_cmp_lg_u32 s54, 7
s_cbranch_scc1 {Lnp}y
buffer_store_dword v1, v2, s[20:23], s51 offen sc1
{Lnp}y:
s_mov_b64 exec, -1""")
            tm(6)
            a(f"{Lnp}:")
    PT = PTMP
    publish(-1)
    for i in range(6):
        wait_for(lambda x: x[0] == "f" and x != "fl" and x[1] < 9 * i + 9)
        for mi in range(4):
            for ni in range(5):
                d = GA + 4 * (mi * 5 + ni)
                c = "0" if i == 0 else vr(d, 4)
                a(f"{MM} {vr(d,4)}, {vr(reg[9*i+4+ni],4)}, {vr(reg[9*i+mi],4)}, {c}")
        for n in range(9 * i, 9 * i + 9):
            if nxt < 54:
                reg[nxt] = reg[n]
                a(bfrag(nxt, reg[nxt]))
                out.append(("f", nxt)); nxt += 1
        publish(i)
        if i == 3:
            WR, AR, XW, XA, tmp = ready(i)
    if stamp.TODEBUG is None and (tailmarks or not stamp.REAL): stamp.mark(a, 4)
    wait_for(lambda x: x == "g")
    a("s_nop 4")
    for mi in range(4):
        a(f"v_sub_f32 v{tmp+2}, 1.0, v{4+mi}\nv_mov_b32 v{tmp+3}, v{tmp+2}")
        for q in range(10):
            d = GA + 20 * mi + 2 * q
            a(f"v_pk_mul_f32 {vr(d,2)}, {vr(d,2)}, {vr(tmp+2,2)}")
    await_o(WR, AR, XW, XA, tmp)
    assert out[-12:] == ["o"] * 12
    SS = 12864
    used = set(WR) | set(AR) | {x & ~3 for x in XW} | {x & ~3 for x in XA} | {tmp}
    spare = [RING + 4 * n for n in range(NFR) if RING + 4 * n not in used]
    SELR = spare[:4]
    a(f"""s_and_b32 s48, s3, 3
s_lshl_b32 s48, s48, 6
s_add_u32 s48, s48, s76
v_lshlrev_b32 v4, 3, v0
v_add_u32 v4, s48, v4
v_bfe_u32 v5, v0, 2, 2
v_mul_u32_u24 v5, {SS}, v5
v_lshrrev_b32 v6, 4, v0
v_lshl_add_u32 v5, v6, 5, v5
v_and_b32 v7, 3, v0
v_lshl_add_u32 v5, v7, 3, v5
s_lshl_b32 s48, s3, 9
v_add_u32 v5, s48, v5
v_and_b32 v7, 15, v0
v_sub_u32 v6, v7, v6
v_mov_b32 v1, 0x3f803f80
v_mov_b32 v2, 0""")
    for p in range(4):
        a(f"v_cmp_eq_u32 vcc, {4*p}, v6\ns_nop 1\nv_cndmask_b32 v{SELR[p]}, v2, v1, vcc")
        for q in range(1, 4):
            a(f"v_mov_b32 v{SELR[p]+q}, v{SELR[p]}")
    def flush(g):
        d = GA + 4 * g
        a(f"v_cvt_pk_bf16_f32 v{d}, v{d}, v{d+1}\nv_cvt_pk_bf16_f32 v{d+1}, v{d+2}, v{d+3}\nds_write_b64 v4, {vr(d,2)} offset:{512*g}")
    for mi in range(4):
        for k in range(3):
            a(f"s_waitcnt vmcnt({11 - 3*mi - k})" + (" lgkmcnt(0)" if mi + k == 0 else ""))
            for ni in range(5):
                d = GA + 4 * (mi * 5 + ni)
                if k < 2:
                    a(f"{MM} {vr(d,4)}, {vr(WR[2*ni+k],4)}, {vr(AR[4*k+mi],4)}, {vr(d,4)}")
                else:
                    a(f"{MX} {vr(d,4)}, {vr(XW[ni],2)}, {vr(XA[mi],2)}, {vr(d,4)}")
                if mi and k == 1:
                    flush(5 * (mi - 1) + ni)
    tm(2)
    a("s_nop 3")
    for ni in range(5):
        flush(15 + ni)
    tm(5)
    a(f"""v_lshrrev_b32 v1, 4, v0
v_lshl_add_u32 v1, v7, 2, v1
v_and_b32 v2, 15, v1
v_mul_u32_u24 v2, 1280, v2
v_lshrrev_b32 v1, 4, v1
v_lshl_add_u32 v7, v1, 3, v2
s_mul_i32 s48, s60, {64*1280}
s_mul_i32 s49, s61, 160
s_add_u32 s48, s48, s49""")
    for u in range(3):
        a(f"""s_add_u32 s49, s3, {8*u}
s_mul_i32 s50, s49, 205
s_lshr_b32 s50, s50, 10
s_mul_i32 s{52+u}, s50, {16*1280 - 5*32}
s_lshl_b32 s49, s49, 5
s_add_u32 s{52+u}, s{52+u}, s49
s_add_u32 s{52+u}, s{52+u}, s48""")
    a("s_waitcnt lgkmcnt(0)\ns_barrier")
    Lo = a.label("k2o")
    RB = spare[4]
    assert spare[4:16] == [RB + 4 * i for i in range(12)] or True
    RBs = spare[4:16]
    def rd(u):
        for p in range(4):
            for hf in range(2):
                a(f"ds_read_b64_tr_b16 {vr(RBs[4*u+p] + 2*hf, 2)}, v5 offset:{4096*u + 128*p + 51200*hf}")
    def mm(u, pend):
        for p in range(4):
            a(f"s_waitcnt lgkmcnt({min(15, pend + 6 - 2*p)})")
            c = "0" if p == 0 else vr(GA + 4 * u, 4)
            a(f"{MM} {vr(GA+4*u,4)}, {vr(RBs[4*u+p],4)}, {vr(SELR[p],4)}, {c}")
    def fin(u):
        r = GA + 4 * u
        a(f"v_cvt_pk_bf16_f32 v{r}, v{r}, v{r+1}")
        a(f"v_cvt_pk_bf16_f32 v{r+1}, v{r+2}, v{r+3}")
        a(f"buffer_store_dwordx2 {vr(r,2)}, v7, s[24:27], s{52+u} offen {st_out}")
    rd(0); rd(1)
    mm(0, 8)
    a(f"s_cmp_ge_u32 s3, 4\ns_cbranch_scc1 {Lo}")
    rd(2)
    mm(1, 8)
    a("s_nop 1")
    fin(0)
    mm(2, 0)
    fin(1)
    a("s_nop 4")
    fin(2)
    stamp.flush(a, 0 if fused else 1, 4 if not stamp.ENABLED else 7, 0, drain=False)
    a("s_endpgm")
    a(f"{Lo}:")
    mm(1, 0)
    fin(0)
    a("s_nop 4")
    fin(1)
    stamp.flush(a, 0 if fused else 1, 4 if not stamp.ENABLED else 7, 0, drain=False)
    a("s_endpgm")
    NM = 48
    Lp1 = a.label("k2p1"); Lp2 = a.label("k2p2")
    a(f"""{Lfb}:
v_bfe_u32 v85, v1, 2, 2
v_xor_b32 v85, v85, v2
v_lshlrev_b32 v85, 4, v85
v_lshl_add_u32 v{VA}, v1, 6, v85
v_add_u32 v{VA}, 1280, v{VA}
v_xor_b32 v{VA2}, 32, v{VA}
v_and_b32 v{VB}, 7, v1
v_lshlrev_b32 v{VB}, 4, v{VB}
v_and_b32 v85, 8, v1
v_add_u32 v{VB}, v85, v{VB}
v_and_b32 v85, 16, v1
v_lshl_add_u32 v{VB}, v85, 3, v{VB}
v_lshl_add_u32 v{VK}, v2, 8, v{VB}
v_add_u32 v{VB}, 1024, v{VB}
s_add_u32 s46, s43, {KV}
s_mov_b32 s37, 0
v_mov_b32 v85, 0xff7fffff
{Lp1}:
buffer_load_dwordx2 {vr(K16,2)}, v{VK}, s[20:23], s46 offen {LD}
buffer_load_dwordx2 {vr(K16+2,2)}, v{VK}, s[20:23], s46 offen offset:512 {LD}
buffer_load_dwordx2 {vr(K8,2)}, v{VB}, s[20:23], s46 offen {LD}
s_waitcnt vmcnt(0)
{M16} {vr(S[0],16)}, {vr(K16,4)}, {vr(Q16,4)}, 0
{M8} {vr(S[0],16)}, {vr(K8,2)}, {vr(Q8,2)}, {vr(S[0],16)}
s_nop 7
s_nop 7""")
    for i in range(8):
        a(f"v_max3_f32 v85, v85, v{S[0]+2*i}, v{S[0]+2*i+1}")
    a(f"""s_add_u32 s46, s46, {TILE}
s_add_u32 s37, s37, 1
s_cmp_lt_u32 s37, 64
s_cbranch_scc1 {Lp1}
v_mov_b32 v86, v85
s_nop 1
v_permlane32_swap_b32 v85, v86
s_nop 1
v_max_f32 v85, v85, v86""")
    for i in range(16):
        a(f"v_sub_f32 v{NM+i}, 0, v85")
        a(f"v_mov_b32 v{O+i}, 0")
    a(f"""s_add_u32 s46, s43, {KV}
s_mov_b32 s37, 0
{Lp2}:
buffer_load_dwordx2 {vr(K16,2)}, v{VK}, s[20:23], s46 offen {LD}
buffer_load_dwordx2 {vr(K16+2,2)}, v{VK}, s[20:23], s46 offen offset:512 {LD}
buffer_load_dwordx2 {vr(K8,2)}, v{VB}, s[20:23], s46 offen {LD}
s_mov_b64 exec, s[30:31]
buffer_load_dwordx4 {vr(V0,4)}, v{VA}, s[20:23], s46 offen {LD}
buffer_load_dwordx4 {vr(V1,4)}, v{VA2}, s[20:23], s46 offen {LD}
s_mov_b64 exec, -1
s_waitcnt vmcnt(0)
{M16} {vr(S[0],16)}, {vr(K16,4)}, {vr(Q16,4)}, {vr(NM,16)}
{M8} {vr(S[0],16)}, {vr(K8,2)}, {vr(Q8,2)}, {vr(S[0],16)}
s_nop 7
s_nop 7""")
    for i in range(16):
        a(f"v_exp_f32 v{S[0]+i}, v{S[0]+i}")
    a("s_nop 0")
    for i in range(8):
        a(f"v_cvt_pk_bf16_f32 v{P+i}, v{S[0]+2*i}, v{S[0]+2*i+1}")
    a(f"""s_nop 1
{M16} {vr(O,16)}, {vr(V0,4)}, {vr(P,4)}, {vr(O,16)}
{M16} {vr(O,16)}, {vr(V1,4)}, {vr(P+4,4)}, {vr(O,16)}
s_add_u32 s46, s46, {TILE}
s_add_u32 s37, s37, 1
s_cmp_lt_u32 s37, 64
s_cbranch_scc1 {Lp2}
s_nop 7
s_nop 7
v_mov_b32 v{T}, v{O+8}
v_mov_b32 v{T+1}, v{O+8}
v_lshrrev_b32 v{T+4}, 4, v1
v_mul_u32_u24 v{T+4}, {FB}, v{T+4}
v_and_b32 v{T+5}, 15, v1
v_lshl_add_u32 v{T+6}, v{T+5}, 3, v{T+4}
v_lshl_add_u32 v{T+4}, v{T+5}, 4, v{T+4}
v_lshl_add_u32 v{T+7}, v2, 8, v{T+4}
v_permlane32_swap_b32 v{T}, v{T+1}
s_nop 1
s_branch {Lfin}
{Lend}:
s_endpgm
code_end:""")
    kernel_desc(a, name, 256, 102 if stamp.ENABLED else 96)
```

```python
from common import *
STAMP = WS_END + 0x100000
ENABLED = False
TODEBUG = None
HOLD = None
REAL = False

def mark(a, i, real=False):
    if not ENABLED: return
    a(f"{'s_memrealtime' if REAL else 's_memtime'} s[{80+2*i}:{81+2*i}]")
    if real:
        r = 96 if i == 0 else 98
        a(f"s_memrealtime s[{r}:{r+1}]")

def init(a):
    if not ENABLED: return
    for i in range(80, 100):
        a(f"s_mov_b32 s{i}, 0")
    a("v_lshrrev_b32 v1, 6, v0\ns_nop 0\nv_readfirstlane_b32 s100, v1")
    mark(a, 0, True)

def flush(a, kidx, last, vt, drain=True):
    if not ENABLED: return
    if drain:
        mark(a, 7)
        a("s_waitcnt vmcnt(0)")
    mark(a, last, True)
    if HOLD is not None:
        L = a.label("hold")
        a(f"""s_waitcnt lgkmcnt(0)
s_add_u32 s101, s96, {HOLD}
{L}:
s_memrealtime s[98:99]
s_waitcnt lgkmcnt(0)
s_cmp_lt_u32 s98, s101
s_cbranch_scc1 {L}""")
        return
    if TODEBUG is not None:
        L = a.label("dbg")
        a(f"""s_waitcnt lgkmcnt(0)
s_lshl_b32 s101, s2, 4
s_add_u32 s101, s101, s100
s_cmp_lg_u32 s101, {TODEBUG}
s_cbranch_scc1 {L}
s_load_dwordx2 s[6:7], s[0:1], 72
s_mov_b64 exec, 1
v_mov_b32 v{vt+4}, 0
s_waitcnt lgkmcnt(0)""")
        for i in range(1, 8):
            a(f"s_sub_u32 s101, s{80+2*i}, s80\nv_mov_b32 v{vt}, s101\nglobal_store_dword v{vt+4}, v{vt}, s[6:7] offset:{4*i}\ns_nop 2")
        a(f"s_sub_u32 s101, s98, s96\nv_mov_b32 v{vt}, s101\nglobal_store_dword v{vt+4}, v{vt}, s[6:7] offset:32\n{L}:")
        return
    a(f"""s_lshl_b32 s101, s2, 4
s_add_u32 s101, s101, s100
s_lshl_b32 s101, s101, 7
s_add_u32 s101, s101, {STAMP + kidx * 256 * 16 * 128}
s_mov_b64 exec, 1
s_waitcnt lgkmcnt(0)
v_mov_b32 v{vt+4}, s101""")
    for q in range(5):
        for j in range(4):
            a(f"v_mov_b32 v{vt+j}, s{80+4*q+j}")
        a(f"global_store_dwordx4 v{vt+4}, v[{vt}:{vt+3}], s[16:17] offset:{16*q}")
        a("s_nop 2")
```

```python
import sys
from gen import build
F = dict(fused=True, aslist=True, real=True)
V = {
 "fur": dict(**F),
 "osc1": dict(**F, k2=dict(st_out="sc1")),
 "ont": dict(**F, k2=dict(st_out="nt")),
 "osc01": dict(**F, k2=dict(st_out="sc0 sc1")),
 "nolf": dict(**F, k1=dict(ldfirst=False)),
 "noex": dict(**F, k1=dict(earlyx=False)),
 "ft": dict(**F, k2=dict(tailmarks=True)),
 "b7": dict(**F, k2=dict(b1=7, prios={0:3, 5:2, 7:1, 8:3, 13:2, 15:1, 16:3, 34:2, 39:1, 41:0, 42:3, 56:2, 61:1, 63:0})),
 "slp0": dict(**F, k2=dict(slp=0)),
}
for n in sys.argv[1:]:
    build(f"d_{n}.s", stamp=True, **V[n])
    build(f"t_{n}.s", stamp=False, **V[n])
```

```python
import sys
from common import *
import k1, k2f, stamp

HEADER = open("cdna_kernels/" + NAME + ".s.ref").read().split("; Override launch")[0]

DOC = '''; ------------------------------------------------------------------------------------------------
; ------------------------------------------------------------------------------------------------'''

def build(path, **opt):
    stamp.ENABLED = opt.get('stamp', False) or opt.get('todebug') is not None or opt.get('hold') is not None
    stamp.HOLD = opt.get('hold')
    stamp.REAL = opt.get('real', False)
    stamp.TODEBUG = opt.get('todebug')
    a = Asm()
    a.lines.append(HEADER.rstrip())
    L = {"1": f"; @launch kernel=k1_proj_kernel grid=(256,1,1) block=(512,1,1) lds={k1.K1_LDS}",
         "2": f"; @launch kernel=k2_attn_kernel grid=(256,1,1) block=(512,1,1) lds={k2f.K2_LDS}",
         "a": f"; @launch kernel=k0_tlb_kernel grid=(256,1,1) block=(64,1,1) lds=0",
         "b": f"; @launch kernel=k0_all_kernel grid=(256,1,1) block=(256,1,1) lds=0",
         "n": f"; @launch kernel=k0_nop_kernel grid=(256,1,1) block=(256,1,1) lds=0"}
    if opt.get("fused"):
        kn = NAME + "_kernel"
        a.lines.append(f"; @launch {'kernel=' + kn + ' ' if opt.get('aslist') else ''}grid=(256,1,1) block=(512,1,1) lds={k2f.K2_LDS}")
        a.lines.append(DOC)
        a('.amdgcn_target "amdgcn-amd-amdhsa--gfx950"')
        k1.gen_k1(a, kn, fused=True, **opt.get("k1", {}))
        k2f.gen_k2(a, kn, fused=True, **opt.get("k2", {}))
        open(path, "w").write(a.text())
        return
    order = opt.get("order", "12")
    for c in order:
        a.lines.append(L[c])
    a('.amdgcn_target "amdgcn-amd-amdhsa--gfx950"')
    k1.gen_k1(a, "k1_proj_kernel", **opt.get("k1", {}))
    k2f.gen_k2(a, "k2_attn_kernel", **opt.get("k2", {}))
    if "n" in order:
        kernel_head(a, "k0_nop_kernel")
        a("s_endpgm")
        kernel_desc(a, "k0_nop_kernel", 8, 16)
    sizes = [(0, 2621440), (8, 2457600), (16, 819200), (32, 1966080), (40, 1966080), (48, 1966080), (80, WS_END)]
    if "a" in order:
        kernel_head(a, "k0_tlb_kernel")
        a("v_lshlrev_b32 v1, 16, v0")
        for i, (off, sz) in enumerate(sizes):
            a(f"s_load_dwordx2 s[4:5], s[0:1], {off}\ns_waitcnt lgkmcnt(0)")
            srd(a, 8, 4, sz)
            for k in range((sz + (1 << 22) - 1) >> 22):
                a(f"s_mov_b32 s12, {k << 22}\nbuffer_load_dword v{2+i}, v1, s[8:11], s12 offen")
        a("s_waitcnt vmcnt(0)\ns_endpgm")
        kernel_desc(a, "k0_tlb_kernel", 16, 16)
    if "b" in order:
        kernel_head(a, "k0_all_kernel")
        a("s_lshl_b32 s3, s2, 8\nv_add_u32 v1, s3, v0\nv_lshlrev_b32 v1, 7, v1")
        for i, (off, sz) in enumerate(sizes[:6]):
            a(f"s_load_dwordx2 s[4:5], s[0:1], {off}\ns_waitcnt lgkmcnt(0)")
            srd(a, 8, 4, sz)
            a(f"buffer_load_dword v{2+i}, v1, s[8:11], 0 offen")
        a("s_waitcnt vmcnt(0)\ns_endpgm")
        kernel_desc(a, "k0_all_kernel", 16, 16)
    open(path, "w").write(a.text())

if __name__ == "__main__":
    build("cdna_kernels/" + NAME + ".s", fused=True)
    build("main_list.s", fused=True, aslist=True)
    build("diag.s", stamp=True, fused=True, aslist=True, real=True)
```

```python
from common import *
import stamp

SLOT = 53248
NSLOT = 3
K1_LDS = NSLOT * SLOT
NST = 10
XR = 8
WR = 48
ACC = 80
VXB, VXS, VX = 240, 241, 242
VWB, VW = 243, 247
VEP = 251
NV = 256
MM = "v_mfma_f32_16x16x32_bf16"

def acc(mi, nj):
    return ACC + (mi * 4 + nj) * 4

UNR = [1]
HALF0 = [True]
def hout(mi):
    return 240 if mi == 0 else ACC + 16 * mi

def xoffs(mi, perm):
    return 4096 * (mi >> 1) + 1024 * (mi & 1)

def xread(mi, perm):
    return f"ds_read_b128 {vr(XR+4*mi,4)}, v{VX} offset:{xoffs(mi, perm)}"

def wreads(buf, ks):
    r = []
    for nj in range(4):
        for hf in range(2):
            r.append(f"ds_read_b64_tr_b16 {vr(WR+16*buf+4*nj+2*hf,2)}, v{VW+nj} offset:{8192*ks + 1024*hf}")
    return r

def step(a, buf, swap, ks_next, pend, pre=None, mid=None):
    w = [(("w", i), r) for i, r in enumerate(wreads(1 - buf, ks_next))]
    x = [(("x", mi), xread(mi, swap)) for mi in range(10)]
    sched = {}
    if mid is None:
        for mi in range(10): sched[(mi, 3)] = x[mi]
        for i in range(8): sched[(i, 1)] = w[i]
    else:
        sched[(1, 3)] = x[0]; sched[(2, 1)] = x[1]
        for mi in range(2, 10): sched[(mi, 3)] = x[mi]
        for i in range(7): sched[(3 + i, 1)] = w[i]
        sched[(9, 0)] = w[6]; sched[(8, 1)] = w[5]; sched[(9, 1)] = w[7]
    pre = list(pre or [])
    old = list(pend); new = []
    def need(pred):
        idx = [i for i, t in enumerate(old) if pred(t)]
        if idx:
            n = len(old) - 1 - max(idx) + len(new)
            k = min(n, 15)
            a(f"s_waitcnt lgkmcnt({k})")
            keep = max(0, k - len(new))
            del old[:len(old) - min(keep, len(old))]
    for mi in range(10):
        for nj in range(4):
            if mi == 0:
                need(lambda t: t == ("w", 2 * nj) or t == ("w", 2 * nj + 1) or t == ("x", 0))
            elif nj == 0 and ("x", mi) in old:
                need(lambda t: t[0] == "x" and t[1] <= min(mi + 3, 9))
            W = vr(WR + 16 * buf + 4 * nj, 4); X = vr(XR + 4 * mi, 4)
            A, B = (X, W) if swap else (W, X)
            c = vr(acc(mi, nj), 4)
            a(f"{MM} {c}, {A}, {B}, {c}")
            if mi == 1 and nj == 3 and mid is not None:
                assert not pre
                mid(); old = []
            if (mi, nj) in sched:
                t, r = sched[(mi, nj)]
                a(r); new.append(t)
            elif pre:
                a(pre.pop(0))
                if pre and mid is not None:
                    a(pre.pop(0))
    return new

def mainloop(a, swap):
    L = a.label("k1loop"); Lnb = a.label("k1nb")
    a(f"""s_mov_b32 s36, 0
s_mov_b32 s37, 0
v_mov_b32 v{VXS}, v{VXB}
v_mov_b32 v{VX}, v{VXB}""")
    for nj in range(4):
        a(f"v_mov_b32 v{VW+nj}, v{VWB+nj}")
    stamp.mark(a, 1)
    a("s_barrier")
    stamp.mark(a, 4 if stamp.TODEBUG is not None else 2)
    pre = [f"s_add_u32 s36, s36, {SLOT}", f"s_cmp_eq_u32 s36, {SLOT*NSLOT}", "s_cselect_b32 s36, 0, s36", "s_add_u32 s37, s37, 1",
           f"v_add_u32 v{VXS}, s36, v{VXB}", f"v_add_u32 v{VX}, s36, v{VXB}"] + [f"v_add_u32 v{VW+nj}, s36, v{VWB+nj}" for nj in range(4)] + [f"s_cmp_eq_u32 s37, {NST}"]
    def mid():
        a(f"""s_waitcnt lgkmcnt(0)
s_cbranch_scc1 {Lnb}
s_barrier
{Lnb}:""")
    scratch = Asm()
    entry = step(scratch, 1, swap, 0, [], pre, lambda: None)
    rd = {("x", mi): xread(mi, swap) for mi in range(10)}
    rd.update({("w", i): r for i, r in enumerate(wreads(0, 0))})
    for t in entry:
        a(rd[t])
    if HALF0[0]:
        bar = lambda: a("s_waitcnt lgkmcnt(0)\ns_barrier")
        p = step(a, 0, swap, 1, entry, [f"v_xor_b32 v{VX}, 64, v{VXS}"], bar)
        p = step(a, 1, swap, 0, p, pre, bar)
        assert p == entry and (NST - 1) % UNR[0] == 0
    a(".p2align 5")
    a(f"{L}:")
    for u in range(UNR[0]):
        if u < UNR[0] - 1:
            m = lambda: a("s_waitcnt lgkmcnt(0)\ns_barrier")
        else:
            m = mid
        p = step(a, 0, swap, 1, entry, [f"v_xor_b32 v{VX}, 64, v{VXS}"])
        p = step(a, 1, swap, 0, p, pre, m)
        assert p == entry, p
    a(f"""s_cmp_lg_u32 s37, {NST}
s_cbranch_scc1 {L}
s_waitcnt lgkmcnt(0)
s_nop 7""")
    stamp.mark(a, 5 if stamp.TODEBUG is not None else 4 if stamp.REAL else 3)

def gen_k1(a, name, rot_enable="xcdw", nvar=3, nt_x="", nt_w="", st_h="sc1", st_qk="sc1", st_v="sc1", st_w="sc1", wb=False, codepf=True, fast=True, delay=None, mix=True, pfd=0, fused=False, defer=False, unr=3, vperm=False, clus=False, ldfirst=True, earlyx=True, half0=True, spf=0, spf0=2, gudelay=0, help=0, helpx=False):
    HALF0[0] = half0
    UNR[0] = unr
    def done():
        if fused:
            a(f"s_branch {name}_join")
        else:
            stamp.flush(a, 0, 4, 0)
            a("s_endpgm")
    kernel_head(a, name)
    Lend = f"{name}_end"
    a(f"s_cmp_ge_u32 s2, 256\ns_cbranch_scc1 {Lend}")
    stamp.init(a)
    if delay:
        mask, ticks = delay
        a(f"""s_and_b32 s40, s2, 7
s_lshr_b32 s41, {mask}, s40
s_bitcmp1_b32 s41, 0
s_cbranch_scc0 {name}_nodelay
s_memrealtime s[42:43]
s_waitcnt lgkmcnt(0)
s_add_u32 s44, s42, {ticks}
{name}_dl:
s_memrealtime s[42:43]
s_waitcnt lgkmcnt(0)
s_cmp_lt_u32 s42, s44
s_cbranch_scc1 {name}_dl
{name}_nodelay:""")
    a(f"""s_load_dwordx4 s[4:7], s[0:1], 0
s_load_dwordx2 s[8:9], s[0:1], 16
s_load_dwordx4 s[12:15], s[0:1], 32
s_load_dwordx2 s[10:11], s[0:1], 48
s_load_dwordx2 s[16:17], s[0:1], 80
s_load_dwordx2 s[78:79], s[0:1], 56
v_lshrrev_b32 v1, 6, v0
v_and_b32 v0, 63, v0
v_readfirstlane_b32 s3, v1
s_and_b32 s40, s2, 7
s_mov_b32 s55, s3
s_lshl_b32 s40, s40, 5
s_lshr_b32 s41, s2, 3
s_add_u32 s38, s40, s41
s_cmp_eq_u32 s38, 255
s_cbranch_scc1 {name}_idle
s_mul_i32 s42, s38, 1009
s_lshr_b32 s42, s42, 16
s_mul_i32 s43, s42, 65
s_sub_u32 s43, s38, s43
s_mul_i32 s18, s43, 205
s_lshr_b32 s18, s18, 10
s_mul_i32 s39, s18, 5
s_sub_u32 s39, s43, s39
s_cmp_lt_u32 s38, 235
s_cbranch_scc1 {name}_dec
s_sub_u32 s43, s38, 235
s_lshr_b32 s18, s43, 2
s_add_u32 s18, s18, 8
s_and_b32 s39, s43, 3
{name}_dec:
s_mul_i32 s19, s42, 3
s_lshl_b32 s43, s42, 1
s_add_u32 s43, s43, 9
s_cmp_lt_u32 s39, 3
s_cselect_b32 s19, s19, s43
s_add_u32 s19, s19, s39
s_cmp_ge_u32 s3, 4
{"s_cbranch_scc0 " + name + "_compute" if ldfirst else "s_cbranch_scc1 " + name + "_loader"}""")
    mark_c = len(a.lines)
    a(f"{name}_compute:")
    if codepf:
        a(f"""s_cmp_lg_u32 s3, 0
s_cbranch_scc1 {name}_nocp
s_getpc_b64 s[56:57]
{name}_pc:
s_sub_u32 s56, s56, {name}_pc-{name}
s_subb_u32 s57, s57, 0
s_mul_i32 s58, s41, 1536
v_lshlrev_b32 v1, 7, v0
v_add_u32 v1, s58, v1
s_mov_b32 s59, code_end-{name}
v_cmp_gt_u32 vcc, s59, v1
s_and_b64 exec, vcc, 0xfff
s_cbranch_execz {name}_cpx
global_load_dword v255, v1, s[56:57]
{name}_cpx:
s_mov_b64 exec, -1
{name}_nocp:""")
    if fused:
        a(f"""s_lshl_b32 s56, s2, 3
s_add_u32 s56, s56, s3
s_cmp_lg_u32 s56, 1
s_cbranch_scc1 {name}_notag
s_load_dwordx2 s[56:57], s[0:1], 72
s_memrealtime s[58:59]
v_mov_b32 v1, 0
s_waitcnt lgkmcnt(0)
s_or_b32 s58, s58, 1
v_mov_b32 v2, s58
s_mov_b64 exec, 1
global_store_dword v1, v2, s[56:57] sc1
s_mov_b64 exec, -1
{name}_notag:""")
    a(f"""v_and_b32 v1, 15, v0
v_lshrrev_b32 v2, 4, v0
v_bfe_u32 v3, v0, 2, 2
v_lshl_add_u32 v6, v2, 3, v3
v_lshlrev_b32 v6, 8, v6
v_and_b32 v4, 3, v0
v_lshl_add_u32 v6, v4, 3, v6
v_and_b32 v5, 1, v2
v_lshl_add_u32 v5, v5, 2, v3
v_lshrrev_b32 v3, 1, v1
v_xor_b32 v3, v3, v2
v_lshlrev_b32 v3, 4, v3
v_and_b32 v4, 8, v1
v_lshl_add_u32 v3, v1, 7, v3
v_lshl_add_u32 v{VXB}, v4, 7, v3
s_mul_i32 s46, s18, 5
s_mov_b32 s47, 5
s_cmp_eq_u32 s18, 12
s_cmov_b32 s47, 4
s_cmp_eq_u32 s19, 19
s_cbranch_scc1 {name}_spec
s_lshl_b32 s45, s3, 1
v_xor_b32 v5, s45, v5
v_lshl_add_u32 v6, v5, 5, v6
v_add_u32 v{VWB}, 20480, v6
v_xor_b32 v{VWB+1}, 32, v{VWB}
v_add_u32 v{VWB+2}, 16384, v{VWB}
v_add_u32 v{VWB+3}, 16384, v{VWB+1}
s_sub_u32 s48, s19, 17
s_lshl_b32 s48, s48, 8
s_lshl_b32 s49, s3, 5
s_add_u32 s48, s48, s49
s_movk_i32 s49, 128
s_branch {name}_cont
{name}_spec:
s_and_b32 s45, s3, 1
s_lshl_b32 s48, s45, 6
s_add_u32 s48, s48, 512
s_lshl_b32 s45, s45, 2
v_xor_b32 v5, s45, v5
v_lshl_add_u32 v6, v5, 5, v6
v_add_u32 v{VWB}, 32768, v6
v_xor_b32 v{VWB+1}, 32, v{VWB}
v_xor_b32 v{VWB+2}, 64, v{VWB}
v_xor_b32 v{VWB+3}, 96, v{VWB}
s_lshr_b32 s45, s3, 1
s_lshl_b32 s46, s18, 3
s_lshl_b32 s49, s45, 2
s_add_u32 s46, s46, s49
s_lshl_b32 s45, s45, 14
v_add_u32 v{VXB}, s45, v{VXB}
s_mov_b32 s47, 4
s_mov_b32 s49, 32
{name}_cont:""")
    for i in range(4):
        a(f"v_mov_b32 v{VEP+i}, 0")
    for i in range(160):
        a(f"v_mov_b32 v{ACC+i}, 0")
    a("s_waitcnt lgkmcnt(0)")
    srd(a, 20, 16, WS_END)
    a(f"""s_cmp_ge_u32 s19, 17
s_cbranch_scc1 {name}_v
s_cmp_ge_u32 s19, 12
s_cbranch_scc1 {name}_qk""")
    a(f"{name}_loop:")
    mainloop(a, False)
    a(f"s_cmp_ge_u32 s19, 12\ns_cbranch_scc1 {name}_qk_epi")
    CA, CB, ONE = 8, 10, 12
    A_ = -2.0 * 0.7978845608028654 * 1.4426950408889634 * 0.044715
    B_ = -2.0 * 0.7978845608028654 * 1.4426950408889634
    a(f"""v_mov_b32 v{CA}, {hex(f2u(A_))}
v_mov_b32 v{CA+1}, {hex(f2u(A_))}
v_mov_b32 v{CB}, {hex(f2u(B_))}
v_mov_b32 v{CB+1}, {hex(f2u(B_))}
v_mov_b32 v{ONE}, 1.0
v_mov_b32 v{ONE+1}, 1.0
v_lshrrev_b32 v14, 3, v1
v_mul_u32_u24 v14, {FB - 128}, v14
v_lshl_add_u32 v14, v1, 4, v14
v_lshl_add_u32 v14, v2, 8, v14
s_lshl_b32 s48, s19, {1 if mix else 2}
s_add_u32 s48, s48, s3
s_cmp_ge_u32 s3, 2
s_cselect_b32 s50, {22 if mix else 0}, 0
s_add_u32 s48, s48, s50
s_lshl_b32 s48, s48, 10
s_mul_i32 s49, s46, {2*FB}
s_add_u32 s49, s49, s48
s_add_u32 s49, s49, {AF + FH}""")
    Ldone = f"{name}_gu_done"
    T0 = 16
    cnt = 0
    for mi in range(10):
        if mi == 8:
            a(f"s_cmp_eq_u32 s47, 4\ns_cbranch_scc1 {Ldone}")
        b = acc(mi, 0)
        pairs = [(b + 0, b + 8), (b + 2, b + 10), (b + 4, b + 12), (b + 6, b + 14)]
        out = hout(mi) if defer else 32 + 4 * (mi % 2)
        for q, (g, u) in enumerate(pairs):
            a(f"v_pk_mul_f32 {vr(T0+2*q,2)}, {vr(g,2)}, {vr(g,2)}")
        for q, (g, u) in enumerate(pairs):
            a(f"v_pk_fma_f32 {vr(T0+2*q,2)}, {vr(T0+2*q,2)}, {vr(CA,2)}, {vr(CB,2)}")
        for q, (g, u) in enumerate(pairs):
            a(f"v_pk_mul_f32 {vr(T0+2*q,2)}, {vr(T0+2*q,2)}, {vr(g,2)}")
        for q in range(8):
            a(f"v_exp_f32 v{T0+q}, v{T0+q}")
        for q, (g, u) in enumerate(pairs):
            a(f"v_pk_mul_f32 {vr(24+2*q,2)}, {vr(g,2)}, {vr(u,2)}")
        for q, (g, u) in enumerate(pairs):
            a(f"v_pk_add_f32 {vr(T0+2*q,2)}, {vr(T0+2*q,2)}, {vr(ONE,2)}")
        for q in range(8):
            a(f"v_rcp_f32 v{T0+q}, v{T0+q}")
        a("s_nop 0")
        for q in range(4):
            a(f"v_pk_mul_f32 {vr(24+2*q,2)}, {vr(24+2*q,2)}, {vr(T0+2*q,2)}")
        for q in range(4):
            a(f"v_cvt_pk_bf16_f32 v{out+q}, v{24+2*q}, v{25+2*q}")
        if not defer:
            a(f"buffer_store_dwordx4 {vr(out,4)}, v14, s[20:23], s49 offen offset:{128*(mi&1)} {st_h}")
            if mi & 1 and mi < 9:
                a(f"s_add_u32 s49, s49, {2*FB}")
    a(f"{Ldone}:")
    if defer == "post":
        a(f"""v_mov_b32 v244, v14
s_mov_b32 s79, s49
s_add_u32 s78, s49, {8*FB}
s_cmp_eq_u32 s47, 4
s_cselect_b32 s78, 0x80000000, s78
s_branch {name}_join2""")
    elif defer:
        for mi in range(10):
            if mi == 8:
                a(f"s_cmp_eq_u32 s47, 4\ns_cbranch_scc1 {name}_join2")
            a(f"buffer_store_dwordx4 {vr(hout(mi),4)}, v14, s[20:23], s49 offen offset:{128*(mi&1)} {st_h}")
            if mi & 1 and mi < 9:
                a(f"s_add_u32 s49, s49, {2*FB}")
        a(f"s_branch {name}_join")
    done()
    a(f"{name}_qk:")
    c = 1.4426950408889634 * (20.0 ** -0.5)
    a(f"""s_sub_u32 s48, s19, 12
s_lshl_b32 s48, s48, 6
s_lshl_b32 s49, s3, 3
s_add_u32 s48, s48, s49
s_add_u32 s49, s48, 32""")
    for sd in range(2):
        a(f"""s_cmp_lt_u32 s{48+sd}, 160
s_cselect_b32 s{52+sd}, {hex(f2u(c))}, 1.0
s_cselect_b32 s{50+sd}, {QF}, {KV}
s_cselect_b32 s54, 0, 160
s_sub_u32 s{48+sd}, s{48+sd}, s54""")
    a(f"""v_lshlrev_b32 v11, 4, v1
s_mov_b32 s54, {HEADB}""")
    for sd in range(2):
        for j in range(2):
            if True:
                e = VEP + sd * 2 + j
                a(f"""v_add_u32 v8, s{48+sd}, v2
v_add_u32 v8, {4*j}, v8
v_mul_u32_u24 v9, 205, v8
v_lshrrev_b32 v9, 10, v9
v_mul_u32_u24 v12, 5, v9
v_sub_u32 v8, v8, v12
v_lshrrev_b32 v12, 1, v8
v_and_b32 v13, 1, v8
v_lshl_add_u32 v13, v13, 1, v12
v_cmp_eq_u32 vcc, 4, v8
v_mad_u32_u24 v9, v9, s54, v11
v_add_u32 v9, s{50+sd}, v9
v_cndmask_b32 v12, v13, v8, vcc
v_lshlrev_b32 v12, 8, v12
v_add_u32 v{e}, v9, v12""")
    a(f"s_branch {name}_loop\n{name}_qk_epi:")
    a(f"""v_mov_b32 v8, s52
v_mov_b32 v9, s52
v_mov_b32 v10, s53
v_mov_b32 v11, s53
s_mul_i32 s49, s46, {TILE}""")
    Ldq = f"{name}_qk_done"
    for p in range(5):
        if p == 4:
            a(f"s_cmp_eq_u32 s47, 4\ns_cbranch_scc1 {Ldq}")
        for nj in range(4):
            sc = 8 + 2 * (nj >> 1)
            r, r2 = acc(2 * p, nj), acc(2 * p + 1, nj)
            for x in (r, r + 2, r2, r2 + 2):
                a(f"v_pk_mul_f32 {vr(x,2)}, {vr(x,2)}, {vr(sc,2)}")
            a(f"""v_cvt_pk_bf16_f32 v{r}, v{r}, v{r+1}
v_cvt_pk_bf16_f32 v{r+1}, v{r+2}, v{r+3}
v_cvt_pk_bf16_f32 v{r+2}, v{r2}, v{r2+1}
v_cvt_pk_bf16_f32 v{r+3}, v{r2+2}, v{r2+3}
buffer_store_dwordx4 {vr(r,4)}, v{VEP+nj}, s[20:23], s49 offen {st_qk}""")
        if p < 4:
            a(f"s_add_u32 s49, s49, {TILE}")
    a(f"{Ldq}:")
    if wb:
        stamp.mark(a, 5)
        a(f"s_waitcnt vmcnt(0)\ns_cmp_lg_u32 s3, 0\ns_cbranch_scc1 {Ldq}x\nbuffer_wbl2 sc1\n{Ldq}x:")
    done()
    a(f"{name}_v:")
    a(f"s_mov_b32 s54, {HEADB}")
    if vperm:
        a("v_lshrrev_b32 v13, 2, v0\nv_and_b32 v14, 3, v0")
    col, pc = ("v13", "v14") if vperm else ("v1", "v2")
    for nj in range(4):
        a(f"""v_add_u32 v8, s48, {col}
v_add_u32 v8, {16*(nj&1)}, v8""")
        if nj >= 2:
            a("v_add_u32 v8, s49, v8")
        a(f"""v_mul_u32_u24 v11, 205, v8
v_lshrrev_b32 v11, 12, v11
v_mul_u32_u24 v12, 20, v11
v_sub_u32 v10, v8, v12
v_bfe_u32 v12, v10, 2, 2
v_xor_b32 v12, v12, {pc}
v_lshlrev_b32 v12, 4, v12
v_lshl_add_u32 v12, v10, 6, v12
v_mad_u32_u24 v11, v11, s54, v12
v_add_u32 v{VEP+nj}, {KV + 1280}, v11""")
    mainloop(a, True)
    a(f"s_mul_i32 s49, s46, {TILE}")
    Ldv = f"{name}_v_done"
    if vperm:
        a(f"""s_mul_i32 s50, s3, 20480
s_add_u32 s50, s50, {SLOT + 20480}
v_lshrrev_b32 v8, 2, v1
v_add_u32 v8, v8, v2
v_and_b32 v8, 3, v8
v_lshlrev_b32 v8, 4, v8
v_lshl_add_u32 v8, v1, 6, v8
v_add_u32 v8, s50, v8
v_lshrrev_b32 v9, 4, v0
v_add_u32 v9, v9, v0
v_and_b32 v9, 3, v9
v_and_b32 v10, 60, v0
v_add_u32 v9, v9, v10
v_lshlrev_b32 v9, 4, v9
v_add_u32 v9, s50, v9""")
    def cvt(p, nj):
        r, r2 = acc(2 * p, nj), acc(2 * p + 1, nj)
        a(f"""v_cvt_pk_bf16_f32 v{r}, v{r}, v{r+1}
v_cvt_pk_bf16_f32 v{r+1}, v{r+2}, v{r+3}
v_cvt_pk_bf16_f32 v{r+2}, v{r2}, v{r2+1}
v_cvt_pk_bf16_f32 v{r+3}, v{r2+2}, v{r2+3}""")
    for p in range(5):
        if p == 4:
            a(f"s_cmp_eq_u32 s47, 4\ns_cbranch_scc1 {Ldv}")
        for nj in range(4):
            cvt(p, nj)
            r = acc(2 * p, nj)
            if vperm:
                a(f"ds_write_b128 v8, {vr(r,4)} offset:{1024*(4*p+nj)}")
            else:
                a(f"buffer_store_dwordx4 {vr(r,4)}, v{VEP+nj}, s[20:23], s49 offen {st_v}")
        if vperm:
            for nj in range(4):
                a(f"ds_read_b128 {vr(acc(2*p+1, nj),4)}, v9 offset:{1024*(4*p+nj)}")
            for nj in range(4):
                a(f"s_waitcnt lgkmcnt({3-nj})")
                a(f"buffer_store_dwordx4 {vr(acc(2*p+1, nj),4)}, v{VEP+nj}, s[20:23], s49 offen {st_v}")
        if p < 4:
            a(f"s_add_u32 s49, s49, {TILE}")
    a(f"{Ldv}:")
    if wb:
        stamp.mark(a, 5)
        a(f"s_waitcnt vmcnt(0)\ns_cmp_lg_u32 s3, 0\ns_cbranch_scc1 {Ldv}x\nbuffer_wbl2 sc1\n{Ldv}x:")
    done()
    mark_l = len(a.lines)
    a(f"{name}_loader:")
    if fast:
        a("s_setprio 3")
    if gudelay:
        a(f"""s_cmp_ge_u32 s19, 12
s_cbranch_scc1 {name}_nogd
s_memrealtime s[42:43]
s_waitcnt lgkmcnt(0)
s_add_u32 s44, s42, {gudelay}
{name}_gd:
s_memrealtime s[42:43]
s_waitcnt lgkmcnt(0)
s_cmp_lt_u32 s42, s44
s_cbranch_scc1 {name}_gd
{name}_nogd:""")
    a(f"""s_sub_u32 s3, s3, 4
v_lshrrev_b32 v10, 3, v0
v_mul_u32_u24 v10, 1280, v10
v_and_b32 v11, 7, v0
v_lshrrev_b32 v12, 4, v0""")
    def wcols():
        a(f"""s_lshr_b32 s54, s3, 1
s_movk_i32 s56, 3072
s_lshl_b32 s57, s19, {7 if mix else 8}
s_cmp_ge_u32 s19, 12
s_cmovk_i32 s56, 3840
s_sub_u32 s58, s19, 12
s_lshl_b32 s58, s58, 9
s_lshl_b32 s60, s54, 8
s_add_u32 s58, s58, s60
s_cmp_ge_u32 s19, 12
s_cselect_b32 s57, s58, s57
s_cmp_eq_u32 s19, 19
s_cmovk_i32 s57, 3584
v_and_b32 v13, 15, v0
v_mul_u32_u24 v14, s56, v12
v_add_u32 v14, s57, v14
s_lshl_b32 s63, s56, 6""")
    if rot_enable == "xcd":
        a("s_and_b32 s59, s2, 7\ns_mul_i32 s59, s59, 5\ns_lshr_b32 s59, s59, 2")
    elif rot_enable == "xcdw":
        a(f"s_and_b32 s59, s2, 1\ns_mul_i32 s59, s59, {4 if clus else 5}")
    elif rot_enable == "xcdx":
        a("s_bfe_u32 s59, s2, 0x20001\ns_mul_i32 s59, s59, 5\ns_lshr_b32 s59, s59, 1")
    elif rot_enable:
        a(f"""s_lshl_b32 s59, s39, 1
s_mul_i32 s60, s18, 3
s_add_u32 s59, s59, s60
s_mul_i32 s60, s59, 205
s_lshr_b32 s60, s60, 11
s_mul_i32 s60, s60, 10
s_sub_u32 s59, s59, s60""")
    else:
        a("s_mov_b32 s59, 0")
    a(f"""s_mov_b32 s36, 0
s_cmp_eq_u32 s19, 19
s_cbranch_scc1 {name}_ldspec""")
    def srdw():
        a(f"""s_cmp_eq_u32 s54, 0
s_cselect_b32 s24, s12, s14
s_cselect_b32 s25, s13, s15
s_mov_b32 s26, {640*3072}
s_cmp_ge_u32 s19, 12
s_cselect_b32 s24, s6, s24
s_cselect_b32 s25, s7, s25
s_cmov_b32 s26, {640*3840}
s_and_b32 s25, s25, 0xffff
s_mov_b32 s27, 0x20000""")
    def srds():
        a("s_waitcnt lgkmcnt(0)")
        srd(a, 20, 4, 2048 * 1280)
        srdw()
    def xoff(dst, e, top):
        a(f"""v_add_u32 v15, {top}, v12
v_xor_b32 v15, v15, v11
v_lshl_add_u32 v15, v15, 4, v10
v_add_u32 v{dst}, {e*8*1280 - 1024*(e%4)}, v15""")
    def woffs(regular):
        a(f"""s_lshl_b32 s60, s56, 2
s_sub_u32 s60, s60, 1024""")
        if regular:
            a(f"""s_cmp_lt_u32 s19, 12
s_cselect_b32 s69, {1536 - 128 if mix else 0}, 0
s_cselect_b32 s68, 3, 0""")
        for hf in range(2):
            d = 6 + 2 * hf
            a(f"v_lshlrev_b32 v15, 1, v12\nv_xor_b32 v15, v15, v13")
            if hf:
                a("v_xor_b32 v15, 8, v15")
            if regular:
                a(f"""v_lshrrev_b32 v16, 1, v15
v_xor_b32 v16, v16, v15
v_and_b32 v16, 1, v16
v_mul_u32_u24 v16, s68, v16
v_xor_b32 v15, v15, v16""")
            a(f"v_lshl_add_u32 v{d}, v15, 4, v14")
            if regular:
                a(f"v_lshrrev_b32 v15, 3, v15\nv_mad_u32_u24 v{d}, v15, s69, v{d}")
            if hf:
                a(f"v_add_u32 v{d}, s60, v{d}\nv_add_u32 v{d}, s60, v{d}")
            a(f"v_add_u32 v{d+1}, s60, v{d}")
    def advance():
        a(f"""s_add_u32 s59, s59, 1
s_cmp_eq_u32 s59, {NST}
s_cselect_b32 s59, 0, s59
s_add_u32 s36, s36, {SLOT}
s_cmp_eq_u32 s36, {SLOT*NSLOT}
s_cselect_b32 s36, 0, s36""")
    def tail(nper):
        Ll = a.label("k1ld")
        return Ll
    a("s_mul_i32 s61, s3, 5")
    for e in range(5):
        a(f"""s_add_u32 s60, s61, {e}
s_and_b32 s60, s60, 2
s_lshl_b32 s60, s60, 1""")
        xoff(1 + e, e, "s60")
    a(f"""s_mul_i32 s61, s18, 160
s_mul_i32 s60, s3, 40
s_add_u32 s61, s61, s60
s_mul_i32 s61, s61, 1280
s_mul_i32 s65, s3, 5120
s_lshl_b32 s62, s59, 7
s_add_u32 s62, s62, s61
s_mov_b32 m0, s65""")
    stamp.mark(a, 1)
    a("s_waitcnt lgkmcnt(0)")
    stamp.mark(a, 2)
    srd(a, 20, 4, 2048 * 1280)
    if earlyx:
        a(f"""buffer_load_dwordx4 v1, s[20:23], s62 offen {nt_x} lds
buffer_load_dwordx4 v2, s[20:23], s62 offen offset:1024 {nt_x} lds
buffer_load_dwordx4 v3, s[20:23], s62 offen offset:2048 {nt_x} lds
buffer_load_dwordx4 v4, s[20:23], s62 offen offset:3072 {nt_x} lds
s_add_u32 m0, m0, 4096
s_nop 0
buffer_load_dwordx4 v5, s[20:23], s62 offen {nt_x} lds""")
    wcols()
    woffs(True)
    a(f"""s_and_b32 s60, s3, 1
s_lshl_b32 s67, s60, 4
s_mul_i32 s67, s67, s56
s_lshl_b32 s66, s54, 14
s_lshl_b32 s60, s60, 12
s_add_u32 s66, s66, s60
s_add_u32 s66, s66, 20480
s_lshl_b32 s68, s56, 5""")
    srdw()
    def mk_issue_reg(var):
        X = f"""s_add_u32 m0, s36, s65
s_nop 0
buffer_load_dwordx4 v1, s[20:23], s62 offen {nt_x} lds
buffer_load_dwordx4 v2, s[20:23], s62 offen offset:1024 {nt_x} lds
buffer_load_dwordx4 v3, s[20:23], s62 offen offset:2048 {nt_x} lds
buffer_load_dwordx4 v4, s[20:23], s62 offen offset:3072 {nt_x} lds
s_add_u32 m0, m0, 4096
s_nop 0
buffer_load_dwordx4 v5, s[20:23], s62 offen {nt_x} lds"""
        def W(so, lo):
            return f"""s_add_u32 m0, s36, {lo}
s_nop 0
buffer_load_dwordx4 v6, s[24:27], {so} offen {nt_w} lds
buffer_load_dwordx4 v7, s[24:27], {so} offen offset:1024 {nt_w} lds
buffer_load_dwordx4 v8, s[24:27], {so} offen offset:2048 {nt_w} lds
buffer_load_dwordx4 v9, s[24:27], {so} offen offset:3072 {nt_w} lds"""
        blocks = [X, W("s64", "s66"), W("s69", "s73")]
        blocks = blocks[var:] + blocks[:var]
        lines = "\n".join(blocks).split("\n")
        k = [i for i, l in enumerate(lines) if l.startswith("buffer_load")][3]
        def issue(part=None):
            if part == "w":
                a(f"""s_mul_i32 s64, s59, s63
s_add_u32 s64, s64, s67
s_add_u32 s69, s64, s68""")
                a(W("s64", "s66")); a(W("s69", "s73"))
                advance()
                return
            if part in (None, 0):
                a(f"""s_lshl_b32 s62, s59, 7
s_add_u32 s62, s62, s61
s_mul_i32 s64, s59, s63
s_add_u32 s64, s64, s67
s_add_u32 s69, s64, s68""")
                a("\n".join(lines[:k+1]))
            if part in (None, 1):
                a("\n".join(lines[k+1:]))
            if part == 0: return
            advance()
        return issue
    def clus_setup():
        a(f"""s_mul_i32 s70, s18, 37
s_lshr_b32 s70, s70, 8
s_mul_i32 s70, s70, 7
s_sub_u32 s70, s18, s70
v_lshrrev_b32 v17, 1, v0
v_mul_u32_u24 v17, 7, v17
v_add_u32 v17, s70, v17
v_cmp_gt_u32 vcc, 0x80, v17
v_mul_u32_u24 v17, s56, v17
v_add_u32 v17, s57, v17
s_movk_i32 s70, 128
s_movk_i32 s71, 256
s_cmp_lt_u32 s19, 12
s_cmovk_i32 s70, {1536 if mix else 128}
s_cmovk_i32 s71, 0
s_cselect_b32 s28, s12, s6
s_cselect_b32 s29, s13, s7
s_and_b32 s29, s29, 0xffff
s_mov_b32 s30, s26
s_mov_b32 s31, 0x20000
v_and_b32 v18, 1, v0
v_mad_u32_u24 v17, v18, s70, v17
v_subrev_u32 v20, s71, v17
v_mov_b32 v18, -1
v_cndmask_b32 v17, v18, v17, vcc
v_cndmask_b32 v20, v18, v20, vcc
v_and_b32 v18, 31, v0
v_mul_u32_u24 v18, 1280, v18
v_lshrrev_b32 v19, 5, v0
v_lshl_add_u32 v18, v19, 7, v18
s_lshl_b32 s70, s39, 5
s_mul_i32 s71, s18, 160
s_add_u32 s70, s70, s71
s_mul_i32 s70, s70, 1280""")
    def cluster(ahead):
        L = a.label("clus")
        a(f"""s_cmp_lg_u32 s3, 3
s_cbranch_scc1 {L}
s_add_u32 s71, s59, {ahead}
s_cmp_ge_u32 s71, {NST}
s_cselect_b32 s72, {NST}, 0
s_sub_u32 s71, s71, s72
s_lshl_b32 s72, s71, 7
s_add_u32 s72, s72, s70
s_mul_i32 s71, s71, s63
buffer_load_dword v19, v18, s[20:23], s72 offen
buffer_load_dword v19, v17, s[24:27], s71 offen
buffer_load_dword v19, v20, s[28:31], s71 offen
{L}:""")
    def spf_setup():
        a(f"""s_lshl_b32 s40, s38, 2
s_add_u32 s40, s40, s3
s_mul_i32 s41, s40, 2560
s_add_u32 s41, s41, {128*spf0}
s_add_u32 s44, s4, s41
s_addc_u32 s45, s5, 0
s_min_u32 s41, s40, 959
s_mul_i32 s42, s41, 4370
s_lshr_b32 s42, s42, 16
s_mul_i32 s43, s42, 15
s_sub_u32 s43, s41, s43
s_add_u32 s42, s42, {64*spf0}
s_mul_i32 s42, s42, 3840
s_lshl_b32 s43, s43, 8
s_add_u32 s42, s42, s43
s_add_u32 s46, s6, s42
s_addc_u32 s47, s7, 0
s_and_b32 s41, s40, 511
s_lshr_b32 s42, s41, 3
s_and_b32 s43, s41, 7
s_add_u32 s42, s42, {64*spf0}
s_mul_i32 s42, s42, 3072
s_mul_i32 s43, s43, 384
s_add_u32 s42, s42, s43
s_cmp_lt_u32 s40, 512
s_cselect_b32 s48, s12, s14
s_cselect_b32 s49, s13, s15
s_add_u32 s48, s48, s42
s_addc_u32 s49, s49, 0""")
    def spf_issue():
        a(f"""s_load_dword s50, s[44:45], 0
s_load_dword s50, s[44:45], 1280
s_load_dword s50, s[46:47], 0
s_load_dword s50, s[46:47], 128
s_load_dword s50, s[48:49], 0
s_load_dword s50, s[48:49], 128
s_load_dword s50, s[48:49], 256
s_add_u32 s44, s44, 128
s_addc_u32 s45, s45, 0
s_add_u32 s46, s46, {64*3840}
s_addc_u32 s47, s47, 0
s_add_u32 s48, s48, {64*3072}
s_addc_u32 s49, s49, 0""")
    def help_setup():
        a(f"""s_mul_i32 s70, s18, 37
s_lshr_b32 s70, s70, 8
s_mul_i32 s70, s70, 7
s_sub_u32 s70, s18, s70
s_mul_i32 s71, s39, 7
s_add_u32 s70, s70, s71
v_lshrrev_b32 v17, 3, v0
v_mul_u32_u24 v17, 21, v17
v_add_u32 v17, s70, v17
v_cmp_gt_u32 vcc, 64, v17
v_mul_u32_u24 v17, 3840, v17
v_and_b32 v18, 7, v0
v_lshl_add_u32 v17, v18, 7, v17
s_lshl_b32 s70, s42, 10
v_add_u32 v17, s70, v17
v_mov_b32 v18, -1
v_cndmask_b32 v17, v18, v17, vcc
s_mov_b32 s28, s6
s_and_b32 s29, s7, 0xffff
s_mov_b32 s30, {640*3840}
s_mov_b32 s31, 0x20000
s_lshl_b32 s72, s19, 2
s_add_u32 s72, s72, s3
s_and_b32 s70, s72, 3
s_cmp_lt_u32 s72, 48
s_cselect_b32 s72, s70, 0""")
        if helpx:
            a(f"""s_mul_i32 s70, s39, 54
v_add_u32 v20, s70, v0
v_cmp_gt_u32 vcc, 54, v0
v_mul_u32_u24 v20, 1280, v20
v_cndmask_b32 v20, v18, v20, vcc
s_mul_i32 s70, s18, {160*1280}""")
    def help_issue(ahead):
        L = a.label("help")
        a(f"""s_cmp_lt_u32 s72, {2 if helpx else 3}
s_cbranch_scc1 {L}
s_add_u32 s71, s59, {ahead}
s_cmp_ge_u32 s71, {NST}
s_cselect_b32 s74, {NST}, 0
s_sub_u32 s71, s71, s74""")
        if helpx:
            a(f"""s_cmp_eq_u32 s72, 3
s_cbranch_scc1 {L}w
s_lshl_b32 s71, s71, 7
s_add_u32 s71, s71, s70
buffer_load_dword v19, v20, s[20:23], s71 offen
s_branch {L}
{L}w:""")
        a(f"""s_mul_i32 s71, s71, {64*3840}
buffer_load_dword v19, v17, s[28:31], s71 offen
{L}:""")
    def ring(issue, nper):
        Ll = a.label("k1ld"); Ls = a.label("k1sk")
        issue("w" if earlyx and nper == 13 else None)
        stamp.mark(a, 3)
        if spf:
            spf_setup()
            for i in range(2):
                spf_issue()
        hp = help and nper == 13
        if hp:
            help_setup()
            for i in range(help):
                help_issue(i)
        issue(0)
        stamp.mark(a, 5)
        if half0:
            a(f"s_waitcnt vmcnt({NFIRST + (4 if nper == 13 and earlyx else 0)})\ns_barrier")
        a(f"s_waitcnt vmcnt({NFIRST})")
        stamp.mark(a, 6)
        a("s_barrier")
        issue(1)
        if hp:
            help_issue(help - 1)
        if spf:
            for i in range(spf - 1):
                spf_issue()
        a(f"s_mov_b32 s37, 1\n{Ll}:")
        if spf:
            a(f"s_cmp_ge_u32 s37, {NST - spf0 - spf}\ns_cbranch_scc1 {Ls}")
            spf_issue()
            a(f"{Ls}:")
        issue()
        if hp:
            a(f"s_cmp_ge_u32 s37, {NST - 1 - help}\ns_cbranch_scc1 {Ls}h")
            help_issue(help - 1)
            a(f"{Ls}h:")
        a(f"""s_waitcnt vmcnt({nper})
s_barrier
s_add_u32 s37, s37, 1
s_cmp_lt_u32 s37, {NST-1}
s_cbranch_scc1 {Ll}
s_waitcnt lgkmcnt(0)
s_branch {name}_tjob""")
    NFIRST = 4
    a("s_add_u32 s73, s66, 8192")
    if nvar > 1:
        a(f"""s_add_u32 s60, s39, s18
s_mul_i32 s72, s60, {(256 + nvar - 1)//nvar}
s_lshr_b32 s72, s72, 8
s_mul_i32 s72, s72, {nvar}
s_sub_u32 s60, s60, s72""")
        for v in range(1, nvar):
            a(f"s_cmp_eq_u32 s60, {v}\ns_cbranch_scc1 {name}_var{v}")
    ring(mk_issue_reg(0), 13)
    for v in range(1, nvar):
        a(f"{name}_var{v}:")
        ring(mk_issue_reg(v if nvar == 3 else 2 * v - 0 if False else (v if nvar == 3 else 1)), 13)
    a(f"{name}_ldspec:")
    for e in range(4):
        xoff(1 + e, e, 4 * (e >> 1))
    wcols()
    woffs(False)
    a(f"""s_lshl_b32 s61, s18, 8
s_lshl_b32 s60, s3, 6
s_add_u32 s61, s61, s60
s_mul_i32 s61, s61, 1280
s_lshl_b32 s65, s3, 13
s_lshl_b32 s67, s3, 4
s_mul_i32 s67, s67, s56
s_lshl_b32 s66, s3, 12
s_add_u32 s66, s66, 32768""")
    srds()
    def issue_spec(part=None):
        if part in (None, 0):
            a(f"""s_lshl_b32 s62, s59, 7
s_add_u32 s62, s62, s61
s_mul_i32 s64, s59, s63
s_add_u32 m0, s36, s65
s_add_u32 s64, s64, s67
buffer_load_dwordx4 v1, s[20:23], s62 offen {nt_x} lds
buffer_load_dwordx4 v2, s[20:23], s62 offen offset:1024 {nt_x} lds
buffer_load_dwordx4 v3, s[20:23], s62 offen offset:2048 {nt_x} lds
buffer_load_dwordx4 v4, s[20:23], s62 offen offset:3072 {nt_x} lds""")
        if part in (None, 1):
            a(f"""s_add_u32 m0, m0, 4096
s_add_u32 s69, s62, {32*1280}
buffer_load_dwordx4 v1, s[20:23], s69 offen {nt_x} lds
buffer_load_dwordx4 v2, s[20:23], s69 offen offset:1024 {nt_x} lds
buffer_load_dwordx4 v3, s[20:23], s69 offen offset:2048 {nt_x} lds
buffer_load_dwordx4 v4, s[20:23], s69 offen offset:3072 {nt_x} lds
s_add_u32 m0, s36, s66
s_nop 0
buffer_load_dwordx4 v6, s[24:27], s64 offen {nt_w} lds
buffer_load_dwordx4 v7, s[24:27], s64 offen offset:1024 {nt_w} lds
buffer_load_dwordx4 v8, s[24:27], s64 offen offset:2048 {nt_w} lds
buffer_load_dwordx4 v9, s[24:27], s64 offen offset:3072 {nt_w} lds""")
        if part == 0: return
        advance()
    ring(issue_spec, 12)
    a(f"""{name}_tjob:
s_mul_i32 s70, s3, 255
s_add_u32 s70, s70, s38
s_cmp_lt_u32 s70, 544
s_cselect_b32 s71, s70, 0
s_lshr_b32 s72, s71, 2
s_and_b32 s73, s71, 3
s_mul_i32 s76, s72, 20
s_sub_u32 s74, s72, 32
s_mul_i32 s74, s74, 80
s_add_u32 s74, s74, 16
s_cmp_ge_u32 s72, 32
s_cselect_b32 s76, s74, s76
s_cselect_b32 s77, 16, 0
s_sub_u32 s74, s72, 40
s_lshl_b32 s74, s74, 4
s_cmp_lt_u32 s72, 40
s_cselect_b32 s28, s8, s10
s_cselect_b32 s29, s9, s11
s_mov_b32 s30, {1536*1280}
s_cmov_b32 s30, {640*1280}
s_cselect_b32 s74, s76, s74
s_cselect_b32 s77, s77, 0
s_and_b32 s29, s29, 0xffff
s_mov_b32 s31, 0x20000
s_mul_i32 s74, s74, 1280
s_mul_i32 s75, s73, 320
s_add_u32 s74, s74, s75
s_mul_i32 s75, s3, 5120
s_add_u32 s75, s75, {SLOT}""")
    for i in range(5):
        a(f"""v_add_u32 v8, {64*i}, v0
v_mul_u32_u24 v9, 205, v8
v_lshrrev_b32 v9, 12, v9
v_mul_u32_u24 v10, 20, v9
v_sub_u32 v8, v8, v10
v_lshrrev_b32 v10, 2, v9
v_mad_u32_u24 v9, v10, s77, v9
v_mul_u32_u24 v9, 1280, v9
v_lshl_add_u32 v11, v8, 4, v9
s_add_u32 m0, s75, {1024*i}
s_nop 0
buffer_load_dwordx4 v11, s[28:31], s74 offen lds""")
    srd(a, 32, 16, WS_END)
    a(f"""s_waitcnt vmcnt(5)
s_barrier""")
    a(f"""s_cmp_ge_u32 s70, 544
s_cbranch_scc1 {name}_gate""")
    a(f"""v_lshrrev_b32 v1, 5, v0
v_bfe_u32 v2, v0, 2, 2
v_lshl_add_u32 v1, v1, 2, v2
v_mul_u32_u24 v1, 320, v1
v_bfe_u32 v2, v0, 4, 1
v_lshl_add_u32 v1, v2, 5, v1
v_and_b32 v2, 3, v0
v_lshl_add_u32 v1, v2, 3, v1
v_add_u32 v1, s75, v1
v_bfe_u32 v2, v0, 4, 1
v_mul_u32_u24 v2, {FB}, v2
v_and_b32 v3, 15, v0
v_lshrrev_b32 v4, 5, v0
v_lshl_add_u32 v3, v4, 4, v3
v_lshl_add_u32 v4, v3, 3, v2
v_lshl_add_u32 v2, v3, 4, v2
s_mul_i32 s76, s73, {10*FB}
s_add_u32 s76, s76, {WF}
s_lshl_b32 s74, s72, 9
s_add_u32 s76, s76, s74
s_waitcnt vmcnt(0)""")
    for j in range(5):
        a(f"ds_read_b64_tr_b16 {vr(16+4*j,2)}, v1 offset:{64*j}")
        a(f"ds_read_b64_tr_b16 {vr(18+4*j,2)}, v1 offset:{64*j+8*320}")
    a(f"s_cmp_eq_u32 s77, 16\ns_cbranch_scc1 {name}_tx")
    for j in range(5):
        a(f"s_waitcnt lgkmcnt({8-2*j})")
        a(f"buffer_store_dwordx4 {vr(16+4*j,4)}, v2, s[32:35], s76 offen {st_w}")
        if j < 4:
            a(f"s_add_u32 s76, s76, {2*FB}")
    a(f"s_branch {name}_gate\n{name}_tx:")
    for j in range(5):
        a(f"s_waitcnt lgkmcnt({8-2*j})")
        a(f"buffer_store_dwordx2 {vr(16+4*j,2)}, v4, s[32:35], s76 offen {st_w}")
        a(f"buffer_store_dwordx2 {vr(18+4*j,2)}, v4, s[32:35], s76 offen offset:256 {st_w}")
        if j < 4:
            a(f"s_add_u32 s76, s76, {2*FB}")
    a(f"s_branch {name}_gate")
    a(f"""{name}_idle:
s_mov_b32 s19, 0
s_waitcnt lgkmcnt(0)
s_cmp_lt_u32 s3, 4
s_cbranch_scc1 {name + "_join" if fused else Lend}
s_sub_u32 s3, s3, 4
s_waitcnt lgkmcnt(0)""")
    srd(a, 20, 4, 2048 * 1280)
    srd(a, 32, 16, WS_END)
    a(f"{name}_gate:")
    srd(a, 24, 78, 1280)
    a(f"""v_mul_u32_u24 v1, 20, v0
s_lshl_b32 s47, s2, 3
s_lshl_b32 s48, s3, 1
s_add_u32 s47, s47, s48
s_mul_i32 s48, s47, 1280
buffer_load_dwordx4 v[40:43], v1, s[24:27], 0 offen
buffer_load_dword v44, v1, s[24:27], 0 offen offset:16
buffer_load_dwordx4 v[48:51], v1, s[20:23], s48 offen
buffer_load_dword v52, v1, s[20:23], s48 offen offset:16
buffer_load_dwordx4 v[56:59], v1, s[20:23], s48 offen offset:1280
buffer_load_dword v60, v1, s[20:23], s48 offen offset:1296
v_mov_b32 v2, 0
v_mov_b32 v3, 0
v_lshlrev_b32 v4, 2, v0
s_cmp_lg_u32 s3, {99 if fused else 3}
s_cbranch_scc1 {name}_nofl
s_cmp_ge_u32 s2, 8
s_cbranch_scc1 {name}_nofl
s_lshl_b32 s49, s2, 12
s_add_u32 s49, s49, {FLG}
s_mov_b32 exec_hi, 0
buffer_store_dword v2, v4, s[32:35], s49 offen sc1
s_mov_b32 exec_hi, -1
{name}_nofl:
s_waitcnt vmcnt(0)""")
    for i in range(5):
        a(f"v_dot2_f32_bf16 v2, v{48+i}, v{40+i}, v2")
        a(f"v_dot2_f32_bf16 v3, v{56+i}, v{40+i}, v3")
    a("s_nop 3")
    for d in ("row_shr:1 row_mask:0xf bank_mask:0xf bound_ctrl:0", "row_shr:2 row_mask:0xf bank_mask:0xf bound_ctrl:0",
              "row_shr:4 row_mask:0xf bank_mask:0xf bound_ctrl:0", "row_shr:8 row_mask:0xf bank_mask:0xf bound_ctrl:0",
              "row_bcast:15 row_mask:0xa bank_mask:0xf", "row_bcast:31 row_mask:0xc bank_mask:0xf"):
        a(f"v_add_f32_dpp v2, v2, v2 {d}\nv_add_f32_dpp v3, v3, v3 {d}\ns_nop 0")
    a(f"""v_mul_f32 v2, {hex(f2u(-1.4426950408889634))}, v2
v_mul_f32 v3, {hex(f2u(-1.4426950408889634))}, v3
v_exp_f32 v2, v2
v_exp_f32 v3, v3
s_nop 0
v_add_f32 v2, 1.0, v2
v_add_f32 v3, 1.0, v3
v_rcp_f32 v2, v2
v_rcp_f32 v3, v3
s_lshl_b32 s49, s47, 2
s_add_u32 s49, s49, {GV}
v_mov_b32 v4, 0
s_mov_b32 exec_lo, 0
s_mov_b32 exec_hi, 0x80000000
buffer_store_dwordx2 v[2:3], v4, s[32:35], s49 offen sc1""")
    if fused:
        if ldfirst:
            a(f"s_branch {name}_join")
            a.lines[mark_c:] = a.lines[mark_l:] + a.lines[mark_c:mark_l]
        return
    stamp.flush(a, 0, 4, 0)
    a(f"{Lend}:\ns_endpgm")
    kernel_desc(a, name, NV, 102 if stamp.ENABLED else 96)
```

```python
from common import *
import stamp

K2_LDS = HEADB
Q16, Q8 = 4, 8
K16, K8 = 10, 14
V0, V1 = 16, 20
P = 24
S = [32, 48]
O = 64
VA, VB, VG, VK, VA2 = 80, 81, 82, 83, 84
VL = 3
RING = 88
NSL = 7
GA = 8
M16 = "v_mfma_f32_32x32x16_bf16"
M8 = "v_mfma_f32_32x32x8bf16_1k"
U = 8

EXP = set()
def tile(a0, t, base, job0=None, job1=None):
    def a(s):
        if "noexec" in EXP and "exec" in s: return
        if "nods" in EXP and s.startswith("ds_"): return
        if "nowait" in EXP and s.startswith("s_waitcnt"): return
        if "half" in EXP and t % 2 and (s.startswith("ds_") or "exec" in s or s.startswith("s_waitcnt")): return
        if "half" in EXP and s.startswith("s_waitcnt lgkmcnt(1)"): return
        if "half" in EXP and s.startswith("s_waitcnt lgkmcnt(3)"): s = "s_waitcnt lgkmcnt(0)"
        if "kb128" in EXP and s.startswith("ds_read2st64"):
            s = f"ds_read_b128 {vr(K16,4)}, v{VL} offset:{(t + 2 - base) * TILE}"
        a0(s)
    if "nojob" in EXP and t >= 16:
        job0 = job1 = None
    s0, s1 = S[t % 2], S[(t + 1) % 2]
    ko = (t + 2 - base) * TILE
    vo = (t - base) * TILE
    assert ko + 16 < 65536
    def ex(lo, hi):
        for i in range(lo, hi):
            a(f"v_exp_f32 v{s0+i}, v{s0+i}")
    def cv(lo, hi):
        for i in range(lo, hi):
            a(f"v_cvt_pk_bf16_f32 v{P+i}, v{s0+2*i}, v{s0+2*i+1}")
    last = t == 63
    if not last:
        a("s_waitcnt lgkmcnt(3)" if t < 62 else "s_waitcnt lgkmcnt(2)")
        a(f"{M16} {vr(s1,16)}, {vr(K16,4)}, {vr(Q16,4)}, 0")
    if t < 62:
        a(f"ds_read2st64_b64 {vr(K16,4)}, v{VK} offset0:{ko//512} offset1:{ko//512+1}")
    ex(0, 5)
    a("s_waitcnt lgkmcnt(1)" if t < 62 else "s_waitcnt lgkmcnt(0)")
    a(f"{M16} {vr(O,16)}, {vr(V0,4)}, {vr(P,4)}, {vr(O,16)}")
    if job0: job0()
    ex(5, 8)
    cv(0, 4)
    if not last:
        a(f"{M8} {vr(s1,16)}, {vr(K8,2)}, {vr(Q8,2)}, {vr(s1,16)}")
    if t < 62:
        a(f"ds_read_b64 {vr(K8,2)}, v{VB} offset:{ko}")
    ex(8, 13)
    a(f"{M16} {vr(O,16)}, {vr(V1,4)}, {vr(P+4,4)}, {vr(O,16)}")
    a("s_mov_b64 exec, s[30:31]")
    a(f"ds_read_b128 {vr(V0,4)}, v{VA} offset:{vo}")
    a(f"ds_read_b128 {vr(V1,4)}, v{VA2} offset:{vo}")
    a("s_mov_b64 exec, -1")
    if job1: job1()
    ex(13, 16)
    cv(4, 8)

MM = "v_mfma_f32_16x16x32_bf16"
MX = "v_mfma_f32_16x16x16bf16_1k"
STG = 13312
TDEAD = 42
RDY = 8 * STG
PTMP = 252
NFR = 41
LDF = [""]
BB = 62
def bfrag(n, reg):
    i, c = n // 9, n % 9
    if i < 4:
        return f"buffer_load_dwordx4 {vr(reg,4)}, v{VL}, s[20:23], s{BB+c} offen offset:{i*1024} {LDF[0]}"
    return f"s_add_u32 s73, s{BB+c}, {1024*i}\nbuffer_load_dwordx4 {vr(reg,4)}, v{VL}, s[20:23], s73 offen {LDF[0]}"

def gen_k2(a, name, prios={0:3, 2:2, 3:1, 4:3, 11:2, 14:1, 16:3, 35:2, 40:1, 42:0, 43:3, 56:2, 61:1, 63:0}, lead=4, lead2=0, pubo=2, puby=0,
           st_o="sc1", pf0=18, rot=True, slp=2, nosync=False, tailmarks=False, b1=3, fused=True, st_out="", exp=(), defer=False, tall=22, hold1=None, map84=False, yprio=False, npre=NFR, pstep=1, wat=2, wgap=2, warm=0, am=None, ppoll=False, osplit=False, hoist=True):
    EXP.clear(); EXP.update(exp)
    hm = lambda i: stamp.mark(a, 6) if i == 2 else None
    tm = (lambda i: stamp.mark(a, i)) if tailmarks else (lambda i: None)
    Lend = f"{name}_end"
    LD = "sc1"
    LDF[0] = LD
    Lj = a.label("join")
    if defer:
        a(f"""{name}_join:
s_mov_b64 exec, -1
s_mov_b32 s78, 0x80000000
s_mov_b32 s79, 0x80000000
v_mov_b32 v244, 0
{name}_join2:""")
    else:
        a(f"{name}_join:")
    a(f"""s_mov_b64 exec, -1
s_setprio 0
s_mov_b32 s3, s55
s_mov_b32 s74, s19
s_load_dwordx2 s[6:7], s[0:1], 72
s_load_dwordx2 s[4:5], s[0:1], 64
v_mbcnt_lo_u32_b32 v0, -1, 0
v_mbcnt_hi_u32_b32 v0, -1, v0
s_and_b32 s40, s2, 7
s_lshr_b32 s41, s2, 3
s_lshl_b32 s18, s40, 2
s_lshr_b32 s42, s41, 3
s_add_u32 s18, s18, s42
s_mul_i32 s43, s18, {HEADB}
v_lshlrev_b32 v{VL}, 4, v0
s_lshl_b32 s45, s3, 10
s_add_u32 s46, s43, s45
s_add_u32 s46, s46, {KV}
s_mov_b32 m0, s45
s_and_b32 s19, s41, 7
s_lshl_b32 s19, s19, 3
s_add_u32 s19, s19, s3
v_and_b32 v1, 31, v0
v_lshrrev_b32 v2, 5, v0
v_bfe_u32 v85, v1, 2, 2
v_xor_b32 v85, v85, v2
v_lshlrev_b32 v85, 4, v85
v_lshl_add_u32 v{VA}, v1, 6, v85
v_add_u32 v{VA}, 1280, v{VA}
v_xor_b32 v{VA2}, 32, v{VA}
v_and_b32 v{VB}, 7, v1
v_lshlrev_b32 v{VB}, 4, v{VB}
v_and_b32 v85, 8, v1
v_add_u32 v{VB}, v85, v{VB}
v_and_b32 v85, 16, v1
v_lshl_add_u32 v{VB}, v85, 3, v{VB}
v_lshl_add_u32 v{VK}, v2, 8, v{VB}
v_add_u32 v{VB}, 1024, v{VB}
s_mul_i32 s44, s19, {TILE}
s_add_u32 s44, s44, s43
s_lshl_b32 s47, s19, 7
s_add_u32 s47, s47, {GV}
v_lshlrev_b32 v{VG}, 2, v1
v_mov_b32 v37, 0
s_waitcnt lgkmcnt(0)
s_cmp_lg_u32 s3, {lead}
s_cbranch_scc1 {Lj}s
global_load_dword v36, v37, s[6:7] sc1
{Lj}s:""")
    srd(a, 20, 16, WS_END)
    srd(a, 24, 4, 2048 * 1280)
    if map84:
        a("""s_and_b32 s60, s40, 3
s_lshl_b32 s60, s60, 3
s_lshr_b32 s42, s41, 2
s_add_u32 s60, s60, s42
s_and_b32 s61, s40, 4
s_and_b32 s42, s41, 3
s_add_u32 s61, s61, s42
s_lshl_b32 s42, s42, 1""")
    else:
        a("""s_lshl_b32 s60, s40, 2
s_lshr_b32 s42, s41, 3
s_add_u32 s60, s60, s42
s_and_b32 s61, s41, 7
s_mov_b32 s42, s61""")
    a(f"""s_add_u32 s75, s3, {"s42" if rot else "0"}
s_and_b32 s75, s75, 7
s_mul_i32 s48, s75, 6144
s_add_u32 s48, s48, {FH}
s_mul_i32 s71, s60, {4*FB}
s_add_u32 s71, s71, {AF}
s_add_u32 s62, s71, s48
s_mul_i32 s72, s61, {5*FB}
s_add_u32 s72, s72, {WF}
s_add_u32 s66, s72, s48
s_mul_i32 s76, s3, {STG}""")
    for j in range(1, 4):
        a(f"s_add_u32 s{62+j}, s{61+j}, {FB}")
    for j in range(1, 5):
        a(f"s_add_u32 s{66+j}, s{65+j}, {FB}")
    a(f"""s_mov_b32 s30, 0x000fffff
s_mov_b32 s31, 0x000fffff
v_cmp_eq_u32 vcc, 20, v1
v_mov_b32 v85, 0x3f803f80
v_mov_b32 v86, 0
v_cndmask_b32 v{V0}, v86, v85, vcc
v_mov_b32 v{Q8}, 0
v_mov_b32 v{Q8+1}, 0""")
    for i in range(1, 8):
        a(f"v_mov_b32 v{V0+i}, v{V0}")
    for i in range(16):
        a(f"v_mov_b32 v{O+i}, 0")
    for i in range(8):
        a(f"v_mov_b32 v{P+i}, 0")
    if warm:
        a(f"""s_and_b32 s48, s60, 3
v_lshl_add_u32 v252, v0, 2, s48
v_mul_u32_u24 v253, 205, v252
v_lshrrev_b32 v253, 12, v253
v_mul_u32_u24 v254, 20, v253
v_sub_u32 v254, v252, v254
v_cmp_gt_u32 vcc, 100, v252
v_mul_u32_u24 v253, {FB}, v253
v_lshl_add_u32 v252, v254, 7, v253
s_lshl_b32 s48, s75, 11
s_lshl_b32 s49, s75, 9
s_add_u32 s49, s49, {FX - 2048}
v_mov_b32 v253, s48
v_mov_b32 v255, s49
v_cmp_gt_u32 s[48:49], 16, v254
v_mov_b32 v254, -1
s_nop 0
v_cndmask_b32 v253, v255, v253, s[48:49]
v_add_u32 v252, v252, v253
v_cndmask_b32 v252, v254, v252, vcc""")
    stamp.mark(a, 1)
    a("s_waitcnt vmcnt(0)\ns_barrier")
    if stamp.TODEBUG is None: stamp.mark(a, 5)
    a(f"""s_cmp_lg_u32 s3, {lead}
s_cbranch_scc1 {Lj}d
s_mov_b32 s49, 0
{Lj}t:
v_readfirstlane_b32 s77, v36
s_add_u32 s49, s49, 1
s_cmp_ge_u32 s49, 0x40000
s_cbranch_scc1 {Lj}u
s_cmp_lg_u32 s77, 0
s_cbranch_scc1 {Lj}u
global_load_dword v36, v37, s[6:7] sc1
s_waitcnt vmcnt(0)
s_branch {Lj}t
{Lj}u:
v_mov_b32 v34, s77
s_lshl_b32 s48, s2, 2
s_add_u32 s48, s48, {FALL}
s_mov_b32 s50, {FQKV}
v_lshlrev_b32 v33, 11, v0
s_mov_b64 exec, 1
s_cmp_lt_u32 s74, 12
s_cbranch_scc1 {Lj}n
v_mov_b32 v35, 1
global_atomic_add v35, v37, v35, s[6:7] offset:128 sc0 sc1
s_waitcnt vmcnt(0)
v_readfirstlane_b32 s49, v35
s_cmp_lg_u32 s49, 98
s_cbranch_scc1 {Lj}n
s_mov_b64 exec, 0xffff
buffer_store_dword v34, v33, s[20:23], s50 offen sc1
s_mov_b64 exec, 1
global_store_dword v37, v37, s[6:7] offset:128 sc1
{Lj}n:
{'' if defer else 'buffer_store_dword v34, v37, s[20:23], s48 offen sc1'}
s_and_b32 s48, s2, 15
s_lshl_b32 s48, s48, 11
s_add_u32 s48, s48, {FQKV}
s_mov_b32 s49, 0
{Lj}:
buffer_load_dword v33, v37, s[20:23], s48 offen sc1
s_add_u32 s49, s49, 1
s_waitcnt vmcnt(0)
v_cmp_ne_u32 vcc, s77, v33
s_cmp_ge_u32 s49, 0x40000
s_cbranch_scc1 {Lj}x
s_cbranch_vccnz {Lj}
{Lj}x:
s_mov_b64 exec, -1
{Lj}d:
s_barrier""")
    stamp.mark(a, 2)
    if hold1:
        Lh = a.label("hold1")
        a(f"""s_waitcnt lgkmcnt(0)
s_add_u32 s101, s96, {hold1}
{Lh}:
s_memrealtime s[98:99]
s_waitcnt lgkmcnt(0)
s_cmp_lt_u32 s98, s101
s_cbranch_scc1 {Lh}""")
    a(f"""buffer_load_dwordx4 v{VL}, s[20:23], s46 offen {LD} lds
buffer_load_dwordx2 {vr(Q16,2)}, v{VK}, s[20:23], s44 offen {LD}
buffer_load_dwordx2 {vr(Q16+2,2)}, v{VK}, s[20:23], s44 offen offset:512 {LD}
s_mov_b32 exec_hi, 0
buffer_load_dwordx2 {vr(Q8,2)}, v{VB}, s[20:23], s44 offen {LD}
s_mov_b32 exec_hi, -1""")
    for i in range(3):
        a(f"s_add_u32 m0, m0, 8192\ns_add_u32 s46, s46, 8192\nbuffer_load_dwordx4 v{VL}, s[20:23], s46 offen {LD} lds")
    a(f"""v_lshl_add_u32 v{VB}, v2, 18, v{VB}
s_waitcnt vmcnt({2 if b1 == 3 else 0})
s_barrier""")
    hm(2)
    a(f"""ds_read2st64_b64 {vr(K16,4)}, v{VK} offset0:0 offset1:1
ds_read_b64 {vr(K8,2)}, v{VB}
s_waitcnt lgkmcnt(0)
{M16} {vr(S[0],16)}, {vr(K16,4)}, {vr(Q16,4)}, 0
{M8} {vr(S[0],16)}, {vr(K8,2)}, {vr(Q8,2)}, {vr(S[0],16)}
ds_read2st64_b64 {vr(K16,4)}, v{VK} offset0:5 offset1:6
ds_read_b64 {vr(K8,2)}, v{VB} offset:{TILE}
s_mov_b64 exec, s[30:31]
ds_read_b128 {vr(V0,4)}, v{VA}
ds_read_b128 {vr(V1,4)}, v{VA2}
s_mov_b64 exec, -1
s_nop 7
s_nop 3""")
    def kv():
        a(f"s_add_u32 m0, m0, 8192\ns_add_u32 s46, s46, 8192\nbuffer_load_dwordx4 v{VL}, s[20:23], s46 offen {LD} lds")
    wl = []
    for n in range(NFR, 54):
        i, c = n // 9, n % 9
        wl.append(f"s_add_u32 m0, s76, {1024*(n - NFR)}\ns_add_u32 s73, s{BB+c}, {1024*i}\nbuffer_load_dwordx4 v{VL}, s[20:23], s73 offen {LD} lds")
    pf = [bfrag(n, RING + 4 * n) for n in range(npre)]
    if pstep > 1:
        pf = sum([[x] + [''] * (pstep - 1) for x in pf], [])
    def pub_all():
        Lf = a.label("fall")
        a(f"""s_cmp_lg_u32 s3, {lead}
s_cbranch_scc1 {Lf}
s_lshl_b32 s48, s2, 2
s_add_u32 s48, s48, {FALL}
v_mov_b32 v85, s77
v_mov_b32 v86, 0
s_mov_b64 exec, 1
buffer_store_dword v85, v86, s[20:23], s48 offen sc1
s_mov_b64 exec, -1
{Lf}:""")
    def chk_all():
        La = a.label("alld")
        a(f"""s_cmp_lg_u32 s3, {lead}
s_cbranch_scc1 {La}d
s_mov_b32 s48, {FALL}
s_mov_b32 s49, 0
{La}:
buffer_load_dwordx4 v[88:91], v{VL}, s[20:23], s48 offen sc1
s_add_u32 s49, s49, 1
s_waitcnt vmcnt(0)
v_xor_b32 v88, s77, v88
v_xor_b32 v89, s77, v89
v_xor_b32 v90, s77, v90
v_xor_b32 v91, s77, v91
v_or3_b32 v88, v88, v89, v90
v_or_b32 v88, v88, v91
v_cmp_ne_u32 vcc, 0, v88
s_cmp_ge_u32 s49, 0x40000
s_cbranch_scc1 {La}d
s_cbranch_vccz {La}d
s_sleep {slp}
s_branch {La}
{La}d:""")
    post = defer == 'post'
    if post:
        pf0 = tall + 1
    base = 0
    for t in range(64):
        if t in prios:
            a(f"s_setprio {prios[t]}")
        if t in (23, 46):
            a(f"v_add_u32 v{VA}, {23*TILE}, v{VA}\nv_add_u32 v{VB}, {23*TILE}, v{VB}\nv_add_u32 v{VK}, {23*TILE}, v{VK}\nv_add_u32 v{VA2}, {23*TILE}, v{VA2}")
            base = t
        j0 = j1 = None
        if t < 8:
            j0 = j1 = kv
        elif post and 8 <= t < 13:
            import k1
            def hs(mi):
                so = "s78" if mi >= 8 else "s79"
                a(f"buffer_store_dwordx4 {vr(k1.hout(mi),4)}, v244, s[20:23], {so} offen offset:{128*(mi&1)} sc1")
                if mi & 1 and mi < 7:
                    a(f"s_add_u32 s79, s79, {2*FB}")
            j0 = (lambda m=2*(t-8): hs(m)); j1 = (lambda m=2*(t-8)+1: hs(m))
        elif post and t >= pf0:
            if pf: j1 = (lambda x=pf.pop(0): a(x))
            if pf and t < 42 and len(pf) > 62 - t: j0 = (lambda x=pf.pop(0): a(x))
        elif pf0 <= t < pf0 + len(pf):
            j1 = (lambda x=pf[t - pf0]: a(x))
        if TDEAD < t <= TDEAD + len(wl):
            j0 = (lambda x=wl[t - TDEAD - 1]: a(x))
        if warm and t == warm:
            assert j0 is None
            j0 = lambda: a(f"buffer_load_dword v253, v252, s[20:23], s72 offen {LD}")
        tile(a, t, base, j0, j1)
        if fused and 24 <= t < 40 and t % 2 == 0:
            Lt = a.label("tag2")
            a(f"s_cmp_lg_u32 s3, {(t - 24) // 2}\ns_cbranch_scc1 {Lt}\nv_mov_b32 v85, 0\nglobal_load_dword v87, v85, s[6:7] sc1\n{Lt}:")
        if t == TDEAD:
            a("s_barrier")
            a(f"v_mov_b32 v85, {RDY}\nv_mov_b32 v86, 0\nds_write_b32 v85, v86\nds_write_b32 v85, v86 offset:4")
        if t == b1:
            a("s_waitcnt vmcnt(14)" if b1 == 7 else "s_waitcnt vmcnt(6)")
            hm(5)
            a("s_barrier")
            if defer and not post:
                pub_all()
        if t == 15:
            if fused and not post:
                chk_all()
            a("s_waitcnt vmcnt(0)\ns_barrier")
            if post:
                pub_all()
            elif fused:
                a(f"buffer_load_dword v{VG}, v{VG}, s[20:23], s47 offen sc1")
            hm(6)
        if post and t == tall:
            chk_all()
            a(f"s_barrier\nbuffer_load_dword v{VG}, v{VG}, s[20:23], s47 offen sc1")
    assert (not pf) if post else pf0 + len(pf) <= 64
    a(f"""s_waitcnt lgkmcnt(0)
{M16} {vr(O,16)}, {vr(V0,4)}, {vr(P,4)}, {vr(O,16)}
{M16} {vr(O,16)}, {vr(V1,4)}, {vr(P+4,4)}, {vr(O,16)}""")
    Lfin = a.label("k2fin"); Lfb = a.label("k2fb")
    stamp.mark(a, 3)
    T = 32
    a(f"""s_mul_i32 s48, s19, {2*FB}
s_add_u32 s48, s48, {AF}
s_lshl_b32 s50, s18, 9
s_add_u32 s50, s50, s48
s_lshl_b32 s49, s18, 7
s_add_u32 s49, s49, s48
s_add_u32 s49, s49, {FX}
v_lshrrev_b32 v{T+4}, 4, v1
v_mul_u32_u24 v{T+4}, {FB}, v{T+4}
v_and_b32 v{T+5}, 15, v1
v_lshl_add_u32 v{T+6}, v{T+5}, 3, v{T+4}
v_lshl_add_u32 v{T+4}, v{T+5}, 4, v{T+4}
v_lshl_add_u32 v{T+7}, v2, 8, v{T+4}
s_lshr_b32 s51, s19, 3
s_lshl_b32 s51, s51, 12
s_lshl_b32 s48, s18, 2
s_add_u32 s51, s51, s48
s_add_u32 s51, s51, {FLG}
s_mov_b32 s54, {hex(f2u(2.0**100))}
s_mov_b32 s55, {hex(f2u(2.0**-40))}
s_nop 3
v_mov_b32 v{T}, v{O+8}
v_mov_b32 v{T+1}, v{O+8}
s_nop 1
v_permlane32_swap_b32 v{T}, v{T+1}""")
    a(f"v_add_f32 v{T+2}, abs(v{O}), abs(v{O+1})\nv_add_f32 v{T+3}, abs(v{O+2}), v{T+1}")
    for i in range(3, 12):
        r = T + 2 + (i & 1)
        a(f"v_add_f32 v{r}, abs(v{O+i}), v{r}")
    a(f"""v_add_f32 v{T+2}, v{T+2}, v{T+3}
v_cmp_nge_f32 s[56:57], v{T+1}, s55
v_cmp_nle_f32 vcc, v{T+2}, s54
s_or_b64 vcc, vcc, s[56:57]
s_cbranch_vccnz {Lfb}
{Lfin}:
v_rcp_f32 v{T+1}, v{T+1}
s_nop 0
v_mul_f32 v{T+1}, v{VG}, v{T+1}""")
    for i in range(12):
        a(f"v_mul_f32 v{O+i}, v{T+1}, v{O+i}")
    for i in range(6):
        a(f"v_cvt_pk_bf16_f32 v{T+8+i}, v{O+2*i}, v{O+2*i+1}")
    a(f"""buffer_store_dwordx4 {vr(T+8,4)}, v{T+7}, s[20:23], s50 offen {st_o}
s_mov_b32 exec_hi, 0
buffer_store_dwordx2 {vr(T+12,2)}, v{T+6}, s[20:23], s49 offen {st_o}
s_mov_b32 exec_hi, -1
s_setprio 0""")
    if yprio:
        Ly = a.label("yp")
        a(f"s_cmp_lt_u32 s3, 4\ns_cbranch_scc1 {Ly}\ns_setprio 1\n{Ly}:")
    a(f"""v_and_b32 v1, 15, v0
v_lshlrev_b32 v1, 2, v1
s_lshl_b32 s48, s60, 8
s_add_u32 s48, s48, {GV}""")
    for mi in range(4):
        a(f"buffer_load_dword v{4+mi}, v1, s[20:23], s48 offen offset:{64*mi} {LD}")
    a("s_waitcnt vmcnt(6)")
    if fused:
        a("v_readfirstlane_b32 s77, v87\ns_nop 1")
    a(f"""v_lshlrev_b32 v2, 2, v0
v_mov_b32 v1, {"s77" if fused else "1"}
s_lshr_b32 s48, s60, 2
s_lshl_b32 s48, s48, 12
s_add_u32 s48, s48, {FLG}""")
    out = ["st", "st"] + ["g"] * 4
    def wait_for(pred):
        idx = [i for i, x in enumerate(out) if pred(x)]
        if not idx:
            return
        a(f"s_waitcnt vmcnt({len(out) - 1 - max(idx)})")
        del out[:max(idx) + 1]
    reg = {n: RING + 4 * n for n in range(NFR)}
    Lw = a.label("k2poll"); Lw2 = a.label("k2polld")
    tmp = PTMP
    WR = []; XWs = []; pool = []; wq = []
    def refill(i):
        free = pool + [reg[n] for n in range(9 * i, 9 * i + 9)]
        del pool[:]
        if i == 0:
            a(f"v_add_u32 v{tmp+2}, s76, v{VL}\nv_lshlrev_b32 v{tmp+3}, 3, v0")
        while free and len(reg) < 54:
            n = len(reg); reg[n] = free.pop(0)
            a(f"ds_read_b128 {vr(reg[n],4)}, v{tmp+2} offset:{1024*(n - NFR)}")
        publish(i)
        if i < wat:
            pool.extend(free)
            return []
        if i == wat:
            for k in range(10):
                r = free.pop(0); WR.append(r)
                pre = f"s_lshl_b32 s73, s75, 11\ns_add_u32 s73, s73, s72\n" if k == 0 else f"s_add_u32 s73, s73, {FB}\n" if k % 2 == 0 else ""
                wq.append(pre + f"buffer_load_dwordx4 {vr(r,4)}, v{VL}, s[20:23], s73 offen offset:{1024*(k&1)} {LD}")
            XWs.extend(free[:3]); del free[:3]
            for j in range(5):
                pre = f"s_lshl_b32 s73, s75, 9\ns_add_u32 s73, s73, s72\ns_add_u32 s73, s73, {FX}\n" if j == 0 else f"s_add_u32 s73, s73, {FB}\n"
                wq.append(pre + f"buffer_load_dwordx2 {vr(XWs[j//2] + 2*(j%2),2)}, v{tmp+3}, s[20:23], s73 offen {LD}")
            while wq and not wgap:
                a(wq.pop(0)); out.append("w")
        return free
    def await_o(WR, AR, XW, XA, tmp):
        a(f"""s_lshl_b32 s52, s75, 11
s_add_u32 s52, s52, s71
s_lshl_b32 s49, s75, 9
s_add_u32 s49, s49, s71
s_add_u32 s49, s49, {FX}
s_lshl_b32 s53, s75, 2
s_lshl_b32 s53, 15, s53
v_mov_b32 v{tmp}, {RDY}
s_mov_b32 s55, 0
s_cmp_lg_u32 s3, {lead2}
s_cbranch_scc1 {Lw2}""")
        PR = spare[16]
        def poll(L, Lx, want):
            def look(reg):
                return f"""v_cmp_eq_u32 vcc, s77, v{reg}
s_add_u32 s55, s55, 1
s_cmp_ge_u32 s55, {1 if nosync else 0x40000}
s_cselect_b32 s54, -1, vcc_lo
v_mov_b32 v{tmp+1}, s54
ds_write_b32 v{tmp}, v{tmp+1}
s_and_b32 s56, s54, {want}
s_cmp_lg_u32 s56, {want}"""
            if not ppoll:
                a(f"""s_mov_b32 exec_hi, 0
{L}:
buffer_load_dword v1, v2, s[20:23], s48 offen sc1
s_waitcnt vmcnt(0)
{look(1)}
s_cbranch_scc1 {L}
s_mov_b32 exec_hi, -1""")
            else:
                a(f"""s_mov_b32 exec_hi, 0
buffer_load_dword v{PR}, v2, s[20:23], s48 offen sc1
s_sleep 8
{L}:
buffer_load_dword v{PR+1}, v2, s[20:23], s48 offen sc1
s_waitcnt vmcnt(1)
{look(PR)}
s_cbranch_scc0 {L}e
buffer_load_dword v{PR}, v2, s[20:23], s48 offen sc1
s_waitcnt vmcnt(1)
{look(PR+1)}
s_cbranch_scc1 {L}
{L}e:
s_mov_b32 exec_hi, -1""")
        poll(Lw, None, "s53")
        a(f"""s_branch {Lw2}x
{Lw2}:
ds_read_b32 v1, v{tmp}
s_add_u32 s55, s55, 1
s_waitcnt lgkmcnt(0)
v_readfirstlane_b32 s54, v1
s_cmp_ge_u32 s55, 0x400000
s_cselect_b32 s54, -1, s54
s_and_b32 s54, s54, s53
s_cmp_eq_u32 s54, s53
s_cbranch_scc1 {Lw2}x
s_sleep 1
s_branch {Lw2}
{Lw2}x:""")
        tm(1)
        for mi in range(4):
            if mi == 2 and osplit:
                selectors()
            for k in range(2):
                a(f"buffer_load_dwordx4 {vr(AR[4*k+mi],4)}, v{VL}, s[20:23], s52 offen offset:{1024*k} sc1")
            a(f"buffer_load_dwordx2 {vr(XA[mi],2)}, v{tmp+3}, s[20:23], s49 offen sc1")
            if mi < 3:
                a(f"s_add_u32 s52, s52, {FB}\ns_add_u32 s49, s49, {FB}")
            out.extend(["o"] * 3)
        Lr = a.label("k2rest")
        a(f"""s_cmp_lg_u32 s3, {lead2}
s_cbranch_scc1 {Lr}x
s_cmp_eq_u32 s54, -1
s_cbranch_scc1 {Lr}x""")
        poll(Lr, None, "-1")
        a(f"{Lr}x:")
    def publish(i):
        for pos, br in ((pubo, "s_cbranch_scc0"), (puby, "s_cbranch_scc1")):
            if i != pos:
                continue
            n = len(out) - 1 - max(k for k, x in enumerate(out) if x == "st")
            Lnp = a.label("k2np")
            a(f"""s_cmp_lt_u32 s3, 4
{br} {Lnp}
s_setprio 0
s_waitcnt vmcnt({n})
s_mov_b64 exec, 1
v_mov_b32 v{PT}, {RDY}
v_mov_b32 v{PT+1}, 1
ds_add_rtn_u32 v{PT+1}, v{PT}, v{PT+1} offset:4
s_waitcnt lgkmcnt(0)
v_readfirstlane_b32 s54, v{PT+1}
s_cmp_lg_u32 s54, 7
s_cbranch_scc1 {Lnp}y
buffer_store_dword v1, v2, s[20:23], s51 offen sc1
{Lnp}y:
s_mov_b64 exec, -1""")
            tm(6)
            a(f"{Lnp}:")
    PT = PTMP
    publish(-1)
    spare = []
    for i in range(6):
        if i == 4:
            a("s_waitcnt lgkmcnt(0)")
        for mi in range(4):
            for ni in range(5):
                d = GA + 4 * (mi * 5 + ni)
                c = "0" if i == 0 else vr(d, 4)
                a(f"{MM} {vr(d,4)}, {vr(reg[9*i+4+ni],4)}, {vr(reg[9*i+mi],4)}, {c}")
                if wq and (mi * 5 + ni) % wgap == wgap - 1:
                    a(wq.pop(0)); out.append("w")
        spare += refill(i)
    assert not wq
    XW = [XWs[j // 2] + 2 * (j % 2) for j in range(5)]
    AR = spare[:8]; XA = [spare[8 + k // 2] + 2 * (k % 2) for k in range(4)]
    spare = spare[10:]
    if stamp.TODEBUG is None and (tailmarks or not stamp.REAL): stamp.mark(a, 4)
    wait_for(lambda x: x == "g")
    a("s_nop 4")
    for mi in range(4):
        a(f"v_sub_f32 v{tmp}, 1.0, v{4+mi}\nv_mov_b32 v{tmp+1}, v{tmp}")
        for q in range(10):
            d = GA + 20 * mi + 2 * q
            a(f"v_pk_mul_f32 {vr(d,2)}, {vr(d,2)}, {vr(tmp,2)}")
    SS = STG + 64
    SELR = spare[:4]
    def selectors():
        a(f"""s_and_b32 s57, s3, 3
s_lshl_b32 s57, s57, 6
s_add_u32 s57, s57, s76
v_lshlrev_b32 v4, 3, v0
v_add_u32 v4, s57, v4
v_bfe_u32 v5, v0, 2, 2
v_mul_u32_u24 v5, {SS}, v5
v_lshrrev_b32 v6, 4, v0
v_lshl_add_u32 v5, v6, 5, v5
v_and_b32 v7, 3, v0
v_lshl_add_u32 v5, v7, 3, v5
s_lshl_b32 s57, s3, 9
v_add_u32 v5, s57, v5
v_and_b32 v7, 15, v0
v_sub_u32 v6, v7, v6
v_mov_b32 v1, 0x3f803f80""")
        for p in range(4):
            a(f"v_cmp_eq_u32 vcc, {4*p}, v6\ns_nop 1\nv_cndmask_b32 v{SELR[p]}, 0, v1, vcc")
            for q in range(1, 4):
                a(f"v_mov_b32 v{SELR[p]+q}, v{SELR[p]}")
    await_o(WR, AR, XW, XA, tmp)
    assert out[-12:] == ["o"] * 12
    if not osplit:
        selectors()
    def flush(g):
        d = GA + 4 * g
        a(f"v_cvt_pk_bf16_f32 v{d}, v{d}, v{d+1}\nv_cvt_pk_bf16_f32 v{d+1}, v{d+2}, v{d+3}\nds_write_b64 v4, {vr(d,2)} offset:{512*g}")
    for mi in range(4):
        for k in range(3):
            a(f"s_waitcnt vmcnt({11 - 3*mi - k})" + (" lgkmcnt(0)" if mi + k == 0 else ""))
            if am == 3 * mi + k: tm(5)
            for ni in range(5):
                d = GA + 4 * (mi * 5 + ni)
                if k < 2:
                    a(f"{MM} {vr(d,4)}, {vr(WR[2*ni+k],4)}, {vr(AR[4*k+mi],4)}, {vr(d,4)}")
                else:
                    a(f"{MX} {vr(d,4)}, {vr(XW[ni],2)}, {vr(XA[mi],2)}, {vr(d,4)}")
                if mi and k == 1:
                    flush(5 * (mi - 1) + ni)
    tm(2)
    a("s_nop 3")
    for ni in range(5):
        flush(15 + ni)
    if am is None: tm(5)
    a(f"""v_lshrrev_b32 v1, 4, v0
v_lshl_add_u32 v1, v7, 2, v1
v_and_b32 v2, 15, v1
v_mul_u32_u24 v2, 1280, v2
v_lshrrev_b32 v1, 4, v1
v_lshl_add_u32 v7, v1, 3, v2
s_mul_i32 s48, s60, {64*1280}
s_mul_i32 s49, s61, 160
s_add_u32 s48, s48, s49""")
    for u in range(3):
        a(f"""s_add_u32 s49, s3, {8*u}
s_mul_i32 s50, s49, 205
s_lshr_b32 s50, s50, 10
s_mul_i32 s{52+u}, s50, {16*1280 - 5*32}
s_lshl_b32 s49, s49, 5
s_add_u32 s{52+u}, s{52+u}, s49
s_add_u32 s{52+u}, s{52+u}, s48""")
    a("s_waitcnt lgkmcnt(0)\ns_barrier")
    Lo = a.label("k2o")
    RB = spare[4]
    assert spare[4:16] == [RB + 4 * i for i in range(12)] or True
    RBs = spare[4:16]
    def rd(u):
        for p in range(4):
            for hf in range(2):
                a(f"ds_read_b64_tr_b16 {vr(RBs[4*u+p] + 2*hf, 2)}, v5 offset:{4096*u + 128*p + 4*STG*hf}")
    def mm(u, pend):
        for p in range(4):
            a(f"s_waitcnt lgkmcnt({min(15, pend + 6 - 2*p)})")
            c = "0" if p == 0 else vr(GA + 4 * u, 4)
            a(f"{MM} {vr(GA+4*u,4)}, {vr(RBs[4*u+p],4)}, {vr(SELR[p],4)}, {c}")
    def fin(u):
        r = GA + 4 * u
        a(f"v_cvt_pk_bf16_f32 v{r}, v{r}, v{r+1}")
        a(f"v_cvt_pk_bf16_f32 v{r+1}, v{r+2}, v{r+3}")
        a(f"buffer_store_dwordx2 {vr(r,2)}, v7, s[24:27], s{52+u} offen {st_out}")
    rd(0); rd(1)
    mm(0, 8)
    a(f"s_cmp_ge_u32 s3, 4\ns_cbranch_scc1 {Lo}")
    rd(2)
    mm(1, 8)
    a("s_nop 1")
    fin(0)
    mm(2, 0)
    fin(1)
    a("s_nop 4")
    fin(2)
    stamp.flush(a, 0 if fused else 1, 4 if not stamp.ENABLED else 7, 0, drain=False)
    a("s_endpgm")
    a(f"{Lo}:")
    mm(1, 0)
    fin(0)
    a("s_nop 4")
    fin(1)
    stamp.flush(a, 0 if fused else 1, 4 if not stamp.ENABLED else 7, 0, drain=False)
    a("s_endpgm")
    NM = 48
    Lp1 = a.label("k2p1"); Lp2 = a.label("k2p2")
    a(f"""{Lfb}:
v_bfe_u32 v85, v1, 2, 2
v_xor_b32 v85, v85, v2
v_lshlrev_b32 v85, 4, v85
v_lshl_add_u32 v{VA}, v1, 6, v85
v_add_u32 v{VA}, 1280, v{VA}
v_xor_b32 v{VA2}, 32, v{VA}
v_and_b32 v{VB}, 7, v1
v_lshlrev_b32 v{VB}, 4, v{VB}
v_and_b32 v85, 8, v1
v_add_u32 v{VB}, v85, v{VB}
v_and_b32 v85, 16, v1
v_lshl_add_u32 v{VB}, v85, 3, v{VB}
v_lshl_add_u32 v{VK}, v2, 8, v{VB}
v_add_u32 v{VB}, 1024, v{VB}
s_add_u32 s46, s43, {KV}
s_mov_b32 s37, 0
v_mov_b32 v85, 0xff7fffff
{Lp1}:
buffer_load_dwordx2 {vr(K16,2)}, v{VK}, s[20:23], s46 offen {LD}
buffer_load_dwordx2 {vr(K16+2,2)}, v{VK}, s[20:23], s46 offen offset:512 {LD}
buffer_load_dwordx2 {vr(K8,2)}, v{VB}, s[20:23], s46 offen {LD}
s_waitcnt vmcnt(0)
{M16} {vr(S[0],16)}, {vr(K16,4)}, {vr(Q16,4)}, 0
{M8} {vr(S[0],16)}, {vr(K8,2)}, {vr(Q8,2)}, {vr(S[0],16)}
s_nop 7
s_nop 7""")
    for i in range(8):
        a(f"v_max3_f32 v85, v85, v{S[0]+2*i}, v{S[0]+2*i+1}")
    a(f"""s_add_u32 s46, s46, {TILE}
s_add_u32 s37, s37, 1
s_cmp_lt_u32 s37, 64
s_cbranch_scc1 {Lp1}
v_mov_b32 v86, v85
s_nop 1
v_permlane32_swap_b32 v85, v86
s_nop 1
v_max_f32 v85, v85, v86""")
    for i in range(16):
        a(f"v_sub_f32 v{NM+i}, 0, v85")
        a(f"v_mov_b32 v{O+i}, 0")
    a(f"""s_add_u32 s46, s43, {KV}
s_mov_b32 s37, 0
{Lp2}:
buffer_load_dwordx2 {vr(K16,2)}, v{VK}, s[20:23], s46 offen {LD}
buffer_load_dwordx2 {vr(K16+2,2)}, v{VK}, s[20:23], s46 offen offset:512 {LD}
buffer_load_dwordx2 {vr(K8,2)}, v{VB}, s[20:23], s46 offen {LD}
s_mov_b64 exec, s[30:31]
buffer_load_dwordx4 {vr(V0,4)}, v{VA}, s[20:23], s46 offen {LD}
buffer_load_dwordx4 {vr(V1,4)}, v{VA2}, s[20:23], s46 offen {LD}
s_mov_b64 exec, -1
s_waitcnt vmcnt(0)
{M16} {vr(S[0],16)}, {vr(K16,4)}, {vr(Q16,4)}, {vr(NM,16)}
{M8} {vr(S[0],16)}, {vr(K8,2)}, {vr(Q8,2)}, {vr(S[0],16)}
s_nop 7
s_nop 7""")
    for i in range(16):
        a(f"v_exp_f32 v{S[0]+i}, v{S[0]+i}")
    a("s_nop 0")
    for i in range(8):
        a(f"v_cvt_pk_bf16_f32 v{P+i}, v{S[0]+2*i}, v{S[0]+2*i+1}")
    a(f"""s_nop 1
{M16} {vr(O,16)}, {vr(V0,4)}, {vr(P,4)}, {vr(O,16)}
{M16} {vr(O,16)}, {vr(V1,4)}, {vr(P+4,4)}, {vr(O,16)}
s_add_u32 s46, s46, {TILE}
s_add_u32 s37, s37, 1
s_cmp_lt_u32 s37, 64
s_cbranch_scc1 {Lp2}
s_nop 7
s_nop 7
v_mov_b32 v{T}, v{O+8}
v_mov_b32 v{T+1}, v{O+8}
v_lshrrev_b32 v{T+4}, 4, v1
v_mul_u32_u24 v{T+4}, {FB}, v{T+4}
v_and_b32 v{T+5}, 15, v1
v_lshl_add_u32 v{T+6}, v{T+5}, 3, v{T+4}
v_lshl_add_u32 v{T+4}, v{T+5}, 4, v{T+4}
v_lshl_add_u32 v{T+7}, v2, 8, v{T+4}
v_permlane32_swap_b32 v{T}, v{T+1}
s_nop 1
s_branch {Lfin}
{Lend}:
s_endpgm
code_end:""")
    kernel_desc(a, name, 256, 102 if stamp.ENABLED else 96)
```

```python
import sys
from gen import build
F = dict(fused=True, aslist=True, real=True)
V = {
 "fur": dict(**F),
 "l1": dict(**F, k2=dict(lay=1)), "l2": dict(**F, k2=dict(lay=2)), "l3": dict(**F, k2=dict(lay=3)), "l4": dict(**F, k2=dict(lay=4)),
 "c333": dict(**F, k2=dict(pubo=3, puby=3, wat=3, tailmarks=True)),
 "c442": dict(**F, k2=dict(pubo=4, puby=4, wat=2, tailmarks=True)),
 "c552": dict(**F, k2=dict(pubo=5, puby=5, wat=2, tailmarks=True)),
 "c522": dict(**F, k2=dict(pubo=5, puby=2, wat=2, tailmarks=True)),
 "c511": dict(**F, k2=dict(pubo=5, puby=1, wat=2, tailmarks=True)),
 "np": dict(**F, k2=dict(ppoll=False, tailmarks=True)),
 "ns": dict(**F, k2=dict(osplit=False, tailmarks=True)),
 "nn": dict(**F, k2=dict(osplit=False, ppoll=False, tailmarks=True)),
 "am0": dict(**F, k2=dict(am=0, tailmarks=True)),
 "am5": dict(**F, k2=dict(am=5, tailmarks=True)),
 "am11": dict(**F, k2=dict(am=11, tailmarks=True)),
 "nw": dict(**F, k2=dict(warm=0, tailmarks=True)),
 "w57": dict(**F, k2=dict(warm=57, tailmarks=True)),
 "w60g0": dict(**F, k2=dict(warm=60, wgap=0, tailmarks=True)),
 "w30": dict(**F, k2=dict(warm=30, tailmarks=True)),
 "g0": dict(**F, k2=dict(wgap=0, tailmarks=True)),
 "g1": dict(**F, k2=dict(wgap=1, tailmarks=True)),
 "g3": dict(**F, k2=dict(wgap=3, tailmarks=True)),
 "g4": dict(**F, k2=dict(wgap=4, tailmarks=True)),
 "w2a": dict(**F, k2=dict(pubo=2, puby=-1, tailmarks=True)),
 "w2b": dict(**F, k2=dict(pubo=2, puby=1, tailmarks=True)),
 "w2c": dict(**F, k2=dict(pubo=1, puby=0, tailmarks=True)),
 "w3": dict(**F, k2=dict(pubo=3, puby=0, wat=3, tailmarks=True)),
 "n32": dict(**F, k2=dict(npre=32)),
 "n22": dict(**F, k2=dict(npre=22, pstep=2)),
 "n27": dict(**F, k2=dict(npre=27)),
 "n36": dict(**F, k2=dict(npre=36)),
 "hp1": dict(**F, k1=dict(help=1)),
 "hp2": dict(**F, k1=dict(help=2)),
 "hp2x": dict(**F, k1=dict(help=2, helpx=True)),
 "hp1x": dict(**F, k1=dict(help=1, helpx=True)),
 "gd5": dict(**F, k1=dict(gudelay=50)),
 "gd10": dict(**F, k1=dict(gudelay=100)),
 "gd15": dict(**F, k1=dict(gudelay=150)),
 "y11": dict(**F, k2=dict(pubo=1, puby=1, yprio=True, tailmarks=True)),
 "y21": dict(**F, k2=dict(pubo=2, puby=1, yprio=True, tailmarks=True)),
 "y10": dict(**F, k2=dict(pubo=1, puby=0, yprio=True, tailmarks=True)),
 "y20": dict(**F, k2=dict(pubo=2, puby=0, yprio=True, tailmarks=True)),
 "q22": dict(**F, k2=dict(pubo=2, puby=2, tailmarks=True)),
 "q32": dict(**F, k2=dict(pubo=3, puby=2, tailmarks=True)),
 "q33": dict(**F, k2=dict(pubo=3, puby=3, tailmarks=True)),
 "q11": dict(**F, k2=dict(pubo=1, puby=1, tailmarks=True)),
 "q31": dict(**F, k2=dict(pubo=3, puby=1, tailmarks=True)),
 "m84": dict(**F, k2=dict(map84=True)),
 "pf16": dict(**F, k2=dict(pf0=16)),
 "pf21": dict(**F, k2=dict(pf0=21)),
 "norot": dict(**F, k1=dict(rot_enable=False)),
 "sp1": dict(**F, k1=dict(rot_enable=False, spf=1)),
 "sp2": dict(**F, k1=dict(rot_enable=False, spf=2)),
 "sp3": dict(**F, k1=dict(rot_enable=False, spf=3)),
 "sp21": dict(**F, k1=dict(rot_enable=False, spf=2, spf0=1)),
 "h12": dict(fused=True, aslist=True, hold=0, k2=dict(hold1=1200)),
 "h14": dict(fused=True, aslist=True, hold=0, k2=dict(hold1=1400)),
 "h15": dict(fused=True, aslist=True, hold=0, k2=dict(hold1=1500)),
 "h16": dict(fused=True, aslist=True, hold=0, k2=dict(hold1=1600)),
 "h18": dict(fused=True, aslist=True, hold=0, k2=dict(hold1=1800)),
 "h22": dict(fused=True, aslist=True, hold=0, k2=dict(hold1=2200)),
 "post": dict(**F, k1=dict(defer="post"), k2=dict(defer="post", prios={0:3, 2:2, 3:1, 4:3, 11:2, 14:1, 16:3, 20:2, 22:1, 23:3, 36:2, 40:1, 42:3, 56:2, 61:1, 63:0})),
 "xhalf": dict(**F, k2=dict(exp=("half",))),
 "xkb": dict(**F, k2=dict(exp=("kb128",))),
 "noh": dict(**F, k1=dict(half0=False, unr=2)),
 "h9": dict(**F, k1=dict(unr=9)),
 "u2": dict(**F, k1=dict(unr=2)),
 "u5": dict(**F, k1=dict(unr=5)),
 "nomix": dict(**F, k1=dict(mix=False)),
 "nocp": dict(**F, k1=dict(codepf=False)),
 "pf22": dict(**F, k2=dict(pf0=22)),
 "xjob": dict(**F, k2=dict(exp=("nojob",))),
 "xwait": dict(**F, k2=dict(exp=("nowait",))),
 "xds": dict(**F, k2=dict(exp=("nods", "nowait"))),
 "xall": dict(**F, k2=dict(exp=("nods", "nowait", "nojob"))),
 "osc1": dict(**F, k2=dict(st_out="sc1")),
 "ont": dict(**F, k2=dict(st_out="nt")),
 "osc01": dict(**F, k2=dict(st_out="sc0 sc1")),
 "nolf": dict(**F, k1=dict(ldfirst=False)),
 "noex": dict(**F, k1=dict(earlyx=False)),
 "ft": dict(**F, k2=dict(tailmarks=True)),
 "b7": dict(**F, k2=dict(b1=7, prios={0:3, 5:2, 7:1, 8:3, 13:2, 15:1, 16:3, 34:2, 39:1, 41:0, 42:3, 56:2, 61:1, 63:0})),
 "slp0": dict(**F, k2=dict(slp=0)),
}
for n in sys.argv[1:]:
    build(f"d_{n}.s", stamp=True, **V[n])
    build(f"t_{n}.s", stamp=False, **V[n])
```

```python
from common import *
import stamp

K2_LDS = HEADB
Q16, Q8 = 4, 8
K16, K8 = 10, 14
V0, V1 = 16, 20
P = 24
S = [32, 48]
O = 64
VA, VB, VG, VK, VA2 = 80, 81, 82, 83, 84
VL = 3
RING = 88
NSL = 7
GA = 8
M16 = "v_mfma_f32_32x32x16_bf16"
M8 = "v_mfma_f32_32x32x8bf16_1k"
U = 8

EXP = set()
LAYOUTS = [(4, 8, 10, 14, 16, 20, 24, [32, 48], 64),
           (4, 12, 8, 14, 16, 20, 24, [32, 48], 64),
           (4, 8, 26, 30, 18, 22, 10, [32, 48], 64),
           (4, 8, 76, 10, 12, 16, 20, [28, 44], 60),
           (4, 8, 76, 74, 66, 70, 10, [18, 34], 50)]
def tile(a0, t, base, job0=None, job1=None):
    def a(s):
        if "noexec" in EXP and "exec" in s: return
        if "nods" in EXP and s.startswith("ds_"): return
        if "nowait" in EXP and s.startswith("s_waitcnt"): return
        if "half" in EXP and t % 2 and (s.startswith("ds_") or "exec" in s or s.startswith("s_waitcnt")): return
        if "half" in EXP and s.startswith("s_waitcnt lgkmcnt(1)"): return
        if "half" in EXP and s.startswith("s_waitcnt lgkmcnt(3)"): s = "s_waitcnt lgkmcnt(0)"
        if "kb128" in EXP and s.startswith("ds_read2st64"):
            s = f"ds_read_b128 {vr(K16,4)}, v{VL} offset:{(t + 2 - base) * TILE}"
        a0(s)
    if "nojob" in EXP and t >= 16:
        job0 = job1 = None
    s0, s1 = S[t % 2], S[(t + 1) % 2]
    ko = (t + 2 - base) * TILE
    vo = (t - base) * TILE
    assert ko + 16 < 65536
    def ex(lo, hi):
        for i in range(lo, hi):
            a(f"v_exp_f32 v{s0+i}, v{s0+i}")
    def cv(lo, hi):
        for i in range(lo, hi):
            a(f"v_cvt_pk_bf16_f32 v{P+i}, v{s0+2*i}, v{s0+2*i+1}")
    last = t == 63
    if not last:
        a("s_waitcnt lgkmcnt(3)" if t < 62 else "s_waitcnt lgkmcnt(2)")
        a(f"{M16} {vr(s1,16)}, {vr(K16,4)}, {vr(Q16,4)}, 0")
    if t < 62:
        a(f"ds_read2st64_b64 {vr(K16,4)}, v{VK} offset0:{ko//512} offset1:{ko//512+1}")
    ex(0, 5)
    a("s_waitcnt lgkmcnt(1)" if t < 62 else "s_waitcnt lgkmcnt(0)")
    a(f"{M16} {vr(O,16)}, {vr(V0,4)}, {vr(P,4)}, {vr(O,16)}")
    if job0: job0()
    ex(5, 8)
    cv(0, 4)
    if not last:
        a(f"{M8} {vr(s1,16)}, {vr(K8,2)}, {vr(Q8,2)}, {vr(s1,16)}")
    if t < 62:
        a(f"ds_read_b64 {vr(K8,2)}, v{VB} offset:{ko}")
    ex(8, 13)
    a(f"{M16} {vr(O,16)}, {vr(V1,4)}, {vr(P+4,4)}, {vr(O,16)}")
    a("s_mov_b64 exec, s[30:31]")
    a(f"ds_read_b128 {vr(V0,4)}, v{VA} offset:{vo}")
    a(f"ds_read_b128 {vr(V1,4)}, v{VA2} offset:{vo}")
    a("s_mov_b64 exec, -1")
    if job1: job1()
    ex(13, 16)
    cv(4, 8)

MM = "v_mfma_f32_16x16x32_bf16"
MX = "v_mfma_f32_16x16x16bf16_1k"
STG = 13312
TDEAD = 42
RDY = 8 * STG
PTMP = 252
NFR = 41
LDF = [""]
BB = 62
def bfrag(n, reg):
    i, c = n // 9, n % 9
    if i < 4:
        return f"buffer_load_dwordx4 {vr(reg,4)}, v{VL}, s[20:23], s{BB+c} offen offset:{i*1024} {LDF[0]}"
    return f"s_add_u32 s73, s{BB+c}, {1024*i}\nbuffer_load_dwordx4 {vr(reg,4)}, v{VL}, s[20:23], s73 offen {LDF[0]}"

def gen_k2(a, name, prios={0:3, 2:2, 3:1, 4:3, 11:2, 14:1, 16:3, 35:2, 40:1, 42:0, 43:3, 56:2, 61:1, 63:0}, lead=4, lead2=0, pubo=2, puby=0,
           st_o="sc1", pf0=18, rot=True, slp=2, nosync=False, tailmarks=False, b1=3, fused=True, st_out="", exp=(), defer=False, tall=22, hold1=None, map84=False, yprio=False, npre=NFR, pstep=1, wat=2, wgap=2, warm=0, am=None, ppoll=False, osplit=False, hoist=True, lay=0):
    global Q16, Q8, K16, K8, V0, V1, P, S, O
    Q16, Q8, K16, K8, V0, V1, P, S, O = LAYOUTS[lay]
    EXP.clear(); EXP.update(exp)
    hm = lambda i: stamp.mark(a, 6) if i == 2 else None
    tm = (lambda i: stamp.mark(a, i)) if tailmarks else (lambda i: None)
    Lend = f"{name}_end"
    LD = "sc1"
    LDF[0] = LD
    Lj = a.label("join")
    if defer:
        a(f"""{name}_join:
s_mov_b64 exec, -1
s_mov_b32 s78, 0x80000000
s_mov_b32 s79, 0x80000000
v_mov_b32 v244, 0
{name}_join2:""")
    else:
        a(f"{name}_join:")
    a(f"""s_mov_b64 exec, -1
s_setprio 0
s_mov_b32 s3, s55
s_mov_b32 s74, s19
s_load_dwordx2 s[6:7], s[0:1], 72
s_load_dwordx2 s[4:5], s[0:1], 64
v_mbcnt_lo_u32_b32 v0, -1, 0
v_mbcnt_hi_u32_b32 v0, -1, v0
s_and_b32 s40, s2, 7
s_lshr_b32 s41, s2, 3
s_lshl_b32 s18, s40, 2
s_lshr_b32 s42, s41, 3
s_add_u32 s18, s18, s42
s_mul_i32 s43, s18, {HEADB}
v_lshlrev_b32 v{VL}, 4, v0
s_lshl_b32 s45, s3, 10
s_add_u32 s46, s43, s45
s_add_u32 s46, s46, {KV}
s_mov_b32 m0, s45
s_and_b32 s19, s41, 7
s_lshl_b32 s19, s19, 3
s_add_u32 s19, s19, s3
v_and_b32 v1, 31, v0
v_lshrrev_b32 v2, 5, v0
v_bfe_u32 v85, v1, 2, 2
v_xor_b32 v85, v85, v2
v_lshlrev_b32 v85, 4, v85
v_lshl_add_u32 v{VA}, v1, 6, v85
v_add_u32 v{VA}, 1280, v{VA}
v_xor_b32 v{VA2}, 32, v{VA}
v_and_b32 v{VB}, 7, v1
v_lshlrev_b32 v{VB}, 4, v{VB}
v_and_b32 v85, 8, v1
v_add_u32 v{VB}, v85, v{VB}
v_and_b32 v85, 16, v1
v_lshl_add_u32 v{VB}, v85, 3, v{VB}
v_lshl_add_u32 v{VK}, v2, 8, v{VB}
v_add_u32 v{VB}, 1024, v{VB}
s_mul_i32 s44, s19, {TILE}
s_add_u32 s44, s44, s43
s_lshl_b32 s47, s19, 7
s_add_u32 s47, s47, {GV}
v_lshlrev_b32 v{VG}, 2, v1
v_mov_b32 v37, 0
s_waitcnt lgkmcnt(0)
s_cmp_lg_u32 s3, {lead}
s_cbranch_scc1 {Lj}s
global_load_dword v36, v37, s[6:7] sc1
{Lj}s:""")
    srd(a, 20, 16, WS_END)
    srd(a, 24, 4, 2048 * 1280)
    if map84:
        a("""s_and_b32 s60, s40, 3
s_lshl_b32 s60, s60, 3
s_lshr_b32 s42, s41, 2
s_add_u32 s60, s60, s42
s_and_b32 s61, s40, 4
s_and_b32 s42, s41, 3
s_add_u32 s61, s61, s42
s_lshl_b32 s42, s42, 1""")
    else:
        a("""s_lshl_b32 s60, s40, 2
s_lshr_b32 s42, s41, 3
s_add_u32 s60, s60, s42
s_and_b32 s61, s41, 7
s_mov_b32 s42, s61""")
    a(f"""s_add_u32 s75, s3, {"s42" if rot else "0"}
s_and_b32 s75, s75, 7
s_mul_i32 s48, s75, 6144
s_add_u32 s48, s48, {FH}
s_mul_i32 s71, s60, {4*FB}
s_add_u32 s71, s71, {AF}
s_add_u32 s62, s71, s48
s_mul_i32 s72, s61, {5*FB}
s_add_u32 s72, s72, {WF}
s_add_u32 s66, s72, s48
s_mul_i32 s76, s3, {STG}""")
    for j in range(1, 4):
        a(f"s_add_u32 s{62+j}, s{61+j}, {FB}")
    for j in range(1, 5):
        a(f"s_add_u32 s{66+j}, s{65+j}, {FB}")
    a(f"""s_mov_b32 s30, 0x000fffff
s_mov_b32 s31, 0x000fffff
v_cmp_eq_u32 vcc, 20, v1
v_mov_b32 v85, 0x3f803f80
v_mov_b32 v86, 0
v_cndmask_b32 v{V0}, v86, v85, vcc
v_mov_b32 v{Q8}, 0
v_mov_b32 v{Q8+1}, 0""")
    for i in range(1, 8):
        a(f"v_mov_b32 v{V0+i}, v{V0}")
    for i in range(16):
        a(f"v_mov_b32 v{O+i}, 0")
    for i in range(8):
        a(f"v_mov_b32 v{P+i}, 0")
    if warm:
        a(f"""s_and_b32 s48, s60, 3
v_lshl_add_u32 v252, v0, 2, s48
v_mul_u32_u24 v253, 205, v252
v_lshrrev_b32 v253, 12, v253
v_mul_u32_u24 v254, 20, v253
v_sub_u32 v254, v252, v254
v_cmp_gt_u32 vcc, 100, v252
v_mul_u32_u24 v253, {FB}, v253
v_lshl_add_u32 v252, v254, 7, v253
s_lshl_b32 s48, s75, 11
s_lshl_b32 s49, s75, 9
s_add_u32 s49, s49, {FX - 2048}
v_mov_b32 v253, s48
v_mov_b32 v255, s49
v_cmp_gt_u32 s[48:49], 16, v254
v_mov_b32 v254, -1
s_nop 0
v_cndmask_b32 v253, v255, v253, s[48:49]
v_add_u32 v252, v252, v253
v_cndmask_b32 v252, v254, v252, vcc""")
    stamp.mark(a, 1)
    a("s_waitcnt vmcnt(0)\ns_barrier")
    if stamp.TODEBUG is None: stamp.mark(a, 5)
    a(f"""s_cmp_lg_u32 s3, {lead}
s_cbranch_scc1 {Lj}d
s_mov_b32 s49, 0
{Lj}t:
v_readfirstlane_b32 s77, v36
s_add_u32 s49, s49, 1
s_cmp_ge_u32 s49, 0x40000
s_cbranch_scc1 {Lj}u
s_cmp_lg_u32 s77, 0
s_cbranch_scc1 {Lj}u
global_load_dword v36, v37, s[6:7] sc1
s_waitcnt vmcnt(0)
s_branch {Lj}t
{Lj}u:
v_mov_b32 v34, s77
s_lshl_b32 s48, s2, 2
s_add_u32 s48, s48, {FALL}
s_mov_b32 s50, {FQKV}
v_lshlrev_b32 v33, 11, v0
s_mov_b64 exec, 1
s_cmp_lt_u32 s74, 12
s_cbranch_scc1 {Lj}n
v_mov_b32 v35, 1
global_atomic_add v35, v37, v35, s[6:7] offset:128 sc0 sc1
s_waitcnt vmcnt(0)
v_readfirstlane_b32 s49, v35
s_cmp_lg_u32 s49, 98
s_cbranch_scc1 {Lj}n
s_mov_b64 exec, 0xffff
buffer_store_dword v34, v33, s[20:23], s50 offen sc1
s_mov_b64 exec, 1
global_store_dword v37, v37, s[6:7] offset:128 sc1
{Lj}n:
{'' if defer else 'buffer_store_dword v34, v37, s[20:23], s48 offen sc1'}
s_and_b32 s48, s2, 15
s_lshl_b32 s48, s48, 11
s_add_u32 s48, s48, {FQKV}
s_mov_b32 s49, 0
{Lj}:
buffer_load_dword v33, v37, s[20:23], s48 offen sc1
s_add_u32 s49, s49, 1
s_waitcnt vmcnt(0)
v_cmp_ne_u32 vcc, s77, v33
s_cmp_ge_u32 s49, 0x40000
s_cbranch_scc1 {Lj}x
s_cbranch_vccnz {Lj}
{Lj}x:
s_mov_b64 exec, -1
{Lj}d:
s_barrier""")
    stamp.mark(a, 2)
    if hold1:
        Lh = a.label("hold1")
        a(f"""s_waitcnt lgkmcnt(0)
s_add_u32 s101, s96, {hold1}
{Lh}:
s_memrealtime s[98:99]
s_waitcnt lgkmcnt(0)
s_cmp_lt_u32 s98, s101
s_cbranch_scc1 {Lh}""")
    a(f"""buffer_load_dwordx4 v{VL}, s[20:23], s46 offen {LD} lds
buffer_load_dwordx2 {vr(Q16,2)}, v{VK}, s[20:23], s44 offen {LD}
buffer_load_dwordx2 {vr(Q16+2,2)}, v{VK}, s[20:23], s44 offen offset:512 {LD}
s_mov_b32 exec_hi, 0
buffer_load_dwordx2 {vr(Q8,2)}, v{VB}, s[20:23], s44 offen {LD}
s_mov_b32 exec_hi, -1""")
    for i in range(3):
        a(f"s_add_u32 m0, m0, 8192\ns_add_u32 s46, s46, 8192\nbuffer_load_dwordx4 v{VL}, s[20:23], s46 offen {LD} lds")
    a(f"""v_lshl_add_u32 v{VB}, v2, 18, v{VB}
s_waitcnt vmcnt({2 if b1 == 3 else 0})
s_barrier""")
    hm(2)
    a(f"""ds_read2st64_b64 {vr(K16,4)}, v{VK} offset0:0 offset1:1
ds_read_b64 {vr(K8,2)}, v{VB}
s_waitcnt lgkmcnt(0)
{M16} {vr(S[0],16)}, {vr(K16,4)}, {vr(Q16,4)}, 0
{M8} {vr(S[0],16)}, {vr(K8,2)}, {vr(Q8,2)}, {vr(S[0],16)}
ds_read2st64_b64 {vr(K16,4)}, v{VK} offset0:5 offset1:6
ds_read_b64 {vr(K8,2)}, v{VB} offset:{TILE}
s_mov_b64 exec, s[30:31]
ds_read_b128 {vr(V0,4)}, v{VA}
ds_read_b128 {vr(V1,4)}, v{VA2}
s_mov_b64 exec, -1
s_nop 7
s_nop 3""")
    def kv():
        a(f"s_add_u32 m0, m0, 8192\ns_add_u32 s46, s46, 8192\nbuffer_load_dwordx4 v{VL}, s[20:23], s46 offen {LD} lds")
    wl = []
    for n in range(NFR, 54):
        i, c = n // 9, n % 9
        wl.append(f"s_add_u32 m0, s76, {1024*(n - NFR)}\ns_add_u32 s73, s{BB+c}, {1024*i}\nbuffer_load_dwordx4 v{VL}, s[20:23], s73 offen {LD} lds")
    pf = [bfrag(n, RING + 4 * n) for n in range(npre)]
    if pstep > 1:
        pf = sum([[x] + [''] * (pstep - 1) for x in pf], [])
    def pub_all():
        Lf = a.label("fall")
        a(f"""s_cmp_lg_u32 s3, {lead}
s_cbranch_scc1 {Lf}
s_lshl_b32 s48, s2, 2
s_add_u32 s48, s48, {FALL}
v_mov_b32 v85, s77
v_mov_b32 v86, 0
s_mov_b64 exec, 1
buffer_store_dword v85, v86, s[20:23], s48 offen sc1
s_mov_b64 exec, -1
{Lf}:""")
    def chk_all():
        La = a.label("alld")
        a(f"""s_cmp_lg_u32 s3, {lead}
s_cbranch_scc1 {La}d
s_mov_b32 s48, {FALL}
s_mov_b32 s49, 0
{La}:
buffer_load_dwordx4 v[88:91], v{VL}, s[20:23], s48 offen sc1
s_add_u32 s49, s49, 1
s_waitcnt vmcnt(0)
v_xor_b32 v88, s77, v88
v_xor_b32 v89, s77, v89
v_xor_b32 v90, s77, v90
v_xor_b32 v91, s77, v91
v_or3_b32 v88, v88, v89, v90
v_or_b32 v88, v88, v91
v_cmp_ne_u32 vcc, 0, v88
s_cmp_ge_u32 s49, 0x40000
s_cbranch_scc1 {La}d
s_cbranch_vccz {La}d
s_sleep {slp}
s_branch {La}
{La}d:""")
    post = defer == 'post'
    if post:
        pf0 = tall + 1
    base = 0
    for t in range(64):
        if t in prios:
            a(f"s_setprio {prios[t]}")
        if t in (23, 46):
            a(f"v_add_u32 v{VA}, {23*TILE}, v{VA}\nv_add_u32 v{VB}, {23*TILE}, v{VB}\nv_add_u32 v{VK}, {23*TILE}, v{VK}\nv_add_u32 v{VA2}, {23*TILE}, v{VA2}")
            base = t
        j0 = j1 = None
        if t < 8:
            j0 = j1 = kv
        elif post and 8 <= t < 13:
            import k1
            def hs(mi):
                so = "s78" if mi >= 8 else "s79"
                a(f"buffer_store_dwordx4 {vr(k1.hout(mi),4)}, v244, s[20:23], {so} offen offset:{128*(mi&1)} sc1")
                if mi & 1 and mi < 7:
                    a(f"s_add_u32 s79, s79, {2*FB}")
            j0 = (lambda m=2*(t-8): hs(m)); j1 = (lambda m=2*(t-8)+1: hs(m))
        elif post and t >= pf0:
            if pf: j1 = (lambda x=pf.pop(0): a(x))
            if pf and t < 42 and len(pf) > 62 - t: j0 = (lambda x=pf.pop(0): a(x))
        elif pf0 <= t < pf0 + len(pf):
            j1 = (lambda x=pf[t - pf0]: a(x))
        if TDEAD < t <= TDEAD + len(wl):
            j0 = (lambda x=wl[t - TDEAD - 1]: a(x))
        if warm and t == warm:
            assert j0 is None
            j0 = lambda: a(f"buffer_load_dword v253, v252, s[20:23], s72 offen {LD}")
        tile(a, t, base, j0, j1)
        if fused and 24 <= t < 40 and t % 2 == 0:
            Lt = a.label("tag2")
            a(f"s_cmp_lg_u32 s3, {(t - 24) // 2}\ns_cbranch_scc1 {Lt}\nv_mov_b32 v85, 0\nglobal_load_dword v87, v85, s[6:7] sc1\n{Lt}:")
        if t == TDEAD:
            a("s_barrier")
            a(f"v_mov_b32 v85, {RDY}\nv_mov_b32 v86, 0\nds_write_b32 v85, v86\nds_write_b32 v85, v86 offset:4")
        if t == b1:
            a("s_waitcnt vmcnt(14)" if b1 == 7 else "s_waitcnt vmcnt(6)")
            hm(5)
            a("s_barrier")
            if defer and not post:
                pub_all()
        if t == 15:
            if fused and not post:
                chk_all()
            a("s_waitcnt vmcnt(0)\ns_barrier")
            if post:
                pub_all()
            elif fused:
                a(f"buffer_load_dword v{VG}, v{VG}, s[20:23], s47 offen sc1")
            hm(6)
        if post and t == tall:
            chk_all()
            a(f"s_barrier\nbuffer_load_dword v{VG}, v{VG}, s[20:23], s47 offen sc1")
    assert (not pf) if post else pf0 + len(pf) <= 64
    a(f"""s_waitcnt lgkmcnt(0)
{M16} {vr(O,16)}, {vr(V0,4)}, {vr(P,4)}, {vr(O,16)}
{M16} {vr(O,16)}, {vr(V1,4)}, {vr(P+4,4)}, {vr(O,16)}""")
    Lfin = a.label("k2fin"); Lfb = a.label("k2fb")
    stamp.mark(a, 3)
    T = S[0]
    a(f"""s_mul_i32 s48, s19, {2*FB}
s_add_u32 s48, s48, {AF}
s_lshl_b32 s50, s18, 9
s_add_u32 s50, s50, s48
s_lshl_b32 s49, s18, 7
s_add_u32 s49, s49, s48
s_add_u32 s49, s49, {FX}
v_lshrrev_b32 v{T+4}, 4, v1
v_mul_u32_u24 v{T+4}, {FB}, v{T+4}
v_and_b32 v{T+5}, 15, v1
v_lshl_add_u32 v{T+6}, v{T+5}, 3, v{T+4}
v_lshl_add_u32 v{T+4}, v{T+5}, 4, v{T+4}
v_lshl_add_u32 v{T+7}, v2, 8, v{T+4}
s_lshr_b32 s51, s19, 3
s_lshl_b32 s51, s51, 12
s_lshl_b32 s48, s18, 2
s_add_u32 s51, s51, s48
s_add_u32 s51, s51, {FLG}
s_mov_b32 s54, {hex(f2u(2.0**100))}
s_mov_b32 s55, {hex(f2u(2.0**-40))}
s_nop 3
v_mov_b32 v{T}, v{O+8}
v_mov_b32 v{T+1}, v{O+8}
s_nop 1
v_permlane32_swap_b32 v{T}, v{T+1}""")
    a(f"v_add_f32 v{T+2}, abs(v{O}), abs(v{O+1})\nv_add_f32 v{T+3}, abs(v{O+2}), v{T+1}")
    for i in range(3, 12):
        r = T + 2 + (i & 1)
        a(f"v_add_f32 v{r}, abs(v{O+i}), v{r}")
    a(f"""v_add_f32 v{T+2}, v{T+2}, v{T+3}
v_cmp_nge_f32 s[56:57], v{T+1}, s55
v_cmp_nle_f32 vcc, v{T+2}, s54
s_or_b64 vcc, vcc, s[56:57]
s_cbranch_vccnz {Lfb}
{Lfin}:
v_rcp_f32 v{T+1}, v{T+1}
s_nop 0
v_mul_f32 v{T+1}, v{VG}, v{T+1}""")
    for i in range(12):
        a(f"v_mul_f32 v{O+i}, v{T+1}, v{O+i}")
    for i in range(6):
        a(f"v_cvt_pk_bf16_f32 v{T+8+i}, v{O+2*i}, v{O+2*i+1}")
    a(f"""buffer_store_dwordx4 {vr(T+8,4)}, v{T+7}, s[20:23], s50 offen {st_o}
s_mov_b32 exec_hi, 0
buffer_store_dwordx2 {vr(T+12,2)}, v{T+6}, s[20:23], s49 offen {st_o}
s_mov_b32 exec_hi, -1
s_setprio 0""")
    if yprio:
        Ly = a.label("yp")
        a(f"s_cmp_lt_u32 s3, 4\ns_cbranch_scc1 {Ly}\ns_setprio 1\n{Ly}:")
    a(f"""v_and_b32 v1, 15, v0
v_lshlrev_b32 v1, 2, v1
s_lshl_b32 s48, s60, 8
s_add_u32 s48, s48, {GV}""")
    for mi in range(4):
        a(f"buffer_load_dword v{4+mi}, v1, s[20:23], s48 offen offset:{64*mi} {LD}")
    a("s_waitcnt vmcnt(6)")
    if fused:
        a("v_readfirstlane_b32 s77, v87\ns_nop 1")
    a(f"""v_lshlrev_b32 v2, 2, v0
v_mov_b32 v1, {"s77" if fused else "1"}
s_lshr_b32 s48, s60, 2
s_lshl_b32 s48, s48, 12
s_add_u32 s48, s48, {FLG}""")
    out = ["st", "st"] + ["g"] * 4
    def wait_for(pred):
        idx = [i for i, x in enumerate(out) if pred(x)]
        if not idx:
            return
        a(f"s_waitcnt vmcnt({len(out) - 1 - max(idx)})")
        del out[:max(idx) + 1]
    reg = {n: RING + 4 * n for n in range(NFR)}
    Lw = a.label("k2poll"); Lw2 = a.label("k2polld")
    tmp = PTMP
    WR = []; XWs = []; pool = []; wq = []
    def refill(i):
        free = pool + [reg[n] for n in range(9 * i, 9 * i + 9)]
        del pool[:]
        if i == 0:
            a(f"v_add_u32 v{tmp+2}, s76, v{VL}\nv_lshlrev_b32 v{tmp+3}, 3, v0")
        while free and len(reg) < 54:
            n = len(reg); reg[n] = free.pop(0)
            a(f"ds_read_b128 {vr(reg[n],4)}, v{tmp+2} offset:{1024*(n - NFR)}")
        publish(i)
        if i < wat:
            pool.extend(free)
            return []
        if i == wat:
            for k in range(10):
                r = free.pop(0); WR.append(r)
                pre = f"s_lshl_b32 s73, s75, 11\ns_add_u32 s73, s73, s72\n" if k == 0 else f"s_add_u32 s73, s73, {FB}\n" if k % 2 == 0 else ""
                wq.append(pre + f"buffer_load_dwordx4 {vr(r,4)}, v{VL}, s[20:23], s73 offen offset:{1024*(k&1)} {LD}")
            XWs.extend(free[:3]); del free[:3]
            for j in range(5):
                pre = f"s_lshl_b32 s73, s75, 9\ns_add_u32 s73, s73, s72\ns_add_u32 s73, s73, {FX}\n" if j == 0 else f"s_add_u32 s73, s73, {FB}\n"
                wq.append(pre + f"buffer_load_dwordx2 {vr(XWs[j//2] + 2*(j%2),2)}, v{tmp+3}, s[20:23], s73 offen {LD}")
            while wq and not wgap:
                a(wq.pop(0)); out.append("w")
        return free
    def await_o(WR, AR, XW, XA, tmp):
        a(f"""s_lshl_b32 s52, s75, 11
s_add_u32 s52, s52, s71
s_lshl_b32 s49, s75, 9
s_add_u32 s49, s49, s71
s_add_u32 s49, s49, {FX}
s_lshl_b32 s53, s75, 2
s_lshl_b32 s53, 15, s53
v_mov_b32 v{tmp}, {RDY}
s_mov_b32 s55, 0
s_cmp_lg_u32 s3, {lead2}
s_cbranch_scc1 {Lw2}""")
        PR = spare[16]
        def poll(L, Lx, want):
            def look(reg):
                return f"""v_cmp_eq_u32 vcc, s77, v{reg}
s_add_u32 s55, s55, 1
s_cmp_ge_u32 s55, {1 if nosync else 0x40000}
s_cselect_b32 s54, -1, vcc_lo
v_mov_b32 v{tmp+1}, s54
ds_write_b32 v{tmp}, v{tmp+1}
s_and_b32 s56, s54, {want}
s_cmp_lg_u32 s56, {want}"""
            if not ppoll:
                a(f"""s_mov_b32 exec_hi, 0
{L}:
buffer_load_dword v1, v2, s[20:23], s48 offen sc1
s_waitcnt vmcnt(0)
{look(1)}
s_cbranch_scc1 {L}
s_mov_b32 exec_hi, -1""")
            else:
                a(f"""s_mov_b32 exec_hi, 0
buffer_load_dword v{PR}, v2, s[20:23], s48 offen sc1
s_sleep 8
{L}:
buffer_load_dword v{PR+1}, v2, s[20:23], s48 offen sc1
s_waitcnt vmcnt(1)
{look(PR)}
s_cbranch_scc0 {L}e
buffer_load_dword v{PR}, v2, s[20:23], s48 offen sc1
s_waitcnt vmcnt(1)
{look(PR+1)}
s_cbranch_scc1 {L}
{L}e:
s_mov_b32 exec_hi, -1""")
        poll(Lw, None, "s53")
        a(f"""s_branch {Lw2}x
{Lw2}:
ds_read_b32 v1, v{tmp}
s_add_u32 s55, s55, 1
s_waitcnt lgkmcnt(0)
v_readfirstlane_b32 s54, v1
s_cmp_ge_u32 s55, 0x400000
s_cselect_b32 s54, -1, s54
s_and_b32 s54, s54, s53
s_cmp_eq_u32 s54, s53
s_cbranch_scc1 {Lw2}x
s_sleep 1
s_branch {Lw2}
{Lw2}x:""")
        tm(1)
        for mi in range(4):
            if mi == 2 and osplit:
                selectors()
            for k in range(2):
                a(f"buffer_load_dwordx4 {vr(AR[4*k+mi],4)}, v{VL}, s[20:23], s52 offen offset:{1024*k} sc1")
            a(f"buffer_load_dwordx2 {vr(XA[mi],2)}, v{tmp+3}, s[20:23], s49 offen sc1")
            if mi < 3:
                a(f"s_add_u32 s52, s52, {FB}\ns_add_u32 s49, s49, {FB}")
            out.extend(["o"] * 3)
        Lr = a.label("k2rest")
        a(f"""s_cmp_lg_u32 s3, {lead2}
s_cbranch_scc1 {Lr}x
s_cmp_eq_u32 s54, -1
s_cbranch_scc1 {Lr}x""")
        poll(Lr, None, "-1")
        a(f"{Lr}x:")
    def publish(i):
        for pos, br in ((pubo, "s_cbranch_scc0"), (puby, "s_cbranch_scc1")):
            if i != pos:
                continue
            n = len(out) - 1 - max(k for k, x in enumerate(out) if x == "st")
            Lnp = a.label("k2np")
            a(f"""s_cmp_lt_u32 s3, 4
{br} {Lnp}
s_setprio 0
s_waitcnt vmcnt({n})
s_mov_b64 exec, 1
v_mov_b32 v{PT}, {RDY}
v_mov_b32 v{PT+1}, 1
ds_add_rtn_u32 v{PT+1}, v{PT}, v{PT+1} offset:4
s_waitcnt lgkmcnt(0)
v_readfirstlane_b32 s54, v{PT+1}
s_cmp_lg_u32 s54, 7
s_cbranch_scc1 {Lnp}y
buffer_store_dword v1, v2, s[20:23], s51 offen sc1
{Lnp}y:
s_mov_b64 exec, -1""")
            tm(6)
            a(f"{Lnp}:")
    PT = PTMP
    publish(-1)
    spare = []
    for i in range(6):
        if i == 4:
            a("s_waitcnt lgkmcnt(0)")
        for mi in range(4):
            for ni in range(5):
                d = GA + 4 * (mi * 5 + ni)
                c = "0" if i == 0 else vr(d, 4)
                a(f"{MM} {vr(d,4)}, {vr(reg[9*i+4+ni],4)}, {vr(reg[9*i+mi],4)}, {c}")
                if wq and (mi * 5 + ni) % wgap == wgap - 1:
                    a(wq.pop(0)); out.append("w")
        spare += refill(i)
    assert not wq
    XW = [XWs[j // 2] + 2 * (j % 2) for j in range(5)]
    AR = spare[:8]; XA = [spare[8 + k // 2] + 2 * (k % 2) for k in range(4)]
    spare = spare[10:]
    if stamp.TODEBUG is None and (tailmarks or not stamp.REAL): stamp.mark(a, 4)
    wait_for(lambda x: x == "g")
    a("s_nop 4")
    for mi in range(4):
        a(f"v_sub_f32 v{tmp}, 1.0, v{4+mi}\nv_mov_b32 v{tmp+1}, v{tmp}")
        for q in range(10):
            d = GA + 20 * mi + 2 * q
            a(f"v_pk_mul_f32 {vr(d,2)}, {vr(d,2)}, {vr(tmp,2)}")
    SS = STG + 64
    SELR = spare[:4]
    def selectors():
        a(f"""s_and_b32 s57, s3, 3
s_lshl_b32 s57, s57, 6
s_add_u32 s57, s57, s76
v_lshlrev_b32 v4, 3, v0
v_add_u32 v4, s57, v4
v_bfe_u32 v5, v0, 2, 2
v_mul_u32_u24 v5, {SS}, v5
v_lshrrev_b32 v6, 4, v0
v_lshl_add_u32 v5, v6, 5, v5
v_and_b32 v7, 3, v0
v_lshl_add_u32 v5, v7, 3, v5
s_lshl_b32 s57, s3, 9
v_add_u32 v5, s57, v5
v_and_b32 v7, 15, v0
v_sub_u32 v6, v7, v6
v_mov_b32 v1, 0x3f803f80""")
        for p in range(4):
            a(f"v_cmp_eq_u32 vcc, {4*p}, v6\ns_nop 1\nv_cndmask_b32 v{SELR[p]}, 0, v1, vcc")
            for q in range(1, 4):
                a(f"v_mov_b32 v{SELR[p]+q}, v{SELR[p]}")
    await_o(WR, AR, XW, XA, tmp)
    assert out[-12:] == ["o"] * 12
    if not osplit:
        selectors()
    def flush(g):
        d = GA + 4 * g
        a(f"v_cvt_pk_bf16_f32 v{d}, v{d}, v{d+1}\nv_cvt_pk_bf16_f32 v{d+1}, v{d+2}, v{d+3}\nds_write_b64 v4, {vr(d,2)} offset:{512*g}")
    for mi in range(4):
        for k in range(3):
            a(f"s_waitcnt vmcnt({11 - 3*mi - k})" + (" lgkmcnt(0)" if mi + k == 0 else ""))
            if am == 3 * mi + k: tm(5)
            for ni in range(5):
                d = GA + 4 * (mi * 5 + ni)
                if k < 2:
                    a(f"{MM} {vr(d,4)}, {vr(WR[2*ni+k],4)}, {vr(AR[4*k+mi],4)}, {vr(d,4)}")
                else:
                    a(f"{MX} {vr(d,4)}, {vr(XW[ni],2)}, {vr(XA[mi],2)}, {vr(d,4)}")
                if mi and k == 1:
                    flush(5 * (mi - 1) + ni)
    tm(2)
    a("s_nop 3")
    for ni in range(5):
        flush(15 + ni)
    if am is None: tm(5)
    a(f"""v_lshrrev_b32 v1, 4, v0
v_lshl_add_u32 v1, v7, 2, v1
v_and_b32 v2, 15, v1
v_mul_u32_u24 v2, 1280, v2
v_lshrrev_b32 v1, 4, v1
v_lshl_add_u32 v7, v1, 3, v2
s_mul_i32 s48, s60, {64*1280}
s_mul_i32 s49, s61, 160
s_add_u32 s48, s48, s49""")
    for u in range(3):
        a(f"""s_add_u32 s49, s3, {8*u}
s_mul_i32 s50, s49, 205
s_lshr_b32 s50, s50, 10
s_mul_i32 s{52+u}, s50, {16*1280 - 5*32}
s_lshl_b32 s49, s49, 5
s_add_u32 s{52+u}, s{52+u}, s49
s_add_u32 s{52+u}, s{52+u}, s48""")
    a("s_waitcnt lgkmcnt(0)\ns_barrier")
    Lo = a.label("k2o")
    RB = spare[4]
    assert spare[4:16] == [RB + 4 * i for i in range(12)] or True
    RBs = spare[4:16]
    def rd(u):
        for p in range(4):
            for hf in range(2):
                a(f"ds_read_b64_tr_b16 {vr(RBs[4*u+p] + 2*hf, 2)}, v5 offset:{4096*u + 128*p + 4*STG*hf}")
    def mm(u, pend):
        for p in range(4):
            a(f"s_waitcnt lgkmcnt({min(15, pend + 6 - 2*p)})")
            c = "0" if p == 0 else vr(GA + 4 * u, 4)
            a(f"{MM} {vr(GA+4*u,4)}, {vr(RBs[4*u+p],4)}, {vr(SELR[p],4)}, {c}")
    def fin(u):
        r = GA + 4 * u
        a(f"v_cvt_pk_bf16_f32 v{r}, v{r}, v{r+1}")
        a(f"v_cvt_pk_bf16_f32 v{r+1}, v{r+2}, v{r+3}")
        a(f"buffer_store_dwordx2 {vr(r,2)}, v7, s[24:27], s{52+u} offen {st_out}")
    rd(0); rd(1)
    mm(0, 8)
    a(f"s_cmp_ge_u32 s3, 4\ns_cbranch_scc1 {Lo}")
    rd(2)
    mm(1, 8)
    a("s_nop 1")
    fin(0)
    mm(2, 0)
    fin(1)
    a("s_nop 4")
    fin(2)
    stamp.flush(a, 0 if fused else 1, 4 if not stamp.ENABLED else 7, 0, drain=False)
    a("s_endpgm")
    a(f"{Lo}:")
    mm(1, 0)
    fin(0)
    a("s_nop 4")
    fin(1)
    stamp.flush(a, 0 if fused else 1, 4 if not stamp.ENABLED else 7, 0, drain=False)
    a("s_endpgm")
    NM = S[1]
    Lp1 = a.label("k2p1"); Lp2 = a.label("k2p2")
    a(f"""{Lfb}:
v_bfe_u32 v85, v1, 2, 2
v_xor_b32 v85, v85, v2
v_lshlrev_b32 v85, 4, v85
v_lshl_add_u32 v{VA}, v1, 6, v85
v_add_u32 v{VA}, 1280, v{VA}
v_xor_b32 v{VA2}, 32, v{VA}
v_and_b32 v{VB}, 7, v1
v_lshlrev_b32 v{VB}, 4, v{VB}
v_and_b32 v85, 8, v1
v_add_u32 v{VB}, v85, v{VB}
v_and_b32 v85, 16, v1
v_lshl_add_u32 v{VB}, v85, 3, v{VB}
v_lshl_add_u32 v{VK}, v2, 8, v{VB}
v_add_u32 v{VB}, 1024, v{VB}
s_add_u32 s46, s43, {KV}
s_mov_b32 s37, 0
v_mov_b32 v85, 0xff7fffff
{Lp1}:
buffer_load_dwordx2 {vr(K16,2)}, v{VK}, s[20:23], s46 offen {LD}
buffer_load_dwordx2 {vr(K16+2,2)}, v{VK}, s[20:23], s46 offen offset:512 {LD}
buffer_load_dwordx2 {vr(K8,2)}, v{VB}, s[20:23], s46 offen {LD}
s_waitcnt vmcnt(0)
{M16} {vr(S[0],16)}, {vr(K16,4)}, {vr(Q16,4)}, 0
{M8} {vr(S[0],16)}, {vr(K8,2)}, {vr(Q8,2)}, {vr(S[0],16)}
s_nop 7
s_nop 7""")
    for i in range(8):
        a(f"v_max3_f32 v85, v85, v{S[0]+2*i}, v{S[0]+2*i+1}")
    a(f"""s_add_u32 s46, s46, {TILE}
s_add_u32 s37, s37, 1
s_cmp_lt_u32 s37, 64
s_cbranch_scc1 {Lp1}
v_mov_b32 v86, v85
s_nop 1
v_permlane32_swap_b32 v85, v86
s_nop 1
v_max_f32 v85, v85, v86""")
    for i in range(16):
        a(f"v_sub_f32 v{NM+i}, 0, v85")
        a(f"v_mov_b32 v{O+i}, 0")
    a(f"""s_add_u32 s46, s43, {KV}
s_mov_b32 s37, 0
{Lp2}:
buffer_load_dwordx2 {vr(K16,2)}, v{VK}, s[20:23], s46 offen {LD}
buffer_load_dwordx2 {vr(K16+2,2)}, v{VK}, s[20:23], s46 offen offset:512 {LD}
buffer_load_dwordx2 {vr(K8,2)}, v{VB}, s[20:23], s46 offen {LD}
s_mov_b64 exec, s[30:31]
buffer_load_dwordx4 {vr(V0,4)}, v{VA}, s[20:23], s46 offen {LD}
buffer_load_dwordx4 {vr(V1,4)}, v{VA2}, s[20:23], s46 offen {LD}
s_mov_b64 exec, -1
s_waitcnt vmcnt(0)
{M16} {vr(S[0],16)}, {vr(K16,4)}, {vr(Q16,4)}, {vr(NM,16)}
{M8} {vr(S[0],16)}, {vr(K8,2)}, {vr(Q8,2)}, {vr(S[0],16)}
s_nop 7
s_nop 7""")
    for i in range(16):
        a(f"v_exp_f32 v{S[0]+i}, v{S[0]+i}")
    a("s_nop 0")
    for i in range(8):
        a(f"v_cvt_pk_bf16_f32 v{P+i}, v{S[0]+2*i}, v{S[0]+2*i+1}")
    a(f"""s_nop 1
{M16} {vr(O,16)}, {vr(V0,4)}, {vr(P,4)}, {vr(O,16)}
{M16} {vr(O,16)}, {vr(V1,4)}, {vr(P+4,4)}, {vr(O,16)}
s_add_u32 s46, s46, {TILE}
s_add_u32 s37, s37, 1
s_cmp_lt_u32 s37, 64
s_cbranch_scc1 {Lp2}
s_nop 7
s_nop 7
v_mov_b32 v{T}, v{O+8}
v_mov_b32 v{T+1}, v{O+8}
v_lshrrev_b32 v{T+4}, 4, v1
v_mul_u32_u24 v{T+4}, {FB}, v{T+4}
v_and_b32 v{T+5}, 15, v1
v_lshl_add_u32 v{T+6}, v{T+5}, 3, v{T+4}
v_lshl_add_u32 v{T+4}, v{T+5}, 4, v{T+4}
v_lshl_add_u32 v{T+7}, v2, 8, v{T+4}
v_permlane32_swap_b32 v{T}, v{T+1}
s_nop 1
s_branch {Lfin}
{Lend}:
s_endpgm
code_end:""")
    kernel_desc(a, name, 256, 102 if stamp.ENABLED else 96)
```

```python
from common import *
import stamp

SLOT = 53248
NSLOT = 3
K1_LDS = NSLOT * SLOT
NST = 10
XR = 8
WR = 48
ACC = 80
VXB, VXS, VX = 240, 241, 242
VWB, VW = 243, 247
VEP = 251
NV = 256
MM = "v_mfma_f32_16x16x32_bf16"

def acc(mi, nj):
    return ACC + (mi * 4 + nj) * 4

UNR = [1]
HALF0 = [True]
def hout(mi):
    return 240 if mi == 0 else ACC + 16 * mi

def xoffs(mi, perm):
    return 4096 * (mi >> 1) + 1024 * (mi & 1)

def xread(mi, perm):
    return f"ds_read_b128 {vr(XR+4*mi,4)}, v{VX} offset:{xoffs(mi, perm)}"

def wreads(buf, ks):
    r = []
    for nj in range(4):
        for hf in range(2):
            r.append(f"ds_read_b64_tr_b16 {vr(WR+16*buf+4*nj+2*hf,2)}, v{VW+nj} offset:{8192*ks + 1024*hf}")
    return r

def step(a, buf, swap, ks_next, pend, pre=None, mid=None):
    w = [(("w", i), r) for i, r in enumerate(wreads(1 - buf, ks_next))]
    x = [(("x", mi), xread(mi, swap)) for mi in range(10)]
    sched = {}
    if mid is None:
        for mi in range(10): sched[(mi, 3)] = x[mi]
        for i in range(8): sched[(i, 1)] = w[i]
    else:
        sched[(1, 3)] = x[0]; sched[(2, 1)] = x[1]
        for mi in range(2, 10): sched[(mi, 3)] = x[mi]
        for i in range(7): sched[(3 + i, 1)] = w[i]
        sched[(9, 0)] = w[6]; sched[(8, 1)] = w[5]; sched[(9, 1)] = w[7]
    pre = list(pre or [])
    old = list(pend); new = []
    def need(pred):
        idx = [i for i, t in enumerate(old) if pred(t)]
        if idx:
            n = len(old) - 1 - max(idx) + len(new)
            k = min(n, 15)
            a(f"s_waitcnt lgkmcnt({k})")
            keep = max(0, k - len(new))
            del old[:len(old) - min(keep, len(old))]
    for mi in range(10):
        for nj in range(4):
            if mi == 0:
                need(lambda t: t == ("w", 2 * nj) or t == ("w", 2 * nj + 1) or t == ("x", 0))
            elif nj == 0 and ("x", mi) in old:
                need(lambda t: t[0] == "x" and t[1] <= min(mi + 3, 9))
            W = vr(WR + 16 * buf + 4 * nj, 4); X = vr(XR + 4 * mi, 4)
            A, B = (X, W) if swap else (W, X)
            c = vr(acc(mi, nj), 4)
            a(f"{MM} {c}, {A}, {B}, {c}")
            if mi == 1 and nj == 3 and mid is not None:
                assert not pre
                mid(); old = []
            if (mi, nj) in sched:
                t, r = sched[(mi, nj)]
                a(r); new.append(t)
            elif pre:
                a(pre.pop(0))
                if pre and mid is not None:
                    a(pre.pop(0))
    return new

def mainloop(a, swap):
    L = a.label("k1loop"); Lnb = a.label("k1nb")
    a(f"""s_mov_b32 s36, 0
s_mov_b32 s37, 0
v_mov_b32 v{VXS}, v{VXB}
v_mov_b32 v{VX}, v{VXB}""")
    for nj in range(4):
        a(f"v_mov_b32 v{VW+nj}, v{VWB+nj}")
    stamp.mark(a, 1)
    a("s_barrier")
    stamp.mark(a, 4 if stamp.TODEBUG is not None else 2)
    pre = [f"s_add_u32 s36, s36, {SLOT}", f"s_cmp_eq_u32 s36, {SLOT*NSLOT}", "s_cselect_b32 s36, 0, s36", "s_add_u32 s37, s37, 1",
           f"v_add_u32 v{VXS}, s36, v{VXB}", f"v_add_u32 v{VX}, s36, v{VXB}"] + [f"v_add_u32 v{VW+nj}, s36, v{VWB+nj}" for nj in range(4)] + [f"s_cmp_eq_u32 s37, {NST}"]
    def mid():
        a(f"""s_waitcnt lgkmcnt(0)
s_cbranch_scc1 {Lnb}
s_barrier
{Lnb}:""")
    scratch = Asm()
    entry = step(scratch, 1, swap, 0, [], pre, lambda: None)
    rd = {("x", mi): xread(mi, swap) for mi in range(10)}
    rd.update({("w", i): r for i, r in enumerate(wreads(0, 0))})
    for t in entry:
        a(rd[t])
    if HALF0[0]:
        bar = lambda: a("s_waitcnt lgkmcnt(0)\ns_barrier")
        p = step(a, 0, swap, 1, entry, [f"v_xor_b32 v{VX}, 64, v{VXS}"], bar)
        p = step(a, 1, swap, 0, p, pre, bar)
        assert p == entry and (NST - 1) % UNR[0] == 0
    a(".p2align 5")
    a(f"{L}:")
    for u in range(UNR[0]):
        if u < UNR[0] - 1:
            m = lambda: a("s_waitcnt lgkmcnt(0)\ns_barrier")
        else:
            m = mid
        p = step(a, 0, swap, 1, entry, [f"v_xor_b32 v{VX}, 64, v{VXS}"])
        p = step(a, 1, swap, 0, p, pre, m)
        assert p == entry, p
    a(f"""s_cmp_lg_u32 s37, {NST}
s_cbranch_scc1 {L}
s_waitcnt lgkmcnt(0)
s_nop 7""")
    stamp.mark(a, 5 if stamp.TODEBUG is not None else 4 if stamp.REAL else 3)

def gen_k1(a, name, rot_enable="xcdw", nvar=3, nt_x="", nt_w="", st_h="sc1", st_qk="sc1", st_v="sc1", st_w="sc1", wb=False, codepf=True, fast=True, delay=None, mix=True, pfd=0, fused=False, defer=False, unr=3, vperm=False, clus=False, ldfirst=True, earlyx=True, half0=True, spf=0, spf0=2, gudelay=0, help=0, helpx=False, lprio=3, vmul=1, itlb=0, pads={'compute': 0x224, 'v': 0x800}):
    def gap(key):
        if key in pads:
            a(".p2align 12")
            if pads[key]:
                a(f".fill {pads[key]//4}, 4, 0xbf800000")
    HALF0[0] = half0
    UNR[0] = unr
    def done():
        if fused:
            a(f"s_branch {name}_join")
        else:
            stamp.flush(a, 0, 4, 0)
            a("s_endpgm")
    kernel_head(a, name)
    Lend = f"{name}_end"
    a(f"s_cmp_ge_u32 s2, 256\ns_cbranch_scc1 {Lend}")
    stamp.init(a)
    if delay:
        mask, ticks = delay
        a(f"""s_and_b32 s40, s2, 7
s_lshr_b32 s41, {mask}, s40
s_bitcmp1_b32 s41, 0
s_cbranch_scc0 {name}_nodelay
s_memrealtime s[42:43]
s_waitcnt lgkmcnt(0)
s_add_u32 s44, s42, {ticks}
{name}_dl:
s_memrealtime s[42:43]
s_waitcnt lgkmcnt(0)
s_cmp_lt_u32 s42, s44
s_cbranch_scc1 {name}_dl
{name}_nodelay:""")
    a(f"""s_load_dwordx4 s[4:7], s[0:1], 0
s_load_dwordx2 s[8:9], s[0:1], 16
s_load_dwordx4 s[12:15], s[0:1], 32
s_load_dwordx2 s[10:11], s[0:1], 48
s_load_dwordx2 s[16:17], s[0:1], 80
s_load_dwordx2 s[78:79], s[0:1], 56
v_lshrrev_b32 v1, 6, v0
v_and_b32 v0, 63, v0
v_readfirstlane_b32 s3, v1
s_and_b32 s40, s2, 7
s_mov_b32 s55, s3
s_lshl_b32 s40, s40, 5
s_lshr_b32 s41, s2, 3
s_add_u32 s38, s40, s41
s_cmp_eq_u32 s38, 255
s_cbranch_scc1 {name}_idle
s_mul_i32 s42, s38, 1009
s_lshr_b32 s42, s42, 16
s_mul_i32 s43, s42, 65
s_sub_u32 s43, s38, s43
s_mul_i32 s18, s43, 205
s_lshr_b32 s18, s18, 10
s_mul_i32 s39, s18, 5
s_sub_u32 s39, s43, s39
s_cmp_lt_u32 s38, 235
s_cbranch_scc1 {name}_dec
s_sub_u32 s43, s38, 235
s_lshr_b32 s18, s43, 2
s_add_u32 s18, s18, 8
s_and_b32 s39, s43, 3
{name}_dec:
s_mul_i32 s19, s42, 3
s_lshl_b32 s43, s42, 1
s_add_u32 s43, s43, 9
s_cmp_lt_u32 s39, 3
s_cselect_b32 s19, s19, s43
s_add_u32 s19, s19, s39
s_cmp_ge_u32 s3, 4
{"s_cbranch_scc0 " + name + "_compute" if ldfirst else "s_cbranch_scc1 " + name + "_loader"}""")
    mark_c = len(a.lines)
    gap("compute")
    a(f"{name}_compute:")
    if codepf:
        a(f"""s_cmp_lg_u32 s3, 0
s_cbranch_scc1 {name}_nocp
s_getpc_b64 s[56:57]
{name}_pc:
s_sub_u32 s56, s56, {name}_pc-{name}
s_subb_u32 s57, s57, 0
{chr(10).join(f"s_load_dword s60, s[56:57], {4096*k}" for k in range(1, itlb + 1))}
s_lshl_b32 s58, s41, 11
v_lshlrev_b32 v1, 7, v0
v_add_u32 v1, s58, v1
s_mov_b32 s59, code_end-{name}
v_cmp_gt_u32 vcc, s59, v1
s_and_b64 exec, vcc, 0xffff
s_cbranch_execz {name}_cpx
global_load_dword v255, v1, s[56:57]
{name}_cpx:
s_mov_b64 exec, -1
{name}_nocp:""")
    if fused:
        a(f"""s_lshl_b32 s56, s2, 3
s_add_u32 s56, s56, s3
s_cmp_lg_u32 s56, 1
s_cbranch_scc1 {name}_notag
s_load_dwordx2 s[56:57], s[0:1], 72
s_memrealtime s[58:59]
v_mov_b32 v1, 0
s_waitcnt lgkmcnt(0)
s_or_b32 s58, s58, 1
v_mov_b32 v2, s58
s_mov_b64 exec, 1
global_store_dword v1, v2, s[56:57] sc1
s_mov_b64 exec, -1
{name}_notag:""")
    a(f"""v_and_b32 v1, 15, v0
v_lshrrev_b32 v2, 4, v0
v_bfe_u32 v3, v0, 2, 2
v_lshl_add_u32 v6, v2, 3, v3
v_lshlrev_b32 v6, 8, v6
v_and_b32 v4, 3, v0
v_lshl_add_u32 v6, v4, 3, v6
v_and_b32 v5, 1, v2
v_lshl_add_u32 v5, v5, 2, v3
v_lshrrev_b32 v3, 1, v1
v_xor_b32 v3, v3, v2
v_lshlrev_b32 v3, 4, v3
v_and_b32 v4, 8, v1
v_lshl_add_u32 v3, v1, 7, v3
v_lshl_add_u32 v{VXB}, v4, 7, v3
s_mul_i32 s46, s18, 5
s_mov_b32 s47, 5
s_cmp_eq_u32 s18, 12
s_cmov_b32 s47, 4
s_cmp_eq_u32 s19, 19
s_cbranch_scc1 {name}_spec
s_lshl_b32 s45, s3, 1
v_xor_b32 v5, s45, v5
v_lshl_add_u32 v6, v5, 5, v6
v_add_u32 v{VWB}, 20480, v6
v_xor_b32 v{VWB+1}, 32, v{VWB}
v_add_u32 v{VWB+2}, 16384, v{VWB}
v_add_u32 v{VWB+3}, 16384, v{VWB+1}
s_sub_u32 s48, s19, 17
s_lshl_b32 s48, s48, 8
s_lshl_b32 s49, s3, 5
s_add_u32 s48, s48, s49
s_movk_i32 s49, 128
s_branch {name}_cont
{name}_spec:
s_and_b32 s45, s3, 1
s_lshl_b32 s48, s45, 6
s_add_u32 s48, s48, 512
s_lshl_b32 s45, s45, 2
v_xor_b32 v5, s45, v5
v_lshl_add_u32 v6, v5, 5, v6
v_add_u32 v{VWB}, 32768, v6
v_xor_b32 v{VWB+1}, 32, v{VWB}
v_xor_b32 v{VWB+2}, 64, v{VWB}
v_xor_b32 v{VWB+3}, 96, v{VWB}
s_lshr_b32 s45, s3, 1
s_lshl_b32 s46, s18, 3
s_lshl_b32 s49, s45, 2
s_add_u32 s46, s46, s49
s_lshl_b32 s45, s45, 14
v_add_u32 v{VXB}, s45, v{VXB}
s_mov_b32 s47, 4
s_mov_b32 s49, 32
{name}_cont:""")
    for i in range(4):
        a(f"v_mov_b32 v{VEP+i}, 0")
    for i in range(160):
        a(f"v_mov_b32 v{ACC+i}, 0")
    a("s_waitcnt lgkmcnt(0)")
    srd(a, 20, 16, WS_END)
    a(f"""s_cmp_ge_u32 s19, 17
s_cbranch_scc1 {name}_v
s_cmp_lt_u32 s19, 12
s_cbranch_scc1 {name}_loop""")
    a(f"{name}_qk:")
    c = 1.4426950408889634 * (20.0 ** -0.5)
    a(f"""s_sub_u32 s48, s19, 12
s_lshl_b32 s48, s48, 6
s_lshl_b32 s49, s3, 3
s_add_u32 s48, s48, s49
s_add_u32 s49, s48, 32""")
    for sd in range(2):
        a(f"""s_cmp_lt_u32 s{48+sd}, 160
s_cselect_b32 s{52+sd}, {hex(f2u(c))}, 1.0
s_cselect_b32 s{50+sd}, {QF}, {KV}
s_cselect_b32 s54, 0, 160
s_sub_u32 s{48+sd}, s{48+sd}, s54""")
    a(f"""v_lshlrev_b32 v11, 4, v1
s_mov_b32 s54, {HEADB}""")
    for sd in range(2):
        for j in range(2):
            if True:
                e = VEP + sd * 2 + j
                a(f"""v_add_u32 v8, s{48+sd}, v2
v_add_u32 v8, {4*j}, v8
v_mul_u32_u24 v9, 205, v8
v_lshrrev_b32 v9, 10, v9
v_mul_u32_u24 v12, 5, v9
v_sub_u32 v8, v8, v12
v_lshrrev_b32 v12, 1, v8
v_and_b32 v13, 1, v8
v_lshl_add_u32 v13, v13, 1, v12
v_cmp_eq_u32 vcc, 4, v8
v_mad_u32_u24 v9, v9, s54, v11
v_add_u32 v9, s{50+sd}, v9
v_cndmask_b32 v12, v13, v8, vcc
v_lshlrev_b32 v12, 8, v12
v_add_u32 v{e}, v9, v12""")
    a(f"{name}_loop:")
    mainloop(a, False)
    a(f"s_cmp_lt_u32 s19, 12\ns_cbranch_scc1 {name}_gu_epi")
    a(f"""v_mov_b32 v8, s52
v_mov_b32 v9, s52
v_mov_b32 v10, s53
v_mov_b32 v11, s53
s_mul_i32 s49, s46, {TILE}""")
    Ldq = f"{name}_qk_done"
    for p in range(5):
        if p == 4:
            a(f"s_cmp_eq_u32 s47, 4\ns_cbranch_scc1 {Ldq}")
        for nj in range(4):
            sc = 8 + 2 * (nj >> 1)
            r, r2 = acc(2 * p, nj), acc(2 * p + 1, nj)
            for x in (r, r + 2, r2, r2 + 2):
                a(f"v_pk_mul_f32 {vr(x,2)}, {vr(x,2)}, {vr(sc,2)}")
            a(f"""v_cvt_pk_bf16_f32 v{r}, v{r}, v{r+1}
v_cvt_pk_bf16_f32 v{r+1}, v{r+2}, v{r+3}
v_cvt_pk_bf16_f32 v{r+2}, v{r2}, v{r2+1}
v_cvt_pk_bf16_f32 v{r+3}, v{r2+2}, v{r2+3}
buffer_store_dwordx4 {vr(r,4)}, v{VEP+nj}, s[20:23], s49 offen {st_qk}""")
        if p < 4:
            a(f"s_add_u32 s49, s49, {TILE}")
    a(f"{Ldq}:")
    if wb:
        stamp.mark(a, 5)
        a(f"s_waitcnt vmcnt(0)\ns_cmp_lg_u32 s3, 0\ns_cbranch_scc1 {Ldq}x\nbuffer_wbl2 sc1\n{Ldq}x:")
    done()
    gap("gu")
    a(f"{name}_gu_epi:")
    CA, CB, ONE = 8, 10, 12
    A_ = -2.0 * 0.7978845608028654 * 1.4426950408889634 * 0.044715
    B_ = -2.0 * 0.7978845608028654 * 1.4426950408889634
    a(f"""v_mov_b32 v{CA}, {hex(f2u(A_))}
v_mov_b32 v{CA+1}, {hex(f2u(A_))}
v_mov_b32 v{CB}, {hex(f2u(B_))}
v_mov_b32 v{CB+1}, {hex(f2u(B_))}
v_mov_b32 v{ONE}, 1.0
v_mov_b32 v{ONE+1}, 1.0
v_lshrrev_b32 v14, 3, v1
v_mul_u32_u24 v14, {FB - 128}, v14
v_lshl_add_u32 v14, v1, 4, v14
v_lshl_add_u32 v14, v2, 8, v14
s_lshl_b32 s48, s19, {1 if mix else 2}
s_add_u32 s48, s48, s3
s_cmp_ge_u32 s3, 2
s_cselect_b32 s50, {22 if mix else 0}, 0
s_add_u32 s48, s48, s50
s_lshl_b32 s48, s48, 10
s_mul_i32 s49, s46, {2*FB}
s_add_u32 s49, s49, s48
s_add_u32 s49, s49, {AF + FH}""")
    Ldone = f"{name}_gu_done"
    T0 = 16
    cnt = 0
    for mi in range(10):
        if mi == 8:
            a(f"s_cmp_eq_u32 s47, 4\ns_cbranch_scc1 {Ldone}")
        b = acc(mi, 0)
        pairs = [(b + 0, b + 8), (b + 2, b + 10), (b + 4, b + 12), (b + 6, b + 14)]
        out = hout(mi) if defer else 32 + 4 * (mi % 2)
        for q, (g, u) in enumerate(pairs):
            a(f"v_pk_mul_f32 {vr(T0+2*q,2)}, {vr(g,2)}, {vr(g,2)}")
        for q, (g, u) in enumerate(pairs):
            a(f"v_pk_fma_f32 {vr(T0+2*q,2)}, {vr(T0+2*q,2)}, {vr(CA,2)}, {vr(CB,2)}")
        for q, (g, u) in enumerate(pairs):
            a(f"v_pk_mul_f32 {vr(T0+2*q,2)}, {vr(T0+2*q,2)}, {vr(g,2)}")
        for q in range(8):
            a(f"v_exp_f32 v{T0+q}, v{T0+q}")
        for q, (g, u) in enumerate(pairs):
            a(f"v_pk_mul_f32 {vr(24+2*q,2)}, {vr(g,2)}, {vr(u,2)}")
        for q, (g, u) in enumerate(pairs):
            a(f"v_pk_add_f32 {vr(T0+2*q,2)}, {vr(T0+2*q,2)}, {vr(ONE,2)}")
        for q in range(8):
            a(f"v_rcp_f32 v{T0+q}, v{T0+q}")
        a("s_nop 0")
        for q in range(4):
            a(f"v_pk_mul_f32 {vr(24+2*q,2)}, {vr(24+2*q,2)}, {vr(T0+2*q,2)}")
        for q in range(4):
            a(f"v_cvt_pk_bf16_f32 v{out+q}, v{24+2*q}, v{25+2*q}")
        if not defer:
            a(f"buffer_store_dwordx4 {vr(out,4)}, v14, s[20:23], s49 offen offset:{128*(mi&1)} {st_h}")
            if mi & 1 and mi < 9:
                a(f"s_add_u32 s49, s49, {2*FB}")
    a(f"{Ldone}:")
    if defer == "post":
        a(f"""v_mov_b32 v244, v14
s_mov_b32 s79, s49
s_add_u32 s78, s49, {8*FB}
s_cmp_eq_u32 s47, 4
s_cselect_b32 s78, 0x80000000, s78
s_branch {name}_join2""")
    elif defer:
        for mi in range(10):
            if mi == 8:
                a(f"s_cmp_eq_u32 s47, 4\ns_cbranch_scc1 {name}_join2")
            a(f"buffer_store_dwordx4 {vr(hout(mi),4)}, v14, s[20:23], s49 offen offset:{128*(mi&1)} {st_h}")
            if mi & 1 and mi < 9:
                a(f"s_add_u32 s49, s49, {2*FB}")
        a(f"s_branch {name}_join")
    done()
    gap("v")
    a(f"{name}_v:")
    a(f"s_mov_b32 s54, {HEADB}")
    if vperm:
        a("v_lshrrev_b32 v13, 2, v0\nv_and_b32 v14, 3, v0")
    col, pc = ("v13", "v14") if vperm else ("v1", "v2")
    for nj in range(4):
        a(f"""v_add_u32 v8, s48, {col}
v_add_u32 v8, {16*(nj&1)}, v8""")
        if nj >= 2:
            a("v_add_u32 v8, s49, v8")
        a(f"""v_mul_u32_u24 v11, 205, v8
v_lshrrev_b32 v11, 12, v11
v_mul_u32_u24 v12, 20, v11
v_sub_u32 v10, v8, v12
v_bfe_u32 v12, v10, 2, 2
v_xor_b32 v12, v12, {pc}
v_lshlrev_b32 v12, 4, v12
v_lshl_add_u32 v12, v10, 6, v12
v_mad_u32_u24 v11, v11, s54, v12
v_add_u32 v{VEP+nj}, {KV + 1280}, v11""")
    mainloop(a, True)
    a(f"s_mul_i32 s49, s46, {TILE}")
    Ldv = f"{name}_v_done"
    if vperm:
        a(f"""s_mul_i32 s50, s3, 20480
s_add_u32 s50, s50, {SLOT + 20480}
v_lshrrev_b32 v8, 2, v1
v_add_u32 v8, v8, v2
v_and_b32 v8, 3, v8
v_lshlrev_b32 v8, 4, v8
v_lshl_add_u32 v8, v1, 6, v8
v_add_u32 v8, s50, v8
v_lshrrev_b32 v9, 4, v0
v_add_u32 v9, v9, v0
v_and_b32 v9, 3, v9
v_and_b32 v10, 60, v0
v_add_u32 v9, v9, v10
v_lshlrev_b32 v9, 4, v9
v_add_u32 v9, s50, v9""")
    def cvt(p, nj):
        r, r2 = acc(2 * p, nj), acc(2 * p + 1, nj)
        a(f"""v_cvt_pk_bf16_f32 v{r}, v{r}, v{r+1}
v_cvt_pk_bf16_f32 v{r+1}, v{r+2}, v{r+3}
v_cvt_pk_bf16_f32 v{r+2}, v{r2}, v{r2+1}
v_cvt_pk_bf16_f32 v{r+3}, v{r2+2}, v{r2+3}""")
    for p in range(5):
        if p == 4:
            a(f"s_cmp_eq_u32 s47, 4\ns_cbranch_scc1 {Ldv}")
        for nj in range(4):
            cvt(p, nj)
            r = acc(2 * p, nj)
            if vperm:
                a(f"ds_write_b128 v8, {vr(r,4)} offset:{1024*(4*p+nj)}")
            else:
                a(f"buffer_store_dwordx4 {vr(r,4)}, v{VEP+nj}, s[20:23], s49 offen {st_v}")
        if vperm:
            for nj in range(4):
                a(f"ds_read_b128 {vr(acc(2*p+1, nj),4)}, v9 offset:{1024*(4*p+nj)}")
            for nj in range(4):
                a(f"s_waitcnt lgkmcnt({3-nj})")
                a(f"buffer_store_dwordx4 {vr(acc(2*p+1, nj),4)}, v{VEP+nj}, s[20:23], s49 offen {st_v}")
        if p < 4:
            a(f"s_add_u32 s49, s49, {TILE}")
    a(f"{Ldv}:")
    if wb:
        stamp.mark(a, 5)
        a(f"s_waitcnt vmcnt(0)\ns_cmp_lg_u32 s3, 0\ns_cbranch_scc1 {Ldv}x\nbuffer_wbl2 sc1\n{Ldv}x:")
    done()
    mark_l = len(a.lines)
    a(f"{name}_loader:")
    if fast:
        a(f"s_setprio {lprio}")
    if gudelay:
        a(f"""s_cmp_ge_u32 s19, 12
s_cbranch_scc1 {name}_nogd
s_memrealtime s[42:43]
s_waitcnt lgkmcnt(0)
s_add_u32 s44, s42, {gudelay}
{name}_gd:
s_memrealtime s[42:43]
s_waitcnt lgkmcnt(0)
s_cmp_lt_u32 s42, s44
s_cbranch_scc1 {name}_gd
{name}_nogd:""")
    a(f"""s_sub_u32 s3, s3, 4
v_lshrrev_b32 v10, 3, v0
v_mul_u32_u24 v10, 1280, v10
v_and_b32 v11, 7, v0
v_lshrrev_b32 v12, 4, v0""")
    def wcols():
        a(f"""s_lshr_b32 s54, s3, 1
s_movk_i32 s56, 3072
s_lshl_b32 s57, s19, {7 if mix else 8}
s_cmp_ge_u32 s19, 12
s_cmovk_i32 s56, 3840
s_sub_u32 s58, s19, 12
s_lshl_b32 s58, s58, 9
s_lshl_b32 s60, s54, 8
s_add_u32 s58, s58, s60
s_cmp_ge_u32 s19, 12
s_cselect_b32 s57, s58, s57
s_cmp_eq_u32 s19, 19
s_cmovk_i32 s57, 3584
v_and_b32 v13, 15, v0
v_mul_u32_u24 v14, s56, v12
v_add_u32 v14, s57, v14
s_lshl_b32 s63, s56, 6""")
    if rot_enable == "xcd":
        a("s_and_b32 s59, s2, 7\ns_mul_i32 s59, s59, 5\ns_lshr_b32 s59, s59, 2")
    elif rot_enable == "xcdw":
        a(f"s_and_b32 s59, s2, 1\ns_mul_i32 s59, s59, {4 if clus else 5}")
    elif rot_enable == "xcdx":
        a("s_bfe_u32 s59, s2, 0x20001\ns_mul_i32 s59, s59, 5\ns_lshr_b32 s59, s59, 1")
    elif rot_enable:
        a(f"""s_lshl_b32 s59, s39, 1
s_mul_i32 s60, s18, 3
s_add_u32 s59, s59, s60
s_mul_i32 s60, s59, 205
s_lshr_b32 s60, s60, 11
s_mul_i32 s60, s60, 10
s_sub_u32 s59, s59, s60""")
    else:
        a("s_mov_b32 s59, 0")
    a(f"""s_mov_b32 s36, 0
s_cmp_eq_u32 s19, 19
s_cbranch_scc1 {name}_ldspec""")
    def srdw():
        a(f"""s_cmp_eq_u32 s54, 0
s_cselect_b32 s24, s12, s14
s_cselect_b32 s25, s13, s15
s_mov_b32 s26, {640*3072}
s_cmp_ge_u32 s19, 12
s_cselect_b32 s24, s6, s24
s_cselect_b32 s25, s7, s25
s_cmov_b32 s26, {640*3840}
s_and_b32 s25, s25, 0xffff
s_mov_b32 s27, 0x20000""")
    def srds():
        a("s_waitcnt lgkmcnt(0)")
        srd(a, 20, 4, 2048 * 1280)
        srdw()
    def xoff(dst, e, top):
        a(f"""v_add_u32 v15, {top}, v12
v_xor_b32 v15, v15, v11
v_lshl_add_u32 v15, v15, 4, v10
v_add_u32 v{dst}, {e*8*1280 - 1024*(e%4)}, v15""")
    def woffs(regular):
        a(f"""s_lshl_b32 s60, s56, 2
s_sub_u32 s60, s60, 1024""")
        if regular:
            a(f"""s_cmp_lt_u32 s19, 12
s_cselect_b32 s69, {1536 - 128 if mix else 0}, 0
s_cselect_b32 s68, 3, 0""")
        for hf in range(2):
            d = 6 + 2 * hf
            a(f"v_lshlrev_b32 v15, 1, v12\nv_xor_b32 v15, v15, v13")
            if hf:
                a("v_xor_b32 v15, 8, v15")
            if regular:
                a(f"""v_lshrrev_b32 v16, 1, v15
v_xor_b32 v16, v16, v15
v_and_b32 v16, 1, v16
v_mul_u32_u24 v16, s68, v16
v_xor_b32 v15, v15, v16""")
            a(f"v_lshl_add_u32 v{d}, v15, 4, v14")
            if regular:
                a(f"v_lshrrev_b32 v15, 3, v15\nv_mad_u32_u24 v{d}, v15, s69, v{d}")
            if hf:
                a(f"v_add_u32 v{d}, s60, v{d}\nv_add_u32 v{d}, s60, v{d}")
            a(f"v_add_u32 v{d+1}, s60, v{d}")
    def advance():
        a(f"""s_add_u32 s59, s59, 1
s_cmp_eq_u32 s59, {NST}
s_cselect_b32 s59, 0, s59
s_add_u32 s36, s36, {SLOT}
s_cmp_eq_u32 s36, {SLOT*NSLOT}
s_cselect_b32 s36, 0, s36""")
    def tail(nper):
        Ll = a.label("k1ld")
        return Ll
    a("s_mul_i32 s61, s3, 5")
    for e in range(5):
        a(f"""s_add_u32 s60, s61, {e}
s_and_b32 s60, s60, 2
s_lshl_b32 s60, s60, 1""")
        xoff(1 + e, e, "s60")
    a(f"""s_mul_i32 s61, s18, 160
s_mul_i32 s60, s3, 40
s_add_u32 s61, s61, s60
s_mul_i32 s61, s61, 1280
s_mul_i32 s65, s3, 5120
s_lshl_b32 s62, s59, 7
s_add_u32 s62, s62, s61
s_mov_b32 m0, s65""")
    stamp.mark(a, 1)
    a("s_waitcnt lgkmcnt(0)")
    stamp.mark(a, 2)
    srd(a, 20, 4, 2048 * 1280)
    if earlyx:
        a(f"""buffer_load_dwordx4 v1, s[20:23], s62 offen {nt_x} lds
buffer_load_dwordx4 v2, s[20:23], s62 offen offset:1024 {nt_x} lds
buffer_load_dwordx4 v3, s[20:23], s62 offen offset:2048 {nt_x} lds
buffer_load_dwordx4 v4, s[20:23], s62 offen offset:3072 {nt_x} lds
s_add_u32 m0, m0, 4096
s_nop 0
buffer_load_dwordx4 v5, s[20:23], s62 offen {nt_x} lds""")
    wcols()
    woffs(True)
    a(f"""s_and_b32 s60, s3, 1
s_lshl_b32 s67, s60, 4
s_mul_i32 s67, s67, s56
s_lshl_b32 s66, s54, 14
s_lshl_b32 s60, s60, 12
s_add_u32 s66, s66, s60
s_add_u32 s66, s66, 20480
s_lshl_b32 s68, s56, 5""")
    srdw()
    def mk_issue_reg(var):
        X = f"""s_add_u32 m0, s36, s65
s_nop 0
buffer_load_dwordx4 v1, s[20:23], s62 offen {nt_x} lds
buffer_load_dwordx4 v2, s[20:23], s62 offen offset:1024 {nt_x} lds
buffer_load_dwordx4 v3, s[20:23], s62 offen offset:2048 {nt_x} lds
buffer_load_dwordx4 v4, s[20:23], s62 offen offset:3072 {nt_x} lds
s_add_u32 m0, m0, 4096
s_nop 0
buffer_load_dwordx4 v5, s[20:23], s62 offen {nt_x} lds"""
        def W(so, lo):
            return f"""s_add_u32 m0, s36, {lo}
s_nop 0
buffer_load_dwordx4 v6, s[24:27], {so} offen {nt_w} lds
buffer_load_dwordx4 v7, s[24:27], {so} offen offset:1024 {nt_w} lds
buffer_load_dwordx4 v8, s[24:27], {so} offen offset:2048 {nt_w} lds
buffer_load_dwordx4 v9, s[24:27], {so} offen offset:3072 {nt_w} lds"""
        items = [("s65", 0, f"buffer_load_dwordx4 v{1+e}, s[20:23], s62 offen offset:{1024*e} {nt_x} lds") for e in range(4)]
        items += [("s65", 4096, f"buffer_load_dwordx4 v5, s[20:23], s62 offen {nt_x} lds")]
        for so, lo in (("s64", "s66"), ("s69", "s73")):
            items += [(lo, 0, f"buffer_load_dwordx4 v{6+e}, s[24:27], {so} offen offset:{1024*e} {nt_w} lds") for e in range(4)]
        r = [0, 5, 9][var] if nvar <= 3 else round(13 * var / nvar)
        items = items[r:] + items[:r]
        lines = []; cur = None
        for b, add, ld in items:
            if (b, add) != cur:
                lines.append(f"s_add_u32 m0, s36, {b}")
                lines.append(f"s_add_u32 m0, m0, {add}\ns_nop 0" if add else "s_nop 0")
                cur = (b, add)
            lines.append(ld)
        lines = "\n".join(lines).split("\n")
        k = [i for i, l in enumerate(lines) if l.startswith("buffer_load")][3]
        def issue(part=None):
            if part == "w":
                a(f"""s_mul_i32 s64, s59, s63
s_add_u32 s64, s64, s67
s_add_u32 s69, s64, s68""")
                a(W("s64", "s66")); a(W("s69", "s73"))
                advance()
                return
            if part in (None, 0):
                a(f"""s_lshl_b32 s62, s59, 7
s_add_u32 s62, s62, s61
s_mul_i32 s64, s59, s63
s_add_u32 s64, s64, s67
s_add_u32 s69, s64, s68""")
                a("\n".join(lines[:k+1]))
            if part in (None, 1):
                a("\n".join(lines[k+1:]))
            if part == 0: return
            advance()
        return issue
    def clus_setup():
        a(f"""s_mul_i32 s70, s18, 37
s_lshr_b32 s70, s70, 8
s_mul_i32 s70, s70, 7
s_sub_u32 s70, s18, s70
v_lshrrev_b32 v17, 1, v0
v_mul_u32_u24 v17, 7, v17
v_add_u32 v17, s70, v17
v_cmp_gt_u32 vcc, 0x80, v17
v_mul_u32_u24 v17, s56, v17
v_add_u32 v17, s57, v17
s_movk_i32 s70, 128
s_movk_i32 s71, 256
s_cmp_lt_u32 s19, 12
s_cmovk_i32 s70, {1536 if mix else 128}
s_cmovk_i32 s71, 0
s_cselect_b32 s28, s12, s6
s_cselect_b32 s29, s13, s7
s_and_b32 s29, s29, 0xffff
s_mov_b32 s30, s26
s_mov_b32 s31, 0x20000
v_and_b32 v18, 1, v0
v_mad_u32_u24 v17, v18, s70, v17
v_subrev_u32 v20, s71, v17
v_mov_b32 v18, -1
v_cndmask_b32 v17, v18, v17, vcc
v_cndmask_b32 v20, v18, v20, vcc
v_and_b32 v18, 31, v0
v_mul_u32_u24 v18, 1280, v18
v_lshrrev_b32 v19, 5, v0
v_lshl_add_u32 v18, v19, 7, v18
s_lshl_b32 s70, s39, 5
s_mul_i32 s71, s18, 160
s_add_u32 s70, s70, s71
s_mul_i32 s70, s70, 1280""")
    def cluster(ahead):
        L = a.label("clus")
        a(f"""s_cmp_lg_u32 s3, 3
s_cbranch_scc1 {L}
s_add_u32 s71, s59, {ahead}
s_cmp_ge_u32 s71, {NST}
s_cselect_b32 s72, {NST}, 0
s_sub_u32 s71, s71, s72
s_lshl_b32 s72, s71, 7
s_add_u32 s72, s72, s70
s_mul_i32 s71, s71, s63
buffer_load_dword v19, v18, s[20:23], s72 offen
buffer_load_dword v19, v17, s[24:27], s71 offen
buffer_load_dword v19, v20, s[28:31], s71 offen
{L}:""")
    def spf_setup():
        a(f"""s_lshl_b32 s40, s38, 2
s_add_u32 s40, s40, s3
s_mul_i32 s41, s40, 2560
s_add_u32 s41, s41, {128*spf0}
s_add_u32 s44, s4, s41
s_addc_u32 s45, s5, 0
s_min_u32 s41, s40, 959
s_mul_i32 s42, s41, 4370
s_lshr_b32 s42, s42, 16
s_mul_i32 s43, s42, 15
s_sub_u32 s43, s41, s43
s_add_u32 s42, s42, {64*spf0}
s_mul_i32 s42, s42, 3840
s_lshl_b32 s43, s43, 8
s_add_u32 s42, s42, s43
s_add_u32 s46, s6, s42
s_addc_u32 s47, s7, 0
s_and_b32 s41, s40, 511
s_lshr_b32 s42, s41, 3
s_and_b32 s43, s41, 7
s_add_u32 s42, s42, {64*spf0}
s_mul_i32 s42, s42, 3072
s_mul_i32 s43, s43, 384
s_add_u32 s42, s42, s43
s_cmp_lt_u32 s40, 512
s_cselect_b32 s48, s12, s14
s_cselect_b32 s49, s13, s15
s_add_u32 s48, s48, s42
s_addc_u32 s49, s49, 0""")
    def spf_issue():
        a(f"""s_load_dword s50, s[44:45], 0
s_load_dword s50, s[44:45], 1280
s_load_dword s50, s[46:47], 0
s_load_dword s50, s[46:47], 128
s_load_dword s50, s[48:49], 0
s_load_dword s50, s[48:49], 128
s_load_dword s50, s[48:49], 256
s_add_u32 s44, s44, 128
s_addc_u32 s45, s45, 0
s_add_u32 s46, s46, {64*3840}
s_addc_u32 s47, s47, 0
s_add_u32 s48, s48, {64*3072}
s_addc_u32 s49, s49, 0""")
    def help_setup():
        a(f"""s_mul_i32 s70, s18, 37
s_lshr_b32 s70, s70, 8
s_mul_i32 s70, s70, 7
s_sub_u32 s70, s18, s70
s_mul_i32 s71, s39, 7
s_add_u32 s70, s70, s71
v_lshrrev_b32 v17, 3, v0
v_mul_u32_u24 v17, 21, v17
v_add_u32 v17, s70, v17
v_cmp_gt_u32 vcc, 64, v17
v_mul_u32_u24 v17, 3840, v17
v_and_b32 v18, 7, v0
v_lshl_add_u32 v17, v18, 7, v17
s_lshl_b32 s70, s42, 10
v_add_u32 v17, s70, v17
v_mov_b32 v18, -1
v_cndmask_b32 v17, v18, v17, vcc
s_mov_b32 s28, s6
s_and_b32 s29, s7, 0xffff
s_mov_b32 s30, {640*3840}
s_mov_b32 s31, 0x20000
s_lshl_b32 s72, s19, 2
s_add_u32 s72, s72, s3
s_and_b32 s70, s72, 3
s_cmp_lt_u32 s72, 48
s_cselect_b32 s72, s70, 0""")
        if helpx:
            a(f"""s_mul_i32 s70, s39, 54
v_add_u32 v20, s70, v0
v_cmp_gt_u32 vcc, 54, v0
v_mul_u32_u24 v20, 1280, v20
v_cndmask_b32 v20, v18, v20, vcc
s_mul_i32 s70, s18, {160*1280}""")
    def help_issue(ahead):
        L = a.label("help")
        a(f"""s_cmp_lt_u32 s72, {2 if helpx else 3}
s_cbranch_scc1 {L}
s_add_u32 s71, s59, {ahead}
s_cmp_ge_u32 s71, {NST}
s_cselect_b32 s74, {NST}, 0
s_sub_u32 s71, s71, s74""")
        if helpx:
            a(f"""s_cmp_eq_u32 s72, 3
s_cbranch_scc1 {L}w
s_lshl_b32 s71, s71, 7
s_add_u32 s71, s71, s70
buffer_load_dword v19, v20, s[20:23], s71 offen
s_branch {L}
{L}w:""")
        a(f"""s_mul_i32 s71, s71, {64*3840}
buffer_load_dword v19, v17, s[28:31], s71 offen
{L}:""")
    def ring(issue, nper):
        Ll = a.label("k1ld"); Ls = a.label("k1sk")
        if not (earlyx and nper == 13):
            issue()
        stamp.mark(a, 3)
        if spf:
            spf_setup()
            for i in range(2):
                spf_issue()
        hp = help and nper == 13
        if hp:
            help_setup()
            for i in range(help):
                help_issue(i)
        issue(0)
        stamp.mark(a, 5)
        if half0:
            a(f"s_waitcnt vmcnt({NFIRST + (4 if nper == 13 and earlyx else 0)})\ns_barrier")
        a(f"s_waitcnt vmcnt({NFIRST})")
        stamp.mark(a, 6)
        a("s_barrier")
        issue(1)
        if hp:
            help_issue(help - 1)
        if spf:
            for i in range(spf - 1):
                spf_issue()
        a(f"s_mov_b32 s37, 1\n{Ll}:")
        if spf:
            a(f"s_cmp_ge_u32 s37, {NST - spf0 - spf}\ns_cbranch_scc1 {Ls}")
            spf_issue()
            a(f"{Ls}:")
        issue()
        if hp:
            a(f"s_cmp_ge_u32 s37, {NST - 1 - help}\ns_cbranch_scc1 {Ls}h")
            help_issue(help - 1)
            a(f"{Ls}h:")
        a(f"""s_waitcnt vmcnt({nper})
s_barrier
s_add_u32 s37, s37, 1
s_cmp_lt_u32 s37, {NST-1}
s_cbranch_scc1 {Ll}
s_waitcnt lgkmcnt(0)
s_branch {name}_tjob""")
    NFIRST = 4
    a("s_add_u32 s73, s66, 8192")
    if earlyx:
        mk_issue_reg(0)("w")
    if nvar > 1:
        a(f"""s_mul_i32 s60, s39, {vmul}
s_add_u32 s60, s60, s18
s_mul_i32 s72, s60, {(256 + nvar - 1)//nvar}
s_lshr_b32 s72, s72, 8
s_mul_i32 s72, s72, {nvar}
s_sub_u32 s60, s60, s72""")
        for v in range(1, nvar):
            a(f"s_cmp_eq_u32 s60, {v}\ns_cbranch_scc1 {name}_var{v}")
    ring(mk_issue_reg(0), 13)
    for v in range(1, nvar):
        a(f"{name}_var{v}:")
        ring(mk_issue_reg(v), 13)
    a(f"{name}_ldspec:")
    for e in range(4):
        xoff(1 + e, e, 4 * (e >> 1))
    wcols()
    woffs(False)
    a(f"""s_lshl_b32 s61, s18, 8
s_lshl_b32 s60, s3, 6
s_add_u32 s61, s61, s60
s_mul_i32 s61, s61, 1280
s_lshl_b32 s65, s3, 13
s_lshl_b32 s67, s3, 4
s_mul_i32 s67, s67, s56
s_lshl_b32 s66, s3, 12
s_add_u32 s66, s66, 32768""")
    srds()
    def issue_spec(part=None):
        if part in (None, 0):
            a(f"""s_lshl_b32 s62, s59, 7
s_add_u32 s62, s62, s61
s_mul_i32 s64, s59, s63
s_add_u32 m0, s36, s65
s_add_u32 s64, s64, s67
buffer_load_dwordx4 v1, s[20:23], s62 offen {nt_x} lds
buffer_load_dwordx4 v2, s[20:23], s62 offen offset:1024 {nt_x} lds
buffer_load_dwordx4 v3, s[20:23], s62 offen offset:2048 {nt_x} lds
buffer_load_dwordx4 v4, s[20:23], s62 offen offset:3072 {nt_x} lds""")
        if part in (None, 1):
            a(f"""s_add_u32 m0, m0, 4096
s_add_u32 s69, s62, {32*1280}
buffer_load_dwordx4 v1, s[20:23], s69 offen {nt_x} lds
buffer_load_dwordx4 v2, s[20:23], s69 offen offset:1024 {nt_x} lds
buffer_load_dwordx4 v3, s[20:23], s69 offen offset:2048 {nt_x} lds
buffer_load_dwordx4 v4, s[20:23], s69 offen offset:3072 {nt_x} lds
s_add_u32 m0, s36, s66
s_nop 0
buffer_load_dwordx4 v6, s[24:27], s64 offen {nt_w} lds
buffer_load_dwordx4 v7, s[24:27], s64 offen offset:1024 {nt_w} lds
buffer_load_dwordx4 v8, s[24:27], s64 offen offset:2048 {nt_w} lds
buffer_load_dwordx4 v9, s[24:27], s64 offen offset:3072 {nt_w} lds""")
        if part == 0: return
        advance()
    ring(issue_spec, 12)
    a(f"""{name}_tjob:
s_mul_i32 s70, s3, 255
s_add_u32 s70, s70, s38
s_cmp_lt_u32 s70, 544
s_cselect_b32 s71, s70, 0
s_lshr_b32 s72, s71, 2
s_and_b32 s73, s71, 3
s_mul_i32 s76, s72, 20
s_sub_u32 s74, s72, 32
s_mul_i32 s74, s74, 80
s_add_u32 s74, s74, 16
s_cmp_ge_u32 s72, 32
s_cselect_b32 s76, s74, s76
s_cselect_b32 s77, 16, 0
s_sub_u32 s74, s72, 40
s_lshl_b32 s74, s74, 4
s_cmp_lt_u32 s72, 40
s_cselect_b32 s28, s8, s10
s_cselect_b32 s29, s9, s11
s_mov_b32 s30, {1536*1280}
s_cmov_b32 s30, {640*1280}
s_cselect_b32 s74, s76, s74
s_cselect_b32 s77, s77, 0
s_and_b32 s29, s29, 0xffff
s_mov_b32 s31, 0x20000
s_mul_i32 s74, s74, 1280
s_mul_i32 s75, s73, 320
s_add_u32 s74, s74, s75
s_mul_i32 s75, s3, 5120
s_add_u32 s75, s75, {SLOT}""")
    for i in range(5):
        a(f"""v_add_u32 v8, {64*i}, v0
v_mul_u32_u24 v9, 205, v8
v_lshrrev_b32 v9, 12, v9
v_mul_u32_u24 v10, 20, v9
v_sub_u32 v8, v8, v10
v_lshrrev_b32 v10, 2, v9
v_mad_u32_u24 v9, v10, s77, v9
v_mul_u32_u24 v9, 1280, v9
v_lshl_add_u32 v11, v8, 4, v9
s_add_u32 m0, s75, {1024*i}
s_nop 0
buffer_load_dwordx4 v11, s[28:31], s74 offen lds""")
    srd(a, 32, 16, WS_END)
    a(f"""s_waitcnt vmcnt(5)
s_barrier""")
    a(f"""s_cmp_ge_u32 s70, 544
s_cbranch_scc1 {name}_gate""")
    a(f"""v_lshrrev_b32 v1, 5, v0
v_bfe_u32 v2, v0, 2, 2
v_lshl_add_u32 v1, v1, 2, v2
v_mul_u32_u24 v1, 320, v1
v_bfe_u32 v2, v0, 4, 1
v_lshl_add_u32 v1, v2, 5, v1
v_and_b32 v2, 3, v0
v_lshl_add_u32 v1, v2, 3, v1
v_add_u32 v1, s75, v1
v_bfe_u32 v2, v0, 4, 1
v_mul_u32_u24 v2, {FB}, v2
v_and_b32 v3, 15, v0
v_lshrrev_b32 v4, 5, v0
v_lshl_add_u32 v3, v4, 4, v3
v_lshl_add_u32 v4, v3, 3, v2
v_lshl_add_u32 v2, v3, 4, v2
s_mul_i32 s76, s73, {10*FB}
s_add_u32 s76, s76, {WF}
s_lshl_b32 s74, s72, 9
s_add_u32 s76, s76, s74
s_waitcnt vmcnt(0)""")
    for j in range(5):
        a(f"ds_read_b64_tr_b16 {vr(16+4*j,2)}, v1 offset:{64*j}")
        a(f"ds_read_b64_tr_b16 {vr(18+4*j,2)}, v1 offset:{64*j+8*320}")
    a(f"s_cmp_eq_u32 s77, 16\ns_cbranch_scc1 {name}_tx")
    for j in range(5):
        a(f"s_waitcnt lgkmcnt({8-2*j})")
        a(f"buffer_store_dwordx4 {vr(16+4*j,4)}, v2, s[32:35], s76 offen {st_w}")
        if j < 4:
            a(f"s_add_u32 s76, s76, {2*FB}")
    a(f"s_branch {name}_gate\n{name}_tx:")
    for j in range(5):
        a(f"s_waitcnt lgkmcnt({8-2*j})")
        a(f"buffer_store_dwordx2 {vr(16+4*j,2)}, v4, s[32:35], s76 offen {st_w}")
        a(f"buffer_store_dwordx2 {vr(18+4*j,2)}, v4, s[32:35], s76 offen offset:256 {st_w}")
        if j < 4:
            a(f"s_add_u32 s76, s76, {2*FB}")
    a(f"s_branch {name}_gate")
    a(f"""{name}_idle:
s_mov_b32 s19, 0
s_waitcnt lgkmcnt(0)
s_cmp_lt_u32 s3, 4
s_cbranch_scc1 {name + "_join" if fused else Lend}
s_sub_u32 s3, s3, 4
s_waitcnt lgkmcnt(0)""")
    srd(a, 20, 4, 2048 * 1280)
    srd(a, 32, 16, WS_END)
    a(f"{name}_gate:")
    srd(a, 24, 78, 1280)
    a(f"""v_mul_u32_u24 v1, 20, v0
s_lshl_b32 s47, s2, 3
s_lshl_b32 s48, s3, 1
s_add_u32 s47, s47, s48
s_mul_i32 s48, s47, 1280
buffer_load_dwordx4 v[40:43], v1, s[24:27], 0 offen
buffer_load_dword v44, v1, s[24:27], 0 offen offset:16
buffer_load_dwordx4 v[48:51], v1, s[20:23], s48 offen
buffer_load_dword v52, v1, s[20:23], s48 offen offset:16
buffer_load_dwordx4 v[56:59], v1, s[20:23], s48 offen offset:1280
buffer_load_dword v60, v1, s[20:23], s48 offen offset:1296
v_mov_b32 v2, 0
v_mov_b32 v3, 0
v_lshlrev_b32 v4, 2, v0
s_cmp_lg_u32 s3, {99 if fused else 3}
s_cbranch_scc1 {name}_nofl
s_cmp_ge_u32 s2, 8
s_cbranch_scc1 {name}_nofl
s_lshl_b32 s49, s2, 12
s_add_u32 s49, s49, {FLG}
s_mov_b32 exec_hi, 0
buffer_store_dword v2, v4, s[32:35], s49 offen sc1
s_mov_b32 exec_hi, -1
{name}_nofl:
s_waitcnt vmcnt(0)""")
    for i in range(5):
        a(f"v_dot2_f32_bf16 v2, v{48+i}, v{40+i}, v2")
        a(f"v_dot2_f32_bf16 v3, v{56+i}, v{40+i}, v3")
    a("s_nop 3")
    for d in ("row_shr:1 row_mask:0xf bank_mask:0xf bound_ctrl:0", "row_shr:2 row_mask:0xf bank_mask:0xf bound_ctrl:0",
              "row_shr:4 row_mask:0xf bank_mask:0xf bound_ctrl:0", "row_shr:8 row_mask:0xf bank_mask:0xf bound_ctrl:0",
              "row_bcast:15 row_mask:0xa bank_mask:0xf", "row_bcast:31 row_mask:0xc bank_mask:0xf"):
        a(f"v_add_f32_dpp v2, v2, v2 {d}\nv_add_f32_dpp v3, v3, v3 {d}\ns_nop 0")
    a(f"""v_mul_f32 v2, {hex(f2u(-1.4426950408889634))}, v2
v_mul_f32 v3, {hex(f2u(-1.4426950408889634))}, v3
v_exp_f32 v2, v2
v_exp_f32 v3, v3
s_nop 0
v_add_f32 v2, 1.0, v2
v_add_f32 v3, 1.0, v3
v_rcp_f32 v2, v2
v_rcp_f32 v3, v3
s_lshl_b32 s49, s47, 2
s_add_u32 s49, s49, {GV}
v_mov_b32 v4, 0
s_mov_b32 exec_lo, 0
s_mov_b32 exec_hi, 0x80000000
buffer_store_dwordx2 v[2:3], v4, s[32:35], s49 offen sc1""")
    if fused:
        if ldfirst:
            a(f"s_branch {name}_join")
            a.lines[mark_c:] = a.lines[mark_l:] + a.lines[mark_c:mark_l]
        return
    stamp.flush(a, 0, 4, 0)
    a(f"{Lend}:\ns_endpgm")
    kernel_desc(a, name, NV, 102 if stamp.ENABLED else 96)
```

```python
from common import *
import stamp

K2_LDS = HEADB
Q16, Q8 = 4, 8
K16, K8 = 10, 14
V0, V1 = 16, 20
P = 24
S = [32, 48]
O = 64
VA, VB, VG, VK, VA2 = 80, 81, 82, 83, 84
VL = 3
RING = 88
NSL = 7
GA = 8
M16 = "v_mfma_f32_32x32x16_bf16"
M8 = "v_mfma_f32_32x32x8bf16_1k"
U = 8

EXP = set()
LAYOUTS = [(4, 8, 10, 14, 16, 20, 24, [32, 48], 64),
           (4, 12, 8, 14, 16, 20, 24, [32, 48], 64),
           (4, 8, 26, 30, 18, 22, 10, [32, 48], 64),
           (4, 8, 76, 10, 12, 16, 20, [28, 44], 60),
           (4, 8, 76, 74, 66, 70, 10, [18, 34], 50)]
def tile(a0, t, base, job0=None, job1=None):
    def a(s):
        if "noexec" in EXP and "exec" in s: return
        if "nods" in EXP and s.startswith("ds_"): return
        if "nowait" in EXP and s.startswith("s_waitcnt"): return
        if "half" in EXP and t % 2 and (s.startswith("ds_") or "exec" in s or s.startswith("s_waitcnt")): return
        if "half" in EXP and s.startswith("s_waitcnt lgkmcnt(1)"): return
        if "half" in EXP and s.startswith("s_waitcnt lgkmcnt(3)"): s = "s_waitcnt lgkmcnt(0)"
        if "kb128" in EXP and s.startswith("ds_read2st64"):
            s = f"ds_read_b128 {vr(K16,4)}, v{VL} offset:{(t + 2 - base) * TILE}"
        a0(s)
    if "nojob" in EXP and t >= 16:
        job0 = job1 = None
    s0, s1 = S[t % 2], S[(t + 1) % 2]
    ko = (t + 2 - base) * TILE
    vo = (t - base) * TILE
    assert ko + 16 < 65536
    def ex(lo, hi):
        for i in range(lo, hi):
            a(f"v_exp_f32 v{s0+i}, v{s0+i}")
    def cv(lo, hi):
        for i in range(lo, hi):
            a(f"v_cvt_pk_bf16_f32 v{P+i}, v{s0+2*i}, v{s0+2*i+1}")
    last = t == 63
    if not last:
        a("s_waitcnt lgkmcnt(3)" if t < 62 else "s_waitcnt lgkmcnt(2)")
        a(f"{M16} {vr(s1,16)}, {vr(K16,4)}, {vr(Q16,4)}, 0")
    if t < 62:
        a(f"ds_read2st64_b64 {vr(K16,4)}, v{VK} offset0:{ko//512} offset1:{ko//512+1}")
    ex(0, 5)
    a("s_waitcnt lgkmcnt(1)" if t < 62 else "s_waitcnt lgkmcnt(0)")
    a(f"{M16} {vr(O,16)}, {vr(V0,4)}, {vr(P,4)}, {vr(O,16)}")
    if job0: job0()
    ex(5, 8)
    cv(0, 4)
    if not last:
        a(f"{M8} {vr(s1,16)}, {vr(K8,2)}, {vr(Q8,2)}, {vr(s1,16)}")
    if t < 62:
        a(f"ds_read_b64 {vr(K8,2)}, v{VB} offset:{ko}")
    ex(8, 13)
    a(f"{M16} {vr(O,16)}, {vr(V1,4)}, {vr(P+4,4)}, {vr(O,16)}")
    a("s_mov_b64 exec, s[30:31]")
    a(f"ds_read_b128 {vr(V0,4)}, v{VA} offset:{vo}")
    a(f"ds_read_b128 {vr(V1,4)}, v{VA2} offset:{vo}")
    a("s_mov_b64 exec, -1")
    if job1: job1()
    ex(13, 16)
    cv(4, 8)

MM = "v_mfma_f32_16x16x32_bf16"
MX = "v_mfma_f32_16x16x16bf16_1k"
STG = 13312
TDEAD = 42
RDY = 8 * STG
PTMP = 252
NFR = 41
LDF = [""]
BB = 62
def bfrag(n, reg):
    i, c = n // 9, n % 9
    if i < 4:
        return f"buffer_load_dwordx4 {vr(reg,4)}, v{VL}, s[20:23], s{BB+c} offen offset:{i*1024} {LDF[0]}"
    return f"s_add_u32 s73, s{BB+c}, {1024*i}\nbuffer_load_dwordx4 {vr(reg,4)}, v{VL}, s[20:23], s73 offen {LDF[0]}"

def gen_k2(a, name, prios={0:3, 2:2, 3:1, 4:3, 11:2, 14:1, 16:3, 35:2, 40:1, 42:0, 43:3, 56:2, 61:1, 63:0}, lead=4, lead2=0, pubo=2, puby=0,
           st_o="sc1", pf0=18, rot=True, slp=2, nosync=False, tailmarks=False, b1=3, fused=True, st_out="", exp=(), defer=False, tall=22, hold1=None, map84=False, yprio=False, npre=NFR, pstep=1, wat=2, wgap=2, warm=0, am=None, ppoll=False, osplit=False, hoist=True, lay=0, shift=0x7d0):
    global Q16, Q8, K16, K8, V0, V1, P, S, O
    Q16, Q8, K16, K8, V0, V1, P, S, O = LAYOUTS[lay]
    EXP.clear(); EXP.update(exp)
    hm = lambda i: stamp.mark(a, 6) if i == 2 else None
    tm = (lambda i: stamp.mark(a, i)) if tailmarks else (lambda i: None)
    Lend = f"{name}_end"
    LD = "sc1"
    LDF[0] = LD
    Lj = a.label("join")
    if shift is not None:
        a(".p2align 12")
        if shift:
            a(f".fill {shift//4}, 4, 0xbf800000")
    if defer:
        a(f"""{name}_join:
s_mov_b64 exec, -1
s_mov_b32 s78, 0x80000000
s_mov_b32 s79, 0x80000000
v_mov_b32 v244, 0
{name}_join2:""")
    else:
        a(f"{name}_join:")
    a(f"""s_mov_b64 exec, -1
s_setprio 0
s_mov_b32 s3, s55
s_mov_b32 s74, s19
s_load_dwordx2 s[6:7], s[0:1], 72
s_load_dwordx2 s[4:5], s[0:1], 64
v_mbcnt_lo_u32_b32 v0, -1, 0
v_mbcnt_hi_u32_b32 v0, -1, v0
s_and_b32 s40, s2, 7
s_lshr_b32 s41, s2, 3
s_lshl_b32 s18, s40, 2
s_lshr_b32 s42, s41, 3
s_add_u32 s18, s18, s42
s_mul_i32 s43, s18, {HEADB}
v_lshlrev_b32 v{VL}, 4, v0
s_lshl_b32 s45, s3, 10
s_add_u32 s46, s43, s45
s_add_u32 s46, s46, {KV}
s_mov_b32 m0, s45
s_and_b32 s19, s41, 7
s_lshl_b32 s19, s19, 3
s_add_u32 s19, s19, s3
v_and_b32 v1, 31, v0
v_lshrrev_b32 v2, 5, v0
v_bfe_u32 v85, v1, 2, 2
v_xor_b32 v85, v85, v2
v_lshlrev_b32 v85, 4, v85
v_lshl_add_u32 v{VA}, v1, 6, v85
v_add_u32 v{VA}, 1280, v{VA}
v_xor_b32 v{VA2}, 32, v{VA}
v_and_b32 v{VB}, 7, v1
v_lshlrev_b32 v{VB}, 4, v{VB}
v_and_b32 v85, 8, v1
v_add_u32 v{VB}, v85, v{VB}
v_and_b32 v85, 16, v1
v_lshl_add_u32 v{VB}, v85, 3, v{VB}
v_lshl_add_u32 v{VK}, v2, 8, v{VB}
v_add_u32 v{VB}, 1024, v{VB}
s_mul_i32 s44, s19, {TILE}
s_add_u32 s44, s44, s43
s_lshl_b32 s47, s19, 7
s_add_u32 s47, s47, {GV}
v_lshlrev_b32 v{VG}, 2, v1
v_mov_b32 v37, 0
s_waitcnt lgkmcnt(0)
s_cmp_lg_u32 s3, {lead}
s_cbranch_scc1 {Lj}s
global_load_dword v36, v37, s[6:7] sc1
{Lj}s:""")
    srd(a, 20, 16, WS_END)
    srd(a, 24, 4, 2048 * 1280)
    if map84:
        a("""s_and_b32 s60, s40, 3
s_lshl_b32 s60, s60, 3
s_lshr_b32 s42, s41, 2
s_add_u32 s60, s60, s42
s_and_b32 s61, s40, 4
s_and_b32 s42, s41, 3
s_add_u32 s61, s61, s42
s_lshl_b32 s42, s42, 1""")
    else:
        a("""s_lshl_b32 s60, s40, 2
s_lshr_b32 s42, s41, 3
s_add_u32 s60, s60, s42
s_and_b32 s61, s41, 7
s_mov_b32 s42, s61""")
    a(f"""s_add_u32 s75, s3, {"s42" if rot else "0"}
s_and_b32 s75, s75, 7
s_mul_i32 s48, s75, 6144
s_add_u32 s48, s48, {FH}
s_mul_i32 s71, s60, {4*FB}
s_add_u32 s71, s71, {AF}
s_add_u32 s62, s71, s48
s_mul_i32 s72, s61, {5*FB}
s_add_u32 s72, s72, {WF}
s_add_u32 s66, s72, s48
s_mul_i32 s76, s3, {STG}""")
    for j in range(1, 4):
        a(f"s_add_u32 s{62+j}, s{61+j}, {FB}")
    for j in range(1, 5):
        a(f"s_add_u32 s{66+j}, s{65+j}, {FB}")
    a(f"""s_mov_b32 s30, 0x000fffff
s_mov_b32 s31, 0x000fffff
v_cmp_eq_u32 vcc, 20, v1
v_mov_b32 v85, 0x3f803f80
v_mov_b32 v86, 0
v_cndmask_b32 v{V0}, v86, v85, vcc
v_mov_b32 v{Q8}, 0
v_mov_b32 v{Q8+1}, 0""")
    for i in range(1, 8):
        a(f"v_mov_b32 v{V0+i}, v{V0}")
    for i in range(16):
        a(f"v_mov_b32 v{O+i}, 0")
    for i in range(8):
        a(f"v_mov_b32 v{P+i}, 0")
    if warm:
        a(f"""s_and_b32 s48, s60, 3
v_lshl_add_u32 v252, v0, 2, s48
v_mul_u32_u24 v253, 205, v252
v_lshrrev_b32 v253, 12, v253
v_mul_u32_u24 v254, 20, v253
v_sub_u32 v254, v252, v254
v_cmp_gt_u32 vcc, 100, v252
v_mul_u32_u24 v253, {FB}, v253
v_lshl_add_u32 v252, v254, 7, v253
s_lshl_b32 s48, s75, 11
s_lshl_b32 s49, s75, 9
s_add_u32 s49, s49, {FX - 2048}
v_mov_b32 v253, s48
v_mov_b32 v255, s49
v_cmp_gt_u32 s[48:49], 16, v254
v_mov_b32 v254, -1
s_nop 0
v_cndmask_b32 v253, v255, v253, s[48:49]
v_add_u32 v252, v252, v253
v_cndmask_b32 v252, v254, v252, vcc""")
    stamp.mark(a, 1)
    a("s_waitcnt vmcnt(0)\ns_barrier")
    if stamp.TODEBUG is None: stamp.mark(a, 5)
    a(f"""s_cmp_lg_u32 s3, {lead}
s_cbranch_scc1 {Lj}d
s_mov_b32 s49, 0
{Lj}t:
v_readfirstlane_b32 s77, v36
s_add_u32 s49, s49, 1
s_cmp_ge_u32 s49, 0x40000
s_cbranch_scc1 {Lj}u
s_cmp_lg_u32 s77, 0
s_cbranch_scc1 {Lj}u
global_load_dword v36, v37, s[6:7] sc1
s_waitcnt vmcnt(0)
s_branch {Lj}t
{Lj}u:
v_mov_b32 v34, s77
s_lshl_b32 s48, s2, 2
s_add_u32 s48, s48, {FALL}
s_mov_b32 s50, {FQKV}
v_lshlrev_b32 v33, 11, v0
s_mov_b64 exec, 1
s_cmp_lt_u32 s74, 12
s_cbranch_scc1 {Lj}n
v_mov_b32 v35, 1
global_atomic_add v35, v37, v35, s[6:7] offset:128 sc0 sc1
s_waitcnt vmcnt(0)
v_readfirstlane_b32 s49, v35
s_cmp_lg_u32 s49, 98
s_cbranch_scc1 {Lj}n
s_mov_b64 exec, 0xffff
buffer_store_dword v34, v33, s[20:23], s50 offen sc1
s_mov_b64 exec, 1
global_store_dword v37, v37, s[6:7] offset:128 sc1
{Lj}n:
{'' if defer else 'buffer_store_dword v34, v37, s[20:23], s48 offen sc1'}
s_and_b32 s48, s2, 15
s_lshl_b32 s48, s48, 11
s_add_u32 s48, s48, {FQKV}
s_mov_b32 s49, 0
{Lj}:
buffer_load_dword v33, v37, s[20:23], s48 offen sc1
s_add_u32 s49, s49, 1
s_waitcnt vmcnt(0)
v_cmp_ne_u32 vcc, s77, v33
s_cmp_ge_u32 s49, 0x40000
s_cbranch_scc1 {Lj}x
s_cbranch_vccnz {Lj}
{Lj}x:
s_mov_b64 exec, -1
{Lj}d:
s_barrier""")
    stamp.mark(a, 2)
    if hold1:
        Lh = a.label("hold1")
        a(f"""s_waitcnt lgkmcnt(0)
s_add_u32 s101, s96, {hold1}
{Lh}:
s_memrealtime s[98:99]
s_waitcnt lgkmcnt(0)
s_cmp_lt_u32 s98, s101
s_cbranch_scc1 {Lh}""")
    a(f"""buffer_load_dwordx4 v{VL}, s[20:23], s46 offen {LD} lds
buffer_load_dwordx2 {vr(Q16,2)}, v{VK}, s[20:23], s44 offen {LD}
buffer_load_dwordx2 {vr(Q16+2,2)}, v{VK}, s[20:23], s44 offen offset:512 {LD}
s_mov_b32 exec_hi, 0
buffer_load_dwordx2 {vr(Q8,2)}, v{VB}, s[20:23], s44 offen {LD}
s_mov_b32 exec_hi, -1""")
    for i in range(3):
        a(f"s_add_u32 m0, m0, 8192\ns_add_u32 s46, s46, 8192\nbuffer_load_dwordx4 v{VL}, s[20:23], s46 offen {LD} lds")
    a(f"""v_lshl_add_u32 v{VB}, v2, 18, v{VB}
s_waitcnt vmcnt({2 if b1 == 3 else 0})
s_barrier""")
    hm(2)
    a(f"""ds_read2st64_b64 {vr(K16,4)}, v{VK} offset0:0 offset1:1
ds_read_b64 {vr(K8,2)}, v{VB}
s_waitcnt lgkmcnt(0)
{M16} {vr(S[0],16)}, {vr(K16,4)}, {vr(Q16,4)}, 0
{M8} {vr(S[0],16)}, {vr(K8,2)}, {vr(Q8,2)}, {vr(S[0],16)}
ds_read2st64_b64 {vr(K16,4)}, v{VK} offset0:5 offset1:6
ds_read_b64 {vr(K8,2)}, v{VB} offset:{TILE}
s_mov_b64 exec, s[30:31]
ds_read_b128 {vr(V0,4)}, v{VA}
ds_read_b128 {vr(V1,4)}, v{VA2}
s_mov_b64 exec, -1
s_nop 7
s_nop 3""")
    def kv():
        a(f"s_add_u32 m0, m0, 8192\ns_add_u32 s46, s46, 8192\nbuffer_load_dwordx4 v{VL}, s[20:23], s46 offen {LD} lds")
    wl = []
    for n in range(NFR, 54):
        i, c = n // 9, n % 9
        wl.append(f"s_add_u32 m0, s76, {1024*(n - NFR)}\ns_add_u32 s73, s{BB+c}, {1024*i}\nbuffer_load_dwordx4 v{VL}, s[20:23], s73 offen {LD} lds")
    pf = [bfrag(n, RING + 4 * n) for n in range(npre)]
    if pstep > 1:
        pf = sum([[x] + [''] * (pstep - 1) for x in pf], [])
    def pub_all():
        Lf = a.label("fall")
        a(f"""s_cmp_lg_u32 s3, {lead}
s_cbranch_scc1 {Lf}
s_lshl_b32 s48, s2, 2
s_add_u32 s48, s48, {FALL}
v_mov_b32 v85, s77
v_mov_b32 v86, 0
s_mov_b64 exec, 1
buffer_store_dword v85, v86, s[20:23], s48 offen sc1
s_mov_b64 exec, -1
{Lf}:""")
    def chk_all():
        La = a.label("alld")
        a(f"""s_cmp_lg_u32 s3, {lead}
s_cbranch_scc1 {La}d
s_mov_b32 s48, {FALL}
s_mov_b32 s49, 0
{La}:
buffer_load_dwordx4 v[88:91], v{VL}, s[20:23], s48 offen sc1
s_add_u32 s49, s49, 1
s_waitcnt vmcnt(0)
v_xor_b32 v88, s77, v88
v_xor_b32 v89, s77, v89
v_xor_b32 v90, s77, v90
v_xor_b32 v91, s77, v91
v_or3_b32 v88, v88, v89, v90
v_or_b32 v88, v88, v91
v_cmp_ne_u32 vcc, 0, v88
s_cmp_ge_u32 s49, 0x40000
s_cbranch_scc1 {La}d
s_cbranch_vccz {La}d
s_sleep {slp}
s_branch {La}
{La}d:""")
    post = defer == 'post'
    if post:
        pf0 = tall + 1
    base = 0
    for t in range(64):
        if t in prios:
            a(f"s_setprio {prios[t]}")
        if t in (23, 46):
            a(f"v_add_u32 v{VA}, {23*TILE}, v{VA}\nv_add_u32 v{VB}, {23*TILE}, v{VB}\nv_add_u32 v{VK}, {23*TILE}, v{VK}\nv_add_u32 v{VA2}, {23*TILE}, v{VA2}")
            base = t
        j0 = j1 = None
        if t < 8:
            j0 = j1 = kv
        elif post and 8 <= t < 13:
            import k1
            def hs(mi):
                so = "s78" if mi >= 8 else "s79"
                a(f"buffer_store_dwordx4 {vr(k1.hout(mi),4)}, v244, s[20:23], {so} offen offset:{128*(mi&1)} sc1")
                if mi & 1 and mi < 7:
                    a(f"s_add_u32 s79, s79, {2*FB}")
            j0 = (lambda m=2*(t-8): hs(m)); j1 = (lambda m=2*(t-8)+1: hs(m))
        elif post and t >= pf0:
            if pf: j1 = (lambda x=pf.pop(0): a(x))
            if pf and t < 42 and len(pf) > 62 - t: j0 = (lambda x=pf.pop(0): a(x))
        elif pf0 <= t < pf0 + len(pf):
            j1 = (lambda x=pf[t - pf0]: a(x))
        if TDEAD < t <= TDEAD + len(wl):
            j0 = (lambda x=wl[t - TDEAD - 1]: a(x))
        if warm and t == warm:
            assert j0 is None
            j0 = lambda: a(f"buffer_load_dword v253, v252, s[20:23], s72 offen {LD}")
        a(f"Ltile{t}:")
        tile(a, t, base, j0, j1)
        if fused and 24 <= t < 40 and t % 2 == 0:
            Lt = a.label("tag2")
            a(f"s_cmp_lg_u32 s3, {(t - 24) // 2}\ns_cbranch_scc1 {Lt}\nv_mov_b32 v85, 0\nglobal_load_dword v87, v85, s[6:7] sc1\n{Lt}:")
        if t == TDEAD:
            a("s_barrier")
            a(f"v_mov_b32 v85, {RDY}\nv_mov_b32 v86, 0\nds_write_b32 v85, v86\nds_write_b32 v85, v86 offset:4")
        if t == b1:
            a("s_waitcnt vmcnt(14)" if b1 == 7 else "s_waitcnt vmcnt(6)")
            hm(5)
            a("s_barrier")
            if defer and not post:
                pub_all()
        if t == 15:
            if fused and not post:
                chk_all()
            a("s_waitcnt vmcnt(0)\ns_barrier")
            if post:
                pub_all()
            elif fused:
                a(f"buffer_load_dword v{VG}, v{VG}, s[20:23], s47 offen sc1")
            hm(6)
        if post and t == tall:
            chk_all()
            a(f"s_barrier\nbuffer_load_dword v{VG}, v{VG}, s[20:23], s47 offen sc1")
    assert (not pf) if post else pf0 + len(pf) <= 64
    a(f"""s_waitcnt lgkmcnt(0)
{M16} {vr(O,16)}, {vr(V0,4)}, {vr(P,4)}, {vr(O,16)}
{M16} {vr(O,16)}, {vr(V1,4)}, {vr(P+4,4)}, {vr(O,16)}""")
    Lfin = a.label("k2fin"); Lfb = a.label("k2fb")
    stamp.mark(a, 3)
    a("Lattend:")
    T = S[0]
    a(f"""s_mul_i32 s48, s19, {2*FB}
s_add_u32 s48, s48, {AF}
s_lshl_b32 s50, s18, 9
s_add_u32 s50, s50, s48
s_lshl_b32 s49, s18, 7
s_add_u32 s49, s49, s48
s_add_u32 s49, s49, {FX}
v_lshrrev_b32 v{T+4}, 4, v1
v_mul_u32_u24 v{T+4}, {FB}, v{T+4}
v_and_b32 v{T+5}, 15, v1
v_lshl_add_u32 v{T+6}, v{T+5}, 3, v{T+4}
v_lshl_add_u32 v{T+4}, v{T+5}, 4, v{T+4}
v_lshl_add_u32 v{T+7}, v2, 8, v{T+4}
s_lshr_b32 s51, s19, 3
s_lshl_b32 s51, s51, 12
s_lshl_b32 s48, s18, 2
s_add_u32 s51, s51, s48
s_add_u32 s51, s51, {FLG}
s_mov_b32 s54, {hex(f2u(2.0**100))}
s_mov_b32 s55, {hex(f2u(2.0**-40))}
s_nop 3
v_mov_b32 v{T}, v{O+8}
v_mov_b32 v{T+1}, v{O+8}
s_nop 1
v_permlane32_swap_b32 v{T}, v{T+1}""")
    a(f"v_add_f32 v{T+2}, abs(v{O}), abs(v{O+1})\nv_add_f32 v{T+3}, abs(v{O+2}), v{T+1}")
    for i in range(3, 12):
        r = T + 2 + (i & 1)
        a(f"v_add_f32 v{r}, abs(v{O+i}), v{r}")
    a(f"""v_add_f32 v{T+2}, v{T+2}, v{T+3}
v_cmp_nge_f32 s[56:57], v{T+1}, s55
v_cmp_nle_f32 vcc, v{T+2}, s54
s_or_b64 vcc, vcc, s[56:57]
s_cbranch_vccnz {Lfb}
{Lfin}:
v_rcp_f32 v{T+1}, v{T+1}
s_nop 0
v_mul_f32 v{T+1}, v{VG}, v{T+1}""")
    for i in range(12):
        a(f"v_mul_f32 v{O+i}, v{T+1}, v{O+i}")
    for i in range(6):
        a(f"v_cvt_pk_bf16_f32 v{T+8+i}, v{O+2*i}, v{O+2*i+1}")
    a(f"""buffer_store_dwordx4 {vr(T+8,4)}, v{T+7}, s[20:23], s50 offen {st_o}
s_mov_b32 exec_hi, 0
buffer_store_dwordx2 {vr(T+12,2)}, v{T+6}, s[20:23], s49 offen {st_o}
s_mov_b32 exec_hi, -1
s_setprio 0""")
    if yprio:
        Ly = a.label("yp")
        a(f"s_cmp_lt_u32 s3, 4\ns_cbranch_scc1 {Ly}\ns_setprio 1\n{Ly}:")
    a(f"""v_and_b32 v1, 15, v0
v_lshlrev_b32 v1, 2, v1
s_lshl_b32 s48, s60, 8
s_add_u32 s48, s48, {GV}""")
    for mi in range(4):
        a(f"buffer_load_dword v{4+mi}, v1, s[20:23], s48 offen offset:{64*mi} {LD}")
    a("s_waitcnt vmcnt(6)")
    if fused:
        a("v_readfirstlane_b32 s77, v87\ns_nop 1")
    a(f"""v_lshlrev_b32 v2, 2, v0
v_mov_b32 v1, {"s77" if fused else "1"}
s_lshr_b32 s48, s60, 2
s_lshl_b32 s48, s48, 12
s_add_u32 s48, s48, {FLG}""")
    out = ["st", "st"] + ["g"] * 4
    def wait_for(pred):
        idx = [i for i, x in enumerate(out) if pred(x)]
        if not idx:
            return
        a(f"s_waitcnt vmcnt({len(out) - 1 - max(idx)})")
        del out[:max(idx) + 1]
    reg = {n: RING + 4 * n for n in range(NFR)}
    Lw = a.label("k2poll"); Lw2 = a.label("k2polld")
    tmp = PTMP
    WR = []; XWs = []; pool = []; wq = []
    def refill(i):
        free = pool + [reg[n] for n in range(9 * i, 9 * i + 9)]
        del pool[:]
        if i == 0:
            a(f"v_add_u32 v{tmp+2}, s76, v{VL}\nv_lshlrev_b32 v{tmp+3}, 3, v0")
        while free and len(reg) < 54:
            n = len(reg); reg[n] = free.pop(0)
            a(f"ds_read_b128 {vr(reg[n],4)}, v{tmp+2} offset:{1024*(n - NFR)}")
        publish(i)
        if i < wat:
            pool.extend(free)
            return []
        if i == wat:
            for k in range(10):
                r = free.pop(0); WR.append(r)
                pre = f"s_lshl_b32 s73, s75, 11\ns_add_u32 s73, s73, s72\n" if k == 0 else f"s_add_u32 s73, s73, {FB}\n" if k % 2 == 0 else ""
                wq.append(pre + f"buffer_load_dwordx4 {vr(r,4)}, v{VL}, s[20:23], s73 offen offset:{1024*(k&1)} {LD}")
            XWs.extend(free[:3]); del free[:3]
            for j in range(5):
                pre = f"s_lshl_b32 s73, s75, 9\ns_add_u32 s73, s73, s72\ns_add_u32 s73, s73, {FX}\n" if j == 0 else f"s_add_u32 s73, s73, {FB}\n"
                wq.append(pre + f"buffer_load_dwordx2 {vr(XWs[j//2] + 2*(j%2),2)}, v{tmp+3}, s[20:23], s73 offen {LD}")
            while wq and not wgap:
                a(wq.pop(0)); out.append("w")
        return free
    def await_o(WR, AR, XW, XA, tmp):
        a(f"""s_lshl_b32 s52, s75, 11
s_add_u32 s52, s52, s71
s_lshl_b32 s49, s75, 9
s_add_u32 s49, s49, s71
s_add_u32 s49, s49, {FX}
s_lshl_b32 s53, s75, 2
s_lshl_b32 s53, 15, s53
v_mov_b32 v{tmp}, {RDY}
s_mov_b32 s55, 0
s_cmp_lg_u32 s3, {lead2}
s_cbranch_scc1 {Lw2}""")
        PR = spare[16]
        def poll(L, Lx, want):
            def look(reg):
                return f"""v_cmp_eq_u32 vcc, s77, v{reg}
s_add_u32 s55, s55, 1
s_cmp_ge_u32 s55, {1 if nosync else 0x40000}
s_cselect_b32 s54, -1, vcc_lo
v_mov_b32 v{tmp+1}, s54
ds_write_b32 v{tmp}, v{tmp+1}
s_and_b32 s56, s54, {want}
s_cmp_lg_u32 s56, {want}"""
            if not ppoll:
                a(f"""s_mov_b32 exec_hi, 0
{L}:
buffer_load_dword v1, v2, s[20:23], s48 offen sc1
s_waitcnt vmcnt(0)
{look(1)}
s_cbranch_scc1 {L}
s_mov_b32 exec_hi, -1""")
            else:
                a(f"""s_mov_b32 exec_hi, 0
buffer_load_dword v{PR}, v2, s[20:23], s48 offen sc1
s_sleep 8
{L}:
buffer_load_dword v{PR+1}, v2, s[20:23], s48 offen sc1
s_waitcnt vmcnt(1)
{look(PR)}
s_cbranch_scc0 {L}e
buffer_load_dword v{PR}, v2, s[20:23], s48 offen sc1
s_waitcnt vmcnt(1)
{look(PR+1)}
s_cbranch_scc1 {L}
{L}e:
s_mov_b32 exec_hi, -1""")
        poll(Lw, None, "s53")
        a(f"""s_branch {Lw2}x
{Lw2}:
ds_read_b32 v1, v{tmp}
s_add_u32 s55, s55, 1
s_waitcnt lgkmcnt(0)
v_readfirstlane_b32 s54, v1
s_cmp_ge_u32 s55, 0x400000
s_cselect_b32 s54, -1, s54
s_and_b32 s54, s54, s53
s_cmp_eq_u32 s54, s53
s_cbranch_scc1 {Lw2}x
s_sleep 1
s_branch {Lw2}
{Lw2}x:""")
        tm(1)
        for mi in range(4):
            if mi == 2 and osplit:
                selectors()
            for k in range(2):
                a(f"buffer_load_dwordx4 {vr(AR[4*k+mi],4)}, v{VL}, s[20:23], s52 offen offset:{1024*k} sc1")
            a(f"buffer_load_dwordx2 {vr(XA[mi],2)}, v{tmp+3}, s[20:23], s49 offen sc1")
            if mi < 3:
                a(f"s_add_u32 s52, s52, {FB}\ns_add_u32 s49, s49, {FB}")
            out.extend(["o"] * 3)
        Lr = a.label("k2rest")
        a(f"""s_cmp_lg_u32 s3, {lead2}
s_cbranch_scc1 {Lr}x
s_cmp_eq_u32 s54, -1
s_cbranch_scc1 {Lr}x""")
        poll(Lr, None, "-1")
        a(f"{Lr}x:")
    def publish(i):
        for pos, br in ((pubo, "s_cbranch_scc0"), (puby, "s_cbranch_scc1")):
            if i != pos:
                continue
            n = len(out) - 1 - max(k for k, x in enumerate(out) if x == "st")
            Lnp = a.label("k2np")
            a(f"""s_cmp_lt_u32 s3, 4
{br} {Lnp}
s_setprio 0
s_waitcnt vmcnt({n})
s_mov_b64 exec, 1
v_mov_b32 v{PT}, {RDY}
v_mov_b32 v{PT+1}, 1
ds_add_rtn_u32 v{PT+1}, v{PT}, v{PT+1} offset:4
s_waitcnt lgkmcnt(0)
v_readfirstlane_b32 s54, v{PT+1}
s_cmp_lg_u32 s54, 7
s_cbranch_scc1 {Lnp}y
buffer_store_dword v1, v2, s[20:23], s51 offen sc1
{Lnp}y:
s_mov_b64 exec, -1""")
            tm(6)
            a(f"{Lnp}:")
    PT = PTMP
    publish(-1)
    spare = []
    for i in range(6):
        if i == 4:
            a("s_waitcnt lgkmcnt(0)")
        for mi in range(4):
            for ni in range(5):
                d = GA + 4 * (mi * 5 + ni)
                c = "0" if i == 0 else vr(d, 4)
                a(f"{MM} {vr(d,4)}, {vr(reg[9*i+4+ni],4)}, {vr(reg[9*i+mi],4)}, {c}")
                if wq and (mi * 5 + ni) % wgap == wgap - 1:
                    a(wq.pop(0)); out.append("w")
        spare += refill(i)
    assert not wq
    XW = [XWs[j // 2] + 2 * (j % 2) for j in range(5)]
    AR = spare[:8]; XA = [spare[8 + k // 2] + 2 * (k % 2) for k in range(4)]
    spare = spare[10:]
    if stamp.TODEBUG is None and (tailmarks or not stamp.REAL): stamp.mark(a, 4)
    wait_for(lambda x: x == "g")
    a("s_nop 4")
    for mi in range(4):
        a(f"v_sub_f32 v{tmp}, 1.0, v{4+mi}\nv_mov_b32 v{tmp+1}, v{tmp}")
        for q in range(10):
            d = GA + 20 * mi + 2 * q
            a(f"v_pk_mul_f32 {vr(d,2)}, {vr(d,2)}, {vr(tmp,2)}")
    SS = STG + 64
    SELR = spare[:4]
    def selectors():
        a(f"""s_and_b32 s57, s3, 3
s_lshl_b32 s57, s57, 6
s_add_u32 s57, s57, s76
v_lshlrev_b32 v4, 3, v0
v_add_u32 v4, s57, v4
v_bfe_u32 v5, v0, 2, 2
v_mul_u32_u24 v5, {SS}, v5
v_lshrrev_b32 v6, 4, v0
v_lshl_add_u32 v5, v6, 5, v5
v_and_b32 v7, 3, v0
v_lshl_add_u32 v5, v7, 3, v5
s_lshl_b32 s57, s3, 9
v_add_u32 v5, s57, v5
v_and_b32 v7, 15, v0
v_sub_u32 v6, v7, v6
v_mov_b32 v1, 0x3f803f80""")
        for p in range(4):
            a(f"v_cmp_eq_u32 vcc, {4*p}, v6\ns_nop 1\nv_cndmask_b32 v{SELR[p]}, 0, v1, vcc")
            for q in range(1, 4):
                a(f"v_mov_b32 v{SELR[p]+q}, v{SELR[p]}")
    await_o(WR, AR, XW, XA, tmp)
    assert out[-12:] == ["o"] * 12
    if not osplit:
        selectors()
    def flush(g):
        d = GA + 4 * g
        a(f"v_cvt_pk_bf16_f32 v{d}, v{d}, v{d+1}\nv_cvt_pk_bf16_f32 v{d+1}, v{d+2}, v{d+3}\nds_write_b64 v4, {vr(d,2)} offset:{512*g}")
    for mi in range(4):
        for k in range(3):
            a(f"s_waitcnt vmcnt({11 - 3*mi - k})" + (" lgkmcnt(0)" if mi + k == 0 else ""))
            if am == 3 * mi + k: tm(5)
            for ni in range(5):
                d = GA + 4 * (mi * 5 + ni)
                if k < 2:
                    a(f"{MM} {vr(d,4)}, {vr(WR[2*ni+k],4)}, {vr(AR[4*k+mi],4)}, {vr(d,4)}")
                else:
                    a(f"{MX} {vr(d,4)}, {vr(XW[ni],2)}, {vr(XA[mi],2)}, {vr(d,4)}")
                if mi and k == 1:
                    flush(5 * (mi - 1) + ni)
    tm(2)
    a("s_nop 3")
    for ni in range(5):
        flush(15 + ni)
    if am is None: tm(5)
    a(f"""v_lshrrev_b32 v1, 4, v0
v_lshl_add_u32 v1, v7, 2, v1
v_and_b32 v2, 15, v1
v_mul_u32_u24 v2, 1280, v2
v_lshrrev_b32 v1, 4, v1
v_lshl_add_u32 v7, v1, 3, v2
s_mul_i32 s48, s60, {64*1280}
s_mul_i32 s49, s61, 160
s_add_u32 s48, s48, s49""")
    for u in range(3):
        a(f"""s_add_u32 s49, s3, {8*u}
s_mul_i32 s50, s49, 205
s_lshr_b32 s50, s50, 10
s_mul_i32 s{52+u}, s50, {16*1280 - 5*32}
s_lshl_b32 s49, s49, 5
s_add_u32 s{52+u}, s{52+u}, s49
s_add_u32 s{52+u}, s{52+u}, s48""")
    a("s_waitcnt lgkmcnt(0)\ns_barrier")
    a("Lfinal:")
    Lo = a.label("k2o")
    RB = spare[4]
    assert spare[4:16] == [RB + 4 * i for i in range(12)] or True
    RBs = spare[4:16]
    def rd(u):
        for p in range(4):
            for hf in range(2):
                a(f"ds_read_b64_tr_b16 {vr(RBs[4*u+p] + 2*hf, 2)}, v5 offset:{4096*u + 128*p + 4*STG*hf}")
    def mm(u, pend):
        for p in range(4):
            a(f"s_waitcnt lgkmcnt({min(15, pend + 6 - 2*p)})")
            c = "0" if p == 0 else vr(GA + 4 * u, 4)
            a(f"{MM} {vr(GA+4*u,4)}, {vr(RBs[4*u+p],4)}, {vr(SELR[p],4)}, {c}")
    def fin(u):
        r = GA + 4 * u
        a(f"v_cvt_pk_bf16_f32 v{r}, v{r}, v{r+1}")
        a(f"v_cvt_pk_bf16_f32 v{r+1}, v{r+2}, v{r+3}")
        a(f"buffer_store_dwordx2 {vr(r,2)}, v7, s[24:27], s{52+u} offen {st_out}")
    rd(0); rd(1)
    mm(0, 8)
    a(f"s_cmp_ge_u32 s3, 4\ns_cbranch_scc1 {Lo}")
    rd(2)
    mm(1, 8)
    a("s_nop 1")
    fin(0)
    mm(2, 0)
    fin(1)
    a("s_nop 4")
    fin(2)
    stamp.flush(a, 0 if fused else 1, 4 if not stamp.ENABLED else 7, 0, drain=False)
    a("s_endpgm")
    a(f"{Lo}:")
    mm(1, 0)
    fin(0)
    a("s_nop 4")
    fin(1)
    stamp.flush(a, 0 if fused else 1, 4 if not stamp.ENABLED else 7, 0, drain=False)
    a("s_endpgm")
    NM = S[1]
    Lp1 = a.label("k2p1"); Lp2 = a.label("k2p2")
    a(f"""{Lfb}:
v_bfe_u32 v85, v1, 2, 2
v_xor_b32 v85, v85, v2
v_lshlrev_b32 v85, 4, v85
v_lshl_add_u32 v{VA}, v1, 6, v85
v_add_u32 v{VA}, 1280, v{VA}
v_xor_b32 v{VA2}, 32, v{VA}
v_and_b32 v{VB}, 7, v1
v_lshlrev_b32 v{VB}, 4, v{VB}
v_and_b32 v85, 8, v1
v_add_u32 v{VB}, v85, v{VB}
v_and_b32 v85, 16, v1
v_lshl_add_u32 v{VB}, v85, 3, v{VB}
v_lshl_add_u32 v{VK}, v2, 8, v{VB}
v_add_u32 v{VB}, 1024, v{VB}
s_add_u32 s46, s43, {KV}
s_mov_b32 s37, 0
v_mov_b32 v85, 0xff7fffff
{Lp1}:
buffer_load_dwordx2 {vr(K16,2)}, v{VK}, s[20:23], s46 offen {LD}
buffer_load_dwordx2 {vr(K16+2,2)}, v{VK}, s[20:23], s46 offen offset:512 {LD}
buffer_load_dwordx2 {vr(K8,2)}, v{VB}, s[20:23], s46 offen {LD}
s_waitcnt vmcnt(0)
{M16} {vr(S[0],16)}, {vr(K16,4)}, {vr(Q16,4)}, 0
{M8} {vr(S[0],16)}, {vr(K8,2)}, {vr(Q8,2)}, {vr(S[0],16)}
s_nop 7
s_nop 7""")
    for i in range(8):
        a(f"v_max3_f32 v85, v85, v{S[0]+2*i}, v{S[0]+2*i+1}")
    a(f"""s_add_u32 s46, s46, {TILE}
s_add_u32 s37, s37, 1
s_cmp_lt_u32 s37, 64
s_cbranch_scc1 {Lp1}
v_mov_b32 v86, v85
s_nop 1
v_permlane32_swap_b32 v85, v86
s_nop 1
v_max_f32 v85, v85, v86""")
    for i in range(16):
        a(f"v_sub_f32 v{NM+i}, 0, v85")
        a(f"v_mov_b32 v{O+i}, 0")
    a(f"""s_add_u32 s46, s43, {KV}
s_mov_b32 s37, 0
{Lp2}:
buffer_load_dwordx2 {vr(K16,2)}, v{VK}, s[20:23], s46 offen {LD}
buffer_load_dwordx2 {vr(K16+2,2)}, v{VK}, s[20:23], s46 offen offset:512 {LD}
buffer_load_dwordx2 {vr(K8,2)}, v{VB}, s[20:23], s46 offen {LD}
s_mov_b64 exec, s[30:31]
buffer_load_dwordx4 {vr(V0,4)}, v{VA}, s[20:23], s46 offen {LD}
buffer_load_dwordx4 {vr(V1,4)}, v{VA2}, s[20:23], s46 offen {LD}
s_mov_b64 exec, -1
s_waitcnt vmcnt(0)
{M16} {vr(S[0],16)}, {vr(K16,4)}, {vr(Q16,4)}, {vr(NM,16)}
{M8} {vr(S[0],16)}, {vr(K8,2)}, {vr(Q8,2)}, {vr(S[0],16)}
s_nop 7
s_nop 7""")
    for i in range(16):
        a(f"v_exp_f32 v{S[0]+i}, v{S[0]+i}")
    a("s_nop 0")
    for i in range(8):
        a(f"v_cvt_pk_bf16_f32 v{P+i}, v{S[0]+2*i}, v{S[0]+2*i+1}")
    a(f"""s_nop 1
{M16} {vr(O,16)}, {vr(V0,4)}, {vr(P,4)}, {vr(O,16)}
{M16} {vr(O,16)}, {vr(V1,4)}, {vr(P+4,4)}, {vr(O,16)}
s_add_u32 s46, s46, {TILE}
s_add_u32 s37, s37, 1
s_cmp_lt_u32 s37, 64
s_cbranch_scc1 {Lp2}
s_nop 7
s_nop 7
v_mov_b32 v{T}, v{O+8}
v_mov_b32 v{T+1}, v{O+8}
v_lshrrev_b32 v{T+4}, 4, v1
v_mul_u32_u24 v{T+4}, {FB}, v{T+4}
v_and_b32 v{T+5}, 15, v1
v_lshl_add_u32 v{T+6}, v{T+5}, 3, v{T+4}
v_lshl_add_u32 v{T+4}, v{T+5}, 4, v{T+4}
v_lshl_add_u32 v{T+7}, v2, 8, v{T+4}
v_permlane32_swap_b32 v{T}, v{T+1}
s_nop 1
s_branch {Lfin}
{Lend}:
s_endpgm
code_end:""")
    kernel_desc(a, name, 256, 102 if stamp.ENABLED else 96)
```

```python
import sys
from gen import build
F = dict(fused=True, aslist=True, real=True)
V = {
 "fur": dict(**F),
 "u1": dict(**F, k1=dict(unr=1, pads={'compute': 0x1000 - 0x5d8, 'v': 0})),
 "nopad": dict(**F, k1=dict(pads={}), k2=dict(shift=None)),
 "it0": dict(**F, k1=dict(itlb=10), k2=dict(shift=0)),
 "it4": dict(**F, k1=dict(itlb=10), k2=dict(shift=1024-80)),
 **{f"sk{i}": dict(**F, k2=dict(shift=i*256)) for i in range(0, 17)},
 **{f"sh{i}": dict(**F, k2=dict(shift=i)) for i in range(0, 64, 4)},
 "nv4": dict(**F, k1=dict(nvar=4)),
 "nv5": dict(**F, k1=dict(nvar=5)),
 "nv6": dict(**F, k1=dict(nvar=6)),
 "nv72": dict(**F, k1=dict(nvar=7, vmul=3)),
 "nv52": dict(**F, k1=dict(nvar=5, vmul=2)),
 "nv1": dict(**F, k1=dict(nvar=1)),
 "nv2": dict(**F, k1=dict(nvar=2)),
 "lp0": dict(**F, k1=dict(lprio=0)),
 "rxcd": dict(**F, k1=dict(rot_enable="xcd")),
 "nmix": dict(**F, k1=dict(mix=False)),
 "l1": dict(**F, k2=dict(lay=1)), "l2": dict(**F, k2=dict(lay=2)), "l3": dict(**F, k2=dict(lay=3)), "l4": dict(**F, k2=dict(lay=4)),
 "c333": dict(**F, k2=dict(pubo=3, puby=3, wat=3, tailmarks=True)),
 "c442": dict(**F, k2=dict(pubo=4, puby=4, wat=2, tailmarks=True)),
 "c552": dict(**F, k2=dict(pubo=5, puby=5, wat=2, tailmarks=True)),
 "c522": dict(**F, k2=dict(pubo=5, puby=2, wat=2, tailmarks=True)),
 "c511": dict(**F, k2=dict(pubo=5, puby=1, wat=2, tailmarks=True)),
 "np": dict(**F, k2=dict(ppoll=False, tailmarks=True)),
 "ns": dict(**F, k2=dict(osplit=False, tailmarks=True)),
 "nn": dict(**F, k2=dict(osplit=False, ppoll=False, tailmarks=True)),
 "am0": dict(**F, k2=dict(am=0, tailmarks=True)),
 "am5": dict(**F, k2=dict(am=5, tailmarks=True)),
 "am11": dict(**F, k2=dict(am=11, tailmarks=True)),
 "nw": dict(**F, k2=dict(warm=0, tailmarks=True)),
 "w57": dict(**F, k2=dict(warm=57, tailmarks=True)),
 "w60g0": dict(**F, k2=dict(warm=60, wgap=0, tailmarks=True)),
 "w30": dict(**F, k2=dict(warm=30, tailmarks=True)),
 "g0": dict(**F, k2=dict(wgap=0, tailmarks=True)),
 "g1": dict(**F, k2=dict(wgap=1, tailmarks=True)),
 "g3": dict(**F, k2=dict(wgap=3, tailmarks=True)),
 "g4": dict(**F, k2=dict(wgap=4, tailmarks=True)),
 "w2a": dict(**F, k2=dict(pubo=2, puby=-1, tailmarks=True)),
 "w2b": dict(**F, k2=dict(pubo=2, puby=1, tailmarks=True)),
 "w2c": dict(**F, k2=dict(pubo=1, puby=0, tailmarks=True)),
 "w3": dict(**F, k2=dict(pubo=3, puby=0, wat=3, tailmarks=True)),
 "n32": dict(**F, k2=dict(npre=32)),
 "n22": dict(**F, k2=dict(npre=22, pstep=2)),
 "n27": dict(**F, k2=dict(npre=27)),
 "n36": dict(**F, k2=dict(npre=36)),
 "hp1": dict(**F, k1=dict(help=1)),
 "hp2": dict(**F, k1=dict(help=2)),
 "hp2x": dict(**F, k1=dict(help=2, helpx=True)),
 "hp1x": dict(**F, k1=dict(help=1, helpx=True)),
 "gd5": dict(**F, k1=dict(gudelay=50)),
 "gd10": dict(**F, k1=dict(gudelay=100)),
 "gd15": dict(**F, k1=dict(gudelay=150)),
 "y11": dict(**F, k2=dict(pubo=1, puby=1, yprio=True, tailmarks=True)),
 "y21": dict(**F, k2=dict(pubo=2, puby=1, yprio=True, tailmarks=True)),
 "y10": dict(**F, k2=dict(pubo=1, puby=0, yprio=True, tailmarks=True)),
 "y20": dict(**F, k2=dict(pubo=2, puby=0, yprio=True, tailmarks=True)),
 "q22": dict(**F, k2=dict(pubo=2, puby=2, tailmarks=True)),
 "q32": dict(**F, k2=dict(pubo=3, puby=2, tailmarks=True)),
 "q33": dict(**F, k2=dict(pubo=3, puby=3, tailmarks=True)),
 "q11": dict(**F, k2=dict(pubo=1, puby=1, tailmarks=True)),
 "q31": dict(**F, k2=dict(pubo=3, puby=1, tailmarks=True)),
 "m84": dict(**F, k2=dict(map84=True)),
 "pf16": dict(**F, k2=dict(pf0=16)),
 "pf21": dict(**F, k2=dict(pf0=21)),
 "norot": dict(**F, k1=dict(rot_enable=False)),
 "sp1": dict(**F, k1=dict(rot_enable=False, spf=1)),
 "sp2": dict(**F, k1=dict(rot_enable=False, spf=2)),
 "sp3": dict(**F, k1=dict(rot_enable=False, spf=3)),
 "sp21": dict(**F, k1=dict(rot_enable=False, spf=2, spf0=1)),
 "h12": dict(fused=True, aslist=True, hold=0, k2=dict(hold1=1200)),
 "h14": dict(fused=True, aslist=True, hold=0, k2=dict(hold1=1400)),
 "h15": dict(fused=True, aslist=True, hold=0, k2=dict(hold1=1500)),
 "h16": dict(fused=True, aslist=True, hold=0, k2=dict(hold1=1600)),
 "h18": dict(fused=True, aslist=True, hold=0, k2=dict(hold1=1800)),
 "h22": dict(fused=True, aslist=True, hold=0, k2=dict(hold1=2200)),
 "post": dict(**F, k1=dict(defer="post"), k2=dict(defer="post", prios={0:3, 2:2, 3:1, 4:3, 11:2, 14:1, 16:3, 20:2, 22:1, 23:3, 36:2, 40:1, 42:3, 56:2, 61:1, 63:0})),
 "xhalf": dict(**F, k2=dict(exp=("half",))),
 "xkb": dict(**F, k2=dict(exp=("kb128",))),
 "noh": dict(**F, k1=dict(half0=False, unr=2)),
 "h9": dict(**F, k1=dict(unr=9)),
 "u2": dict(**F, k1=dict(unr=2)),
 "u5": dict(**F, k1=dict(unr=5)),
 "nomix": dict(**F, k1=dict(mix=False)),
 "nocp": dict(**F, k1=dict(codepf=False)),
 "pf22": dict(**F, k2=dict(pf0=22)),
 "xjob": dict(**F, k2=dict(exp=("nojob",))),
 "xwait": dict(**F, k2=dict(exp=("nowait",))),
 "xds": dict(**F, k2=dict(exp=("nods", "nowait"))),
 "xall": dict(**F, k2=dict(exp=("nods", "nowait", "nojob"))),
 "osc1": dict(**F, k2=dict(st_out="sc1")),
 "ont": dict(**F, k2=dict(st_out="nt")),
 "osc01": dict(**F, k2=dict(st_out="sc0 sc1")),
 "nolf": dict(**F, k1=dict(ldfirst=False)),
 "noex": dict(**F, k1=dict(earlyx=False)),
 "ft": dict(**F, k2=dict(tailmarks=True)),
 "b7": dict(**F, k2=dict(b1=7, prios={0:3, 5:2, 7:1, 8:3, 13:2, 15:1, 16:3, 34:2, 39:1, 41:0, 42:3, 56:2, 61:1, 63:0})),
 "slp0": dict(**F, k2=dict(slp=0)),
}
for n in sys.argv[1:]:
    build(f"d_{n}.s", stamp=True, **V[n])
    build(f"t_{n}.s", stamp=False, **V[n])
```

```python
from common import *
import stamp

SLOT = 53248
NSLOT = 3
K1_LDS = NSLOT * SLOT
NST = 10
XR = 8
WR = 48
ACC = 80
VXB, VXS, VX = 240, 241, 242
VWB, VW = 243, 247
VEP = 251
NV = 256
MM = "v_mfma_f32_16x16x32_bf16"

def acc(mi, nj):
    return ACC + (mi * 4 + nj) * 4

UNR = [1]
HALF0 = [True]
def hout(mi):
    return 240 if mi == 0 else ACC + 16 * mi

def xoffs(mi, perm):
    return 4096 * (mi >> 1) + 1024 * (mi & 1)

def xread(mi, perm):
    return f"ds_read_b128 {vr(XR+4*mi,4)}, v{VX} offset:{xoffs(mi, perm)}"

def wreads(buf, ks):
    r = []
    for nj in range(4):
        for hf in range(2):
            r.append(f"ds_read_b64_tr_b16 {vr(WR+16*buf+4*nj+2*hf,2)}, v{VW+nj} offset:{8192*ks + 1024*hf}")
    return r

def step(a, buf, swap, ks_next, pend, pre=None, mid=None):
    w = [(("w", i), r) for i, r in enumerate(wreads(1 - buf, ks_next))]
    x = [(("x", mi), xread(mi, swap)) for mi in range(10)]
    sched = {}
    if mid is None:
        for mi in range(10): sched[(mi, 3)] = x[mi]
        for i in range(8): sched[(i, 1)] = w[i]
    else:
        sched[(1, 3)] = x[0]; sched[(2, 1)] = x[1]
        for mi in range(2, 10): sched[(mi, 3)] = x[mi]
        for i in range(7): sched[(3 + i, 1)] = w[i]
        sched[(9, 0)] = w[6]; sched[(8, 1)] = w[5]; sched[(9, 1)] = w[7]
    pre = list(pre or [])
    old = list(pend); new = []
    def need(pred):
        idx = [i for i, t in enumerate(old) if pred(t)]
        if idx:
            n = len(old) - 1 - max(idx) + len(new)
            k = min(n, 15)
            a(f"s_waitcnt lgkmcnt({k})")
            keep = max(0, k - len(new))
            del old[:len(old) - min(keep, len(old))]
    for mi in range(10):
        for nj in range(4):
            if mi == 0:
                need(lambda t: t == ("w", 2 * nj) or t == ("w", 2 * nj + 1) or t == ("x", 0))
            elif nj == 0 and ("x", mi) in old:
                need(lambda t: t[0] == "x" and t[1] <= min(mi + 3, 9))
            W = vr(WR + 16 * buf + 4 * nj, 4); X = vr(XR + 4 * mi, 4)
            A, B = (X, W) if swap else (W, X)
            c = vr(acc(mi, nj), 4)
            a(f"{MM} {c}, {A}, {B}, {c}")
            if mi == 1 and nj == 3 and mid is not None:
                assert not pre
                mid(); old = []
            if (mi, nj) in sched:
                t, r = sched[(mi, nj)]
                a(r); new.append(t)
            elif pre:
                a(pre.pop(0))
                if pre and mid is not None:
                    a(pre.pop(0))
    return new

def mainloop(a, swap):
    L = a.label("k1loop"); Lnb = a.label("k1nb")
    a(f"""s_mov_b32 s36, 0
s_mov_b32 s37, 0
v_mov_b32 v{VXS}, v{VXB}
v_mov_b32 v{VX}, v{VXB}""")
    for nj in range(4):
        a(f"v_mov_b32 v{VW+nj}, v{VWB+nj}")
    stamp.mark(a, 1)
    a("s_barrier")
    stamp.mark(a, 4 if stamp.TODEBUG is not None else 2)
    pre = [f"s_add_u32 s36, s36, {SLOT}", f"s_cmp_eq_u32 s36, {SLOT*NSLOT}", "s_cselect_b32 s36, 0, s36", "s_add_u32 s37, s37, 1",
           f"v_add_u32 v{VXS}, s36, v{VXB}", f"v_add_u32 v{VX}, s36, v{VXB}"] + [f"v_add_u32 v{VW+nj}, s36, v{VWB+nj}" for nj in range(4)] + [f"s_cmp_eq_u32 s37, {NST}"]
    def mid():
        a(f"""s_waitcnt lgkmcnt(0)
s_cbranch_scc1 {Lnb}
s_barrier
{Lnb}:""")
    scratch = Asm()
    entry = step(scratch, 1, swap, 0, [], pre, lambda: None)
    rd = {("x", mi): xread(mi, swap) for mi in range(10)}
    rd.update({("w", i): r for i, r in enumerate(wreads(0, 0))})
    for t in entry:
        a(rd[t])
    if HALF0[0]:
        bar = lambda: a("s_waitcnt lgkmcnt(0)\ns_barrier")
        p = step(a, 0, swap, 1, entry, [f"v_xor_b32 v{VX}, 64, v{VXS}"], bar)
        p = step(a, 1, swap, 0, p, pre, bar)
        assert p == entry and (NST - 1) % UNR[0] == 0
    a(".p2align 5")
    a(f"{L}:")
    for u in range(UNR[0]):
        if u < UNR[0] - 1:
            m = lambda: a("s_waitcnt lgkmcnt(0)\ns_barrier")
        else:
            m = mid
        p = step(a, 0, swap, 1, entry, [f"v_xor_b32 v{VX}, 64, v{VXS}"])
        p = step(a, 1, swap, 0, p, pre, m)
        assert p == entry, p
    a(f"""s_cmp_lg_u32 s37, {NST}
s_cbranch_scc1 {L}
s_waitcnt lgkmcnt(0)
s_nop 7""")
    stamp.mark(a, 5 if stamp.TODEBUG is not None else 4 if stamp.REAL else 3)

def gen_k1(a, name, rot_enable="xcdw", nvar=3, nt_x="", nt_w="", st_h="sc1", st_qk="sc1", st_v="sc1", st_w="sc1", wb=False, codepf=True, fast=True, delay=None, mix=True, pfd=0, fused=False, defer=False, unr=3, vperm=False, clus=False, ldfirst=True, earlyx=True, half0=True, spf=0, spf0=2, gudelay=0, help=0, helpx=False, lprio=3, vmul=1, itlb=0, pads={'compute': 0x224, 'v': 0x800}):
    def gap(key):
        if key in pads:
            a(".p2align 12")
            if pads[key]:
                a(f".fill {pads[key]//4}, 4, 0xbf800000")
    HALF0[0] = half0
    UNR[0] = unr
    def done():
        if fused:
            a(f"s_branch {name}_join")
        else:
            stamp.flush(a, 0, 4, 0)
            a("s_endpgm")
    kernel_head(a, name)
    Lend = f"{name}_end"
    a(f"s_cmp_ge_u32 s2, 256\ns_cbranch_scc1 {Lend}")
    stamp.init(a)
    if delay:
        mask, ticks = delay
        a(f"""s_and_b32 s40, s2, 7
s_lshr_b32 s41, {mask}, s40
s_bitcmp1_b32 s41, 0
s_cbranch_scc0 {name}_nodelay
s_memrealtime s[42:43]
s_waitcnt lgkmcnt(0)
s_add_u32 s44, s42, {ticks}
{name}_dl:
s_memrealtime s[42:43]
s_waitcnt lgkmcnt(0)
s_cmp_lt_u32 s42, s44
s_cbranch_scc1 {name}_dl
{name}_nodelay:""")
    a(f"""s_load_dwordx4 s[4:7], s[0:1], 0
s_load_dwordx2 s[8:9], s[0:1], 16
s_load_dwordx4 s[12:15], s[0:1], 32
s_load_dwordx2 s[10:11], s[0:1], 48
s_load_dwordx2 s[16:17], s[0:1], 80
s_load_dwordx2 s[78:79], s[0:1], 56
v_lshrrev_b32 v1, 6, v0
v_and_b32 v0, 63, v0
v_readfirstlane_b32 s3, v1
s_and_b32 s40, s2, 7
s_mov_b32 s55, s3
s_lshl_b32 s40, s40, 5
s_lshr_b32 s41, s2, 3
s_add_u32 s38, s40, s41
s_cmp_eq_u32 s38, 255
s_cbranch_scc1 {name}_idle
s_mul_i32 s42, s38, 1009
s_lshr_b32 s42, s42, 16
s_mul_i32 s43, s42, 65
s_sub_u32 s43, s38, s43
s_mul_i32 s18, s43, 205
s_lshr_b32 s18, s18, 10
s_mul_i32 s39, s18, 5
s_sub_u32 s39, s43, s39
s_cmp_lt_u32 s38, 235
s_cbranch_scc1 {name}_dec
s_sub_u32 s43, s38, 235
s_lshr_b32 s18, s43, 2
s_add_u32 s18, s18, 8
s_and_b32 s39, s43, 3
{name}_dec:
s_mul_i32 s19, s42, 3
s_lshl_b32 s43, s42, 1
s_add_u32 s43, s43, 9
s_cmp_lt_u32 s39, 3
s_cselect_b32 s19, s19, s43
s_add_u32 s19, s19, s39
s_cmp_ge_u32 s3, 4
{"s_cbranch_scc0 " + name + "_compute" if ldfirst else "s_cbranch_scc1 " + name + "_loader"}""")
    mark_c = len(a.lines)
    gap("compute")
    a(f"{name}_compute:")
    if codepf:
        a(f"""s_cmp_lg_u32 s3, 0
s_cbranch_scc1 {name}_nocp
s_getpc_b64 s[56:57]
{name}_pc:
s_sub_u32 s56, s56, {name}_pc-{name}
s_subb_u32 s57, s57, 0
{chr(10).join(f"s_load_dword s60, s[56:57], {4096*k}" for k in range(1, itlb + 1))}
s_lshl_b32 s58, s41, 11
v_lshlrev_b32 v1, 7, v0
v_add_u32 v1, s58, v1
s_mov_b32 s59, code_end-{name}
v_cmp_gt_u32 vcc, s59, v1
s_and_b64 exec, vcc, 0xffff
s_cbranch_execz {name}_cpx
global_load_dword v255, v1, s[56:57]
{name}_cpx:
s_mov_b64 exec, -1
{name}_nocp:""")
    if fused:
        a(f"""s_lshl_b32 s56, s2, 3
s_add_u32 s56, s56, s3
s_cmp_lg_u32 s56, 1
s_cbranch_scc1 {name}_notag
s_load_dwordx2 s[56:57], s[0:1], 72
s_memrealtime s[58:59]
v_mov_b32 v1, 0
s_waitcnt lgkmcnt(0)
s_or_b32 s58, s58, 1
v_mov_b32 v2, s58
s_mov_b64 exec, 1
global_store_dword v1, v2, s[56:57] sc1
s_mov_b64 exec, -1
{name}_notag:""")
    a(f"""v_and_b32 v1, 15, v0
v_lshrrev_b32 v2, 4, v0
v_bfe_u32 v3, v0, 2, 2
v_lshl_add_u32 v6, v2, 3, v3
v_lshlrev_b32 v6, 8, v6
v_and_b32 v4, 3, v0
v_lshl_add_u32 v6, v4, 3, v6
v_and_b32 v5, 1, v2
v_lshl_add_u32 v5, v5, 2, v3
v_lshrrev_b32 v3, 1, v1
v_xor_b32 v3, v3, v2
v_lshlrev_b32 v3, 4, v3
v_and_b32 v4, 8, v1
v_lshl_add_u32 v3, v1, 7, v3
v_lshl_add_u32 v{VXB}, v4, 7, v3
s_mul_i32 s46, s18, 5
s_mov_b32 s47, 5
s_cmp_eq_u32 s18, 12
s_cmov_b32 s47, 4
s_cmp_eq_u32 s19, 19
s_cbranch_scc1 {name}_spec
s_lshl_b32 s45, s3, 1
v_xor_b32 v5, s45, v5
v_lshl_add_u32 v6, v5, 5, v6
v_add_u32 v{VWB}, 20480, v6
v_xor_b32 v{VWB+1}, 32, v{VWB}
v_add_u32 v{VWB+2}, 16384, v{VWB}
v_add_u32 v{VWB+3}, 16384, v{VWB+1}
s_sub_u32 s48, s19, 17
s_lshl_b32 s48, s48, 8
s_lshl_b32 s49, s3, 5
s_add_u32 s48, s48, s49
s_movk_i32 s49, 128
s_branch {name}_cont
{name}_spec:
s_and_b32 s45, s3, 1
s_lshl_b32 s48, s45, 6
s_add_u32 s48, s48, 512
s_lshl_b32 s45, s45, 2
v_xor_b32 v5, s45, v5
v_lshl_add_u32 v6, v5, 5, v6
v_add_u32 v{VWB}, 32768, v6
v_xor_b32 v{VWB+1}, 32, v{VWB}
v_xor_b32 v{VWB+2}, 64, v{VWB}
v_xor_b32 v{VWB+3}, 96, v{VWB}
s_lshr_b32 s45, s3, 1
s_lshl_b32 s46, s18, 3
s_lshl_b32 s49, s45, 2
s_add_u32 s46, s46, s49
s_lshl_b32 s45, s45, 14
v_add_u32 v{VXB}, s45, v{VXB}
s_mov_b32 s47, 4
s_mov_b32 s49, 32
{name}_cont:""")
    for i in range(4):
        a(f"v_mov_b32 v{VEP+i}, 0")
    for i in range(160):
        a(f"v_mov_b32 v{ACC+i}, 0")
    a("s_waitcnt lgkmcnt(0)")
    srd(a, 20, 16, WS_END)
    a(f"""s_cmp_ge_u32 s19, 17
s_cbranch_scc1 {name}_v
s_cmp_lt_u32 s19, 12
s_cbranch_scc1 {name}_loop""")
    a(f"{name}_qk:")
    c = 1.4426950408889634 * (20.0 ** -0.5)
    a(f"""s_sub_u32 s48, s19, 12
s_lshl_b32 s48, s48, 6
s_lshl_b32 s49, s3, 3
s_add_u32 s48, s48, s49
s_add_u32 s49, s48, 32""")
    for sd in range(2):
        a(f"""s_cmp_lt_u32 s{48+sd}, 160
s_cselect_b32 s{52+sd}, {hex(f2u(c))}, 1.0
s_cselect_b32 s{50+sd}, {QF}, {KV}
s_cselect_b32 s54, 0, 160
s_sub_u32 s{48+sd}, s{48+sd}, s54""")
    a(f"""v_lshlrev_b32 v11, 4, v1
s_mov_b32 s54, {HEADB}""")
    for sd in range(2):
        for j in range(2):
            if True:
                e = VEP + sd * 2 + j
                a(f"""v_add_u32 v8, s{48+sd}, v2
v_add_u32 v8, {4*j}, v8
v_mul_u32_u24 v9, 205, v8
v_lshrrev_b32 v9, 10, v9
v_mul_u32_u24 v12, 5, v9
v_sub_u32 v8, v8, v12
v_lshrrev_b32 v12, 1, v8
v_and_b32 v13, 1, v8
v_lshl_add_u32 v13, v13, 1, v12
v_cmp_eq_u32 vcc, 4, v8
v_mad_u32_u24 v9, v9, s54, v11
v_add_u32 v9, s{50+sd}, v9
v_cndmask_b32 v12, v13, v8, vcc
v_lshlrev_b32 v12, 8, v12
v_add_u32 v{e}, v9, v12""")
    a(f"{name}_loop:")
    mainloop(a, False)
    a(f"s_cmp_lt_u32 s19, 12\ns_cbranch_scc1 {name}_gu_epi")
    a(f"""v_mov_b32 v8, s52
v_mov_b32 v9, s52
v_mov_b32 v10, s53
v_mov_b32 v11, s53
s_mul_i32 s49, s46, {TILE}""")
    Ldq = f"{name}_qk_done"
    for p in range(5):
        if p == 4:
            a(f"s_cmp_eq_u32 s47, 4\ns_cbranch_scc1 {Ldq}")
        for nj in range(4):
            sc = 8 + 2 * (nj >> 1)
            r, r2 = acc(2 * p, nj), acc(2 * p + 1, nj)
            for x in (r, r + 2, r2, r2 + 2):
                a(f"v_pk_mul_f32 {vr(x,2)}, {vr(x,2)}, {vr(sc,2)}")
            a(f"""v_cvt_pk_bf16_f32 v{r}, v{r}, v{r+1}
v_cvt_pk_bf16_f32 v{r+1}, v{r+2}, v{r+3}
v_cvt_pk_bf16_f32 v{r+2}, v{r2}, v{r2+1}
v_cvt_pk_bf16_f32 v{r+3}, v{r2+2}, v{r2+3}
buffer_store_dwordx4 {vr(r,4)}, v{VEP+nj}, s[20:23], s49 offen {st_qk}""")
        if p < 4:
            a(f"s_add_u32 s49, s49, {TILE}")
    a(f"{Ldq}:")
    if wb:
        stamp.mark(a, 5)
        a(f"s_waitcnt vmcnt(0)\ns_cmp_lg_u32 s3, 0\ns_cbranch_scc1 {Ldq}x\nbuffer_wbl2 sc1\n{Ldq}x:")
    done()
    gap("gu")
    a(f"{name}_gu_epi:")
    CA, CB, ONE = 8, 10, 12
    A_ = -2.0 * 0.7978845608028654 * 1.4426950408889634 * 0.044715
    B_ = -2.0 * 0.7978845608028654 * 1.4426950408889634
    a(f"""v_mov_b32 v{CA}, {hex(f2u(A_))}
v_mov_b32 v{CA+1}, {hex(f2u(A_))}
v_mov_b32 v{CB}, {hex(f2u(B_))}
v_mov_b32 v{CB+1}, {hex(f2u(B_))}
v_mov_b32 v{ONE}, 1.0
v_mov_b32 v{ONE+1}, 1.0
v_lshrrev_b32 v14, 3, v1
v_mul_u32_u24 v14, {FB - 128}, v14
v_lshl_add_u32 v14, v1, 4, v14
v_lshl_add_u32 v14, v2, 8, v14
s_lshl_b32 s48, s19, {1 if mix else 2}
s_add_u32 s48, s48, s3
s_cmp_ge_u32 s3, 2
s_cselect_b32 s50, {22 if mix else 0}, 0
s_add_u32 s48, s48, s50
s_lshl_b32 s48, s48, 10
s_mul_i32 s49, s46, {2*FB}
s_add_u32 s49, s49, s48
s_add_u32 s49, s49, {AF + FH}""")
    Ldone = f"{name}_gu_done"
    T0 = 16
    cnt = 0
    for mi in range(10):
        if mi == 8:
            a(f"s_cmp_eq_u32 s47, 4\ns_cbranch_scc1 {Ldone}")
        b = acc(mi, 0)
        pairs = [(b + 0, b + 8), (b + 2, b + 10), (b + 4, b + 12), (b + 6, b + 14)]
        out = hout(mi) if defer else 32 + 4 * (mi % 2)
        for q, (g, u) in enumerate(pairs):
            a(f"v_pk_mul_f32 {vr(T0+2*q,2)}, {vr(g,2)}, {vr(g,2)}")
        for q, (g, u) in enumerate(pairs):
            a(f"v_pk_fma_f32 {vr(T0+2*q,2)}, {vr(T0+2*q,2)}, {vr(CA,2)}, {vr(CB,2)}")
        for q, (g, u) in enumerate(pairs):
            a(f"v_pk_mul_f32 {vr(T0+2*q,2)}, {vr(T0+2*q,2)}, {vr(g,2)}")
        for q in range(8):
            a(f"v_exp_f32 v{T0+q}, v{T0+q}")
        for q, (g, u) in enumerate(pairs):
            a(f"v_pk_mul_f32 {vr(24+2*q,2)}, {vr(g,2)}, {vr(u,2)}")
        for q, (g, u) in enumerate(pairs):
            a(f"v_pk_add_f32 {vr(T0+2*q,2)}, {vr(T0+2*q,2)}, {vr(ONE,2)}")
        for q in range(8):
            a(f"v_rcp_f32 v{T0+q}, v{T0+q}")
        a("s_nop 0")
        for q in range(4):
            a(f"v_pk_mul_f32 {vr(24+2*q,2)}, {vr(24+2*q,2)}, {vr(T0+2*q,2)}")
        for q in range(4):
            a(f"v_cvt_pk_bf16_f32 v{out+q}, v{24+2*q}, v{25+2*q}")
        if not defer:
            a(f"buffer_store_dwordx4 {vr(out,4)}, v14, s[20:23], s49 offen offset:{128*(mi&1)} {st_h}")
            if mi & 1 and mi < 9:
                a(f"s_add_u32 s49, s49, {2*FB}")
    a(f"{Ldone}:")
    if defer == "post":
        a(f"""v_mov_b32 v244, v14
s_mov_b32 s79, s49
s_add_u32 s78, s49, {8*FB}
s_cmp_eq_u32 s47, 4
s_cselect_b32 s78, 0x80000000, s78
s_branch {name}_join2""")
    elif defer:
        for mi in range(10):
            if mi == 8:
                a(f"s_cmp_eq_u32 s47, 4\ns_cbranch_scc1 {name}_join2")
            a(f"buffer_store_dwordx4 {vr(hout(mi),4)}, v14, s[20:23], s49 offen offset:{128*(mi&1)} {st_h}")
            if mi & 1 and mi < 9:
                a(f"s_add_u32 s49, s49, {2*FB}")
        a(f"s_branch {name}_join")
    done()
    gap("v")
    a(f"{name}_v:")
    a(f"s_mov_b32 s54, {HEADB}")
    if vperm:
        a("v_lshrrev_b32 v13, 2, v0\nv_and_b32 v14, 3, v0")
    col, pc = ("v13", "v14") if vperm else ("v1", "v2")
    for nj in range(4):
        a(f"""v_add_u32 v8, s48, {col}
v_add_u32 v8, {16*(nj&1)}, v8""")
        if nj >= 2:
            a("v_add_u32 v8, s49, v8")
        a(f"""v_mul_u32_u24 v11, 205, v8
v_lshrrev_b32 v11, 12, v11
v_mul_u32_u24 v12, 20, v11
v_sub_u32 v10, v8, v12
v_bfe_u32 v12, v10, 2, 2
v_xor_b32 v12, v12, {pc}
v_lshlrev_b32 v12, 4, v12
v_lshl_add_u32 v12, v10, 6, v12
v_mad_u32_u24 v11, v11, s54, v12
v_add_u32 v{VEP+nj}, {KV + 1280}, v11""")
    mainloop(a, True)
    a(f"s_mul_i32 s49, s46, {TILE}")
    Ldv = f"{name}_v_done"
    if vperm:
        a(f"""s_mul_i32 s50, s3, 20480
s_add_u32 s50, s50, {SLOT + 20480}
v_lshrrev_b32 v8, 2, v1
v_add_u32 v8, v8, v2
v_and_b32 v8, 3, v8
v_lshlrev_b32 v8, 4, v8
v_lshl_add_u32 v8, v1, 6, v8
v_add_u32 v8, s50, v8
v_lshrrev_b32 v9, 4, v0
v_add_u32 v9, v9, v0
v_and_b32 v9, 3, v9
v_and_b32 v10, 60, v0
v_add_u32 v9, v9, v10
v_lshlrev_b32 v9, 4, v9
v_add_u32 v9, s50, v9""")
    def cvt(p, nj):
        r, r2 = acc(2 * p, nj), acc(2 * p + 1, nj)
        a(f"""v_cvt_pk_bf16_f32 v{r}, v{r}, v{r+1}
v_cvt_pk_bf16_f32 v{r+1}, v{r+2}, v{r+3}
v_cvt_pk_bf16_f32 v{r+2}, v{r2}, v{r2+1}
v_cvt_pk_bf16_f32 v{r+3}, v{r2+2}, v{r2+3}""")
    for p in range(5):
        if p == 4:
            a(f"s_cmp_eq_u32 s47, 4\ns_cbranch_scc1 {Ldv}")
        for nj in range(4):
            cvt(p, nj)
            r = acc(2 * p, nj)
            if vperm:
                a(f"ds_write_b128 v8, {vr(r,4)} offset:{1024*(4*p+nj)}")
            else:
                a(f"buffer_store_dwordx4 {vr(r,4)}, v{VEP+nj}, s[20:23], s49 offen {st_v}")
        if vperm:
            for nj in range(4):
                a(f"ds_read_b128 {vr(acc(2*p+1, nj),4)}, v9 offset:{1024*(4*p+nj)}")
            for nj in range(4):
                a(f"s_waitcnt lgkmcnt({3-nj})")
                a(f"buffer_store_dwordx4 {vr(acc(2*p+1, nj),4)}, v{VEP+nj}, s[20:23], s49 offen {st_v}")
        if p < 4:
            a(f"s_add_u32 s49, s49, {TILE}")
    a(f"{Ldv}:")
    if wb:
        stamp.mark(a, 5)
        a(f"s_waitcnt vmcnt(0)\ns_cmp_lg_u32 s3, 0\ns_cbranch_scc1 {Ldv}x\nbuffer_wbl2 sc1\n{Ldv}x:")
    done()
    mark_l = len(a.lines)
    a(f"{name}_loader:")
    if fast:
        a(f"s_setprio {lprio}")
    if gudelay:
        a(f"""s_cmp_ge_u32 s19, 12
s_cbranch_scc1 {name}_nogd
s_memrealtime s[42:43]
s_waitcnt lgkmcnt(0)
s_add_u32 s44, s42, {gudelay}
{name}_gd:
s_memrealtime s[42:43]
s_waitcnt lgkmcnt(0)
s_cmp_lt_u32 s42, s44
s_cbranch_scc1 {name}_gd
{name}_nogd:""")
    a(f"""s_sub_u32 s3, s3, 4
v_lshrrev_b32 v10, 3, v0
v_mul_u32_u24 v10, 1280, v10
v_and_b32 v11, 7, v0
v_lshrrev_b32 v12, 4, v0""")
    def wcols():
        a(f"""s_lshr_b32 s54, s3, 1
s_movk_i32 s56, 3072
s_lshl_b32 s57, s19, {7 if mix else 8}
s_cmp_ge_u32 s19, 12
s_cmovk_i32 s56, 3840
s_sub_u32 s58, s19, 12
s_lshl_b32 s58, s58, 9
s_lshl_b32 s60, s54, 8
s_add_u32 s58, s58, s60
s_cmp_ge_u32 s19, 12
s_cselect_b32 s57, s58, s57
s_cmp_eq_u32 s19, 19
s_cmovk_i32 s57, 3584
v_and_b32 v13, 15, v0
v_mul_u32_u24 v14, s56, v12
v_add_u32 v14, s57, v14
s_lshl_b32 s63, s56, 6""")
    if rot_enable == "xcd":
        a("s_and_b32 s59, s2, 7\ns_mul_i32 s59, s59, 5\ns_lshr_b32 s59, s59, 2")
    elif rot_enable == "xcdw":
        a(f"s_and_b32 s59, s2, 1\ns_mul_i32 s59, s59, {4 if clus else 5}")
    elif rot_enable == "xcdx":
        a("s_bfe_u32 s59, s2, 0x20001\ns_mul_i32 s59, s59, 5\ns_lshr_b32 s59, s59, 1")
    elif rot_enable:
        a(f"""s_lshl_b32 s59, s39, 1
s_mul_i32 s60, s18, 3
s_add_u32 s59, s59, s60
s_mul_i32 s60, s59, 205
s_lshr_b32 s60, s60, 11
s_mul_i32 s60, s60, 10
s_sub_u32 s59, s59, s60""")
    else:
        a("s_mov_b32 s59, 0")
    a(f"""s_mov_b32 s36, 0
s_cmp_eq_u32 s19, 19
s_cbranch_scc1 {name}_ldspec""")
    def srdw():
        a(f"""s_cmp_eq_u32 s54, 0
s_cselect_b32 s24, s12, s14
s_cselect_b32 s25, s13, s15
s_mov_b32 s26, {640*3072}
s_cmp_ge_u32 s19, 12
s_cselect_b32 s24, s6, s24
s_cselect_b32 s25, s7, s25
s_cmov_b32 s26, {640*3840}
s_and_b32 s25, s25, 0xffff
s_mov_b32 s27, 0x20000""")
    def srds():
        a("s_waitcnt lgkmcnt(0)")
        srd(a, 20, 4, 2048 * 1280)
        srdw()
    def xoff(dst, e, top):
        a(f"""v_add_u32 v15, {top}, v12
v_xor_b32 v15, v15, v11
v_lshl_add_u32 v15, v15, 4, v10
v_add_u32 v{dst}, {e*8*1280 - 1024*(e%4)}, v15""")
    def woffs(regular):
        a(f"""s_lshl_b32 s60, s56, 2
s_sub_u32 s60, s60, 1024""")
        if regular:
            a(f"""s_cmp_lt_u32 s19, 12
s_cselect_b32 s69, {1536 - 128 if mix else 0}, 0
s_cselect_b32 s68, 3, 0""")
        for hf in range(2):
            d = 6 + 2 * hf
            a(f"v_lshlrev_b32 v15, 1, v12\nv_xor_b32 v15, v15, v13")
            if hf:
                a("v_xor_b32 v15, 8, v15")
            if regular:
                a(f"""v_lshrrev_b32 v16, 1, v15
v_xor_b32 v16, v16, v15
v_and_b32 v16, 1, v16
v_mul_u32_u24 v16, s68, v16
v_xor_b32 v15, v15, v16""")
            a(f"v_lshl_add_u32 v{d}, v15, 4, v14")
            if regular:
                a(f"v_lshrrev_b32 v15, 3, v15\nv_mad_u32_u24 v{d}, v15, s69, v{d}")
            if hf:
                a(f"v_add_u32 v{d}, s60, v{d}\nv_add_u32 v{d}, s60, v{d}")
            a(f"v_add_u32 v{d+1}, s60, v{d}")
    def advance():
        a(f"""s_add_u32 s59, s59, 1
s_cmp_eq_u32 s59, {NST}
s_cselect_b32 s59, 0, s59
s_add_u32 s36, s36, {SLOT}
s_cmp_eq_u32 s36, {SLOT*NSLOT}
s_cselect_b32 s36, 0, s36""")
    def tail(nper):
        Ll = a.label("k1ld")
        return Ll
    a(f"""s_and_b32 s60, s3, 2
s_lshl_b32 s60, s60, 1""")
    xoff(1, 0, "s60")
    a(f"""s_mul_i32 s61, s18, 20
s_add_u32 s61, s61, s3
s_mul_i32 s61, s61, {8*1280}
s_lshl_b32 s65, s3, 10
s_lshl_b32 s62, s59, 7
s_add_u32 s62, s62, s61
s_mov_b32 m0, s65""")
    stamp.mark(a, 1)
    a("s_waitcnt lgkmcnt(0)")
    stamp.mark(a, 2)
    srd(a, 20, 4, 2048 * 1280)
    if earlyx:
        a(f"buffer_load_dwordx4 v1, s[20:23], s62 offen {nt_x} lds")
        for e in range(1, 5):
            a(f"s_add_u32 m0, m0, 4096\ns_add_u32 s62, s62, {32*1280}\nbuffer_load_dwordx4 v1, s[20:23], s62 offen {nt_x} lds")
    wcols()
    woffs(True)
    a(f"""s_and_b32 s60, s3, 1
s_lshl_b32 s67, s60, 4
s_mul_i32 s67, s67, s56
s_lshl_b32 s66, s54, 14
s_lshl_b32 s60, s60, 12
s_add_u32 s66, s66, s60
s_add_u32 s66, s66, 20480
s_lshl_b32 s68, s56, 5""")
    srdw()
    def mk_issue_reg(var):
        X = f"""s_add_u32 m0, s36, s65
s_nop 0
buffer_load_dwordx4 v1, s[20:23], s62 offen {nt_x} lds
buffer_load_dwordx4 v2, s[20:23], s62 offen offset:1024 {nt_x} lds
buffer_load_dwordx4 v3, s[20:23], s62 offen offset:2048 {nt_x} lds
buffer_load_dwordx4 v4, s[20:23], s62 offen offset:3072 {nt_x} lds
s_add_u32 m0, m0, 4096
s_nop 0
buffer_load_dwordx4 v5, s[20:23], s62 offen {nt_x} lds"""
        def W(so, lo):
            return f"""s_add_u32 m0, s36, {lo}
s_nop 0
buffer_load_dwordx4 v6, s[24:27], {so} offen {nt_w} lds
buffer_load_dwordx4 v7, s[24:27], {so} offen offset:1024 {nt_w} lds
buffer_load_dwordx4 v8, s[24:27], {so} offen offset:2048 {nt_w} lds
buffer_load_dwordx4 v9, s[24:27], {so} offen offset:3072 {nt_w} lds"""
        items = [("s65", 4096 * e, (f"s_add_u32 s74, s62, {32*1280*e}\n" if e else "") + f"buffer_load_dwordx4 v1, s[20:23], {'s74' if e else 's62'} offen {nt_x} lds") for e in range(5)]
        for so, lo in (("s64", "s66"), ("s69", "s73")):
            items += [(lo, 0, f"buffer_load_dwordx4 v{6+e}, s[24:27], {so} offen offset:{1024*e} {nt_w} lds") for e in range(4)]
        r = [0, 5, 9][var] if nvar <= 3 else round(13 * var / nvar)
        items = items[r:] + items[:r]
        lines = []; cur = None
        for b, add, ld in items:
            if (b, add) != cur:
                lines.append(f"s_add_u32 m0, s36, {b}")
                lines.append(f"s_add_u32 m0, m0, {add}" if add else "s_nop 0")
                cur = (b, add)
            lines.append(ld)
        lines = "\n".join(lines).split("\n")
        k = [i for i, l in enumerate(lines) if l.startswith("buffer_load")][3]
        def issue(part=None):
            if part == "w":
                a(f"""s_mul_i32 s64, s59, s63
s_add_u32 s64, s64, s67
s_add_u32 s69, s64, s68""")
                a(W("s64", "s66")); a(W("s69", "s73"))
                advance()
                return
            if part in (None, 0):
                a(f"""s_lshl_b32 s62, s59, 7
s_add_u32 s62, s62, s61
s_mul_i32 s64, s59, s63
s_add_u32 s64, s64, s67
s_add_u32 s69, s64, s68""")
                a("\n".join(lines[:k+1]))
            if part in (None, 1):
                a("\n".join(lines[k+1:]))
            if part == 0: return
            advance()
        return issue
    def clus_setup():
        a(f"""s_mul_i32 s70, s18, 37
s_lshr_b32 s70, s70, 8
s_mul_i32 s70, s70, 7
s_sub_u32 s70, s18, s70
v_lshrrev_b32 v17, 1, v0
v_mul_u32_u24 v17, 7, v17
v_add_u32 v17, s70, v17
v_cmp_gt_u32 vcc, 0x80, v17
v_mul_u32_u24 v17, s56, v17
v_add_u32 v17, s57, v17
s_movk_i32 s70, 128
s_movk_i32 s71, 256
s_cmp_lt_u32 s19, 12
s_cmovk_i32 s70, {1536 if mix else 128}
s_cmovk_i32 s71, 0
s_cselect_b32 s28, s12, s6
s_cselect_b32 s29, s13, s7
s_and_b32 s29, s29, 0xffff
s_mov_b32 s30, s26
s_mov_b32 s31, 0x20000
v_and_b32 v18, 1, v0
v_mad_u32_u24 v17, v18, s70, v17
v_subrev_u32 v20, s71, v17
v_mov_b32 v18, -1
v_cndmask_b32 v17, v18, v17, vcc
v_cndmask_b32 v20, v18, v20, vcc
v_and_b32 v18, 31, v0
v_mul_u32_u24 v18, 1280, v18
v_lshrrev_b32 v19, 5, v0
v_lshl_add_u32 v18, v19, 7, v18
s_lshl_b32 s70, s39, 5
s_mul_i32 s71, s18, 160
s_add_u32 s70, s70, s71
s_mul_i32 s70, s70, 1280""")
    def cluster(ahead):
        L = a.label("clus")
        a(f"""s_cmp_lg_u32 s3, 3
s_cbranch_scc1 {L}
s_add_u32 s71, s59, {ahead}
s_cmp_ge_u32 s71, {NST}
s_cselect_b32 s72, {NST}, 0
s_sub_u32 s71, s71, s72
s_lshl_b32 s72, s71, 7
s_add_u32 s72, s72, s70
s_mul_i32 s71, s71, s63
buffer_load_dword v19, v18, s[20:23], s72 offen
buffer_load_dword v19, v17, s[24:27], s71 offen
buffer_load_dword v19, v20, s[28:31], s71 offen
{L}:""")
    def spf_setup():
        a(f"""s_lshl_b32 s40, s38, 2
s_add_u32 s40, s40, s3
s_mul_i32 s41, s40, 2560
s_add_u32 s41, s41, {128*spf0}
s_add_u32 s44, s4, s41
s_addc_u32 s45, s5, 0
s_min_u32 s41, s40, 959
s_mul_i32 s42, s41, 4370
s_lshr_b32 s42, s42, 16
s_mul_i32 s43, s42, 15
s_sub_u32 s43, s41, s43
s_add_u32 s42, s42, {64*spf0}
s_mul_i32 s42, s42, 3840
s_lshl_b32 s43, s43, 8
s_add_u32 s42, s42, s43
s_add_u32 s46, s6, s42
s_addc_u32 s47, s7, 0
s_and_b32 s41, s40, 511
s_lshr_b32 s42, s41, 3
s_and_b32 s43, s41, 7
s_add_u32 s42, s42, {64*spf0}
s_mul_i32 s42, s42, 3072
s_mul_i32 s43, s43, 384
s_add_u32 s42, s42, s43
s_cmp_lt_u32 s40, 512
s_cselect_b32 s48, s12, s14
s_cselect_b32 s49, s13, s15
s_add_u32 s48, s48, s42
s_addc_u32 s49, s49, 0""")
    def spf_issue():
        a(f"""s_load_dword s50, s[44:45], 0
s_load_dword s50, s[44:45], 1280
s_load_dword s50, s[46:47], 0
s_load_dword s50, s[46:47], 128
s_load_dword s50, s[48:49], 0
s_load_dword s50, s[48:49], 128
s_load_dword s50, s[48:49], 256
s_add_u32 s44, s44, 128
s_addc_u32 s45, s45, 0
s_add_u32 s46, s46, {64*3840}
s_addc_u32 s47, s47, 0
s_add_u32 s48, s48, {64*3072}
s_addc_u32 s49, s49, 0""")
    def help_setup():
        a(f"""s_mul_i32 s70, s18, 37
s_lshr_b32 s70, s70, 8
s_mul_i32 s70, s70, 7
s_sub_u32 s70, s18, s70
s_mul_i32 s71, s39, 7
s_add_u32 s70, s70, s71
v_lshrrev_b32 v17, 3, v0
v_mul_u32_u24 v17, 21, v17
v_add_u32 v17, s70, v17
v_cmp_gt_u32 vcc, 64, v17
v_mul_u32_u24 v17, 3840, v17
v_and_b32 v18, 7, v0
v_lshl_add_u32 v17, v18, 7, v17
s_lshl_b32 s70, s42, 10
v_add_u32 v17, s70, v17
v_mov_b32 v18, -1
v_cndmask_b32 v17, v18, v17, vcc
s_mov_b32 s28, s6
s_and_b32 s29, s7, 0xffff
s_mov_b32 s30, {640*3840}
s_mov_b32 s31, 0x20000
s_lshl_b32 s72, s19, 2
s_add_u32 s72, s72, s3
s_and_b32 s70, s72, 3
s_cmp_lt_u32 s72, 48
s_cselect_b32 s72, s70, 0""")
        if helpx:
            a(f"""s_mul_i32 s70, s39, 54
v_add_u32 v20, s70, v0
v_cmp_gt_u32 vcc, 54, v0
v_mul_u32_u24 v20, 1280, v20
v_cndmask_b32 v20, v18, v20, vcc
s_mul_i32 s70, s18, {160*1280}""")
    def help_issue(ahead):
        L = a.label("help")
        a(f"""s_cmp_lt_u32 s72, {2 if helpx else 3}
s_cbranch_scc1 {L}
s_add_u32 s71, s59, {ahead}
s_cmp_ge_u32 s71, {NST}
s_cselect_b32 s74, {NST}, 0
s_sub_u32 s71, s71, s74""")
        if helpx:
            a(f"""s_cmp_eq_u32 s72, 3
s_cbranch_scc1 {L}w
s_lshl_b32 s71, s71, 7
s_add_u32 s71, s71, s70
buffer_load_dword v19, v20, s[20:23], s71 offen
s_branch {L}
{L}w:""")
        a(f"""s_mul_i32 s71, s71, {64*3840}
buffer_load_dword v19, v17, s[28:31], s71 offen
{L}:""")
    def ring(issue, nper):
        Ll = a.label("k1ld"); Ls = a.label("k1sk")
        if not (earlyx and nper == 13):
            issue()
        stamp.mark(a, 3)
        if spf:
            spf_setup()
            for i in range(2):
                spf_issue()
        hp = help and nper == 13
        if hp:
            help_setup()
            for i in range(help):
                help_issue(i)
        issue(0)
        stamp.mark(a, 5)
        if half0:
            a(f"s_waitcnt vmcnt({NFIRST + (4 if nper == 13 and earlyx else 0)})\ns_barrier")
        a(f"s_waitcnt vmcnt({NFIRST})")
        stamp.mark(a, 6)
        a("s_barrier")
        issue(1)
        if hp:
            help_issue(help - 1)
        if spf:
            for i in range(spf - 1):
                spf_issue()
        a(f"s_mov_b32 s37, 1\n{Ll}:")
        if spf:
            a(f"s_cmp_ge_u32 s37, {NST - spf0 - spf}\ns_cbranch_scc1 {Ls}")
            spf_issue()
            a(f"{Ls}:")
        issue()
        if hp:
            a(f"s_cmp_ge_u32 s37, {NST - 1 - help}\ns_cbranch_scc1 {Ls}h")
            help_issue(help - 1)
            a(f"{Ls}h:")
        a(f"""s_waitcnt vmcnt({nper})
s_barrier
s_add_u32 s37, s37, 1
s_cmp_lt_u32 s37, {NST-1}
s_cbranch_scc1 {Ll}
s_waitcnt lgkmcnt(0)
s_branch {name}_tjob""")
    NFIRST = 4
    a("s_add_u32 s73, s66, 8192")
    if earlyx:
        mk_issue_reg(0)("w")
    if nvar > 1:
        a(f"""s_mul_i32 s60, s39, {vmul}
s_add_u32 s60, s60, s18
s_mul_i32 s72, s60, {(256 + nvar - 1)//nvar}
s_lshr_b32 s72, s72, 8
s_mul_i32 s72, s72, {nvar}
s_sub_u32 s60, s60, s72""")
        for v in range(1, nvar):
            a(f"s_cmp_eq_u32 s60, {v}\ns_cbranch_scc1 {name}_var{v}")
    ring(mk_issue_reg(0), 13)
    for v in range(1, nvar):
        a(f"{name}_var{v}:")
        ring(mk_issue_reg(v), 13)
    a(f"{name}_ldspec:")
    for e in range(4):
        xoff(1 + e, e, 4 * (e >> 1))
    wcols()
    woffs(False)
    a(f"""s_lshl_b32 s61, s18, 8
s_lshl_b32 s60, s3, 6
s_add_u32 s61, s61, s60
s_mul_i32 s61, s61, 1280
s_lshl_b32 s65, s3, 13
s_lshl_b32 s67, s3, 4
s_mul_i32 s67, s67, s56
s_lshl_b32 s66, s3, 12
s_add_u32 s66, s66, 32768""")
    srds()
    def issue_spec(part=None):
        if part in (None, 0):
            a(f"""s_lshl_b32 s62, s59, 7
s_add_u32 s62, s62, s61
s_mul_i32 s64, s59, s63
s_add_u32 m0, s36, s65
s_add_u32 s64, s64, s67
buffer_load_dwordx4 v1, s[20:23], s62 offen {nt_x} lds
buffer_load_dwordx4 v2, s[20:23], s62 offen offset:1024 {nt_x} lds
buffer_load_dwordx4 v3, s[20:23], s62 offen offset:2048 {nt_x} lds
buffer_load_dwordx4 v4, s[20:23], s62 offen offset:3072 {nt_x} lds""")
        if part in (None, 1):
            a(f"""s_add_u32 m0, m0, 4096
s_add_u32 s69, s62, {32*1280}
buffer_load_dwordx4 v1, s[20:23], s69 offen {nt_x} lds
buffer_load_dwordx4 v2, s[20:23], s69 offen offset:1024 {nt_x} lds
buffer_load_dwordx4 v3, s[20:23], s69 offen offset:2048 {nt_x} lds
buffer_load_dwordx4 v4, s[20:23], s69 offen offset:3072 {nt_x} lds
s_add_u32 m0, s36, s66
s_nop 0
buffer_load_dwordx4 v6, s[24:27], s64 offen {nt_w} lds
buffer_load_dwordx4 v7, s[24:27], s64 offen offset:1024 {nt_w} lds
buffer_load_dwordx4 v8, s[24:27], s64 offen offset:2048 {nt_w} lds
buffer_load_dwordx4 v9, s[24:27], s64 offen offset:3072 {nt_w} lds""")
        if part == 0: return
        advance()
    ring(issue_spec, 12)
    a(f"""{name}_tjob:
s_mul_i32 s70, s3, 255
s_add_u32 s70, s70, s38
s_cmp_lt_u32 s70, 544
s_cselect_b32 s71, s70, 0
s_lshr_b32 s72, s71, 2
s_and_b32 s73, s71, 3
s_mul_i32 s76, s72, 20
s_sub_u32 s74, s72, 32
s_mul_i32 s74, s74, 80
s_add_u32 s74, s74, 16
s_cmp_ge_u32 s72, 32
s_cselect_b32 s76, s74, s76
s_cselect_b32 s77, 16, 0
s_sub_u32 s74, s72, 40
s_lshl_b32 s74, s74, 4
s_cmp_lt_u32 s72, 40
s_cselect_b32 s28, s8, s10
s_cselect_b32 s29, s9, s11
s_mov_b32 s30, {1536*1280}
s_cmov_b32 s30, {640*1280}
s_cselect_b32 s74, s76, s74
s_cselect_b32 s77, s77, 0
s_and_b32 s29, s29, 0xffff
s_mov_b32 s31, 0x20000
s_mul_i32 s74, s74, 1280
s_mul_i32 s75, s73, 320
s_add_u32 s74, s74, s75
s_mul_i32 s75, s3, 5120
s_add_u32 s75, s75, {SLOT}""")
    for i in range(5):
        a(f"""v_add_u32 v8, {64*i}, v0
v_mul_u32_u24 v9, 205, v8
v_lshrrev_b32 v9, 12, v9
v_mul_u32_u24 v10, 20, v9
v_sub_u32 v8, v8, v10
v_lshrrev_b32 v10, 2, v9
v_mad_u32_u24 v9, v10, s77, v9
v_mul_u32_u24 v9, 1280, v9
v_lshl_add_u32 v11, v8, 4, v9
s_add_u32 m0, s75, {1024*i}
s_nop 0
buffer_load_dwordx4 v11, s[28:31], s74 offen lds""")
    srd(a, 32, 16, WS_END)
    a(f"""s_waitcnt vmcnt(5)
s_barrier""")
    a(f"""s_cmp_ge_u32 s70, 544
s_cbranch_scc1 {name}_gate""")
    a(f"""v_lshrrev_b32 v1, 5, v0
v_bfe_u32 v2, v0, 2, 2
v_lshl_add_u32 v1, v1, 2, v2
v_mul_u32_u24 v1, 320, v1
v_bfe_u32 v2, v0, 4, 1
v_lshl_add_u32 v1, v2, 5, v1
v_and_b32 v2, 3, v0
v_lshl_add_u32 v1, v2, 3, v1
v_add_u32 v1, s75, v1
v_bfe_u32 v2, v0, 4, 1
v_mul_u32_u24 v2, {FB}, v2
v_and_b32 v3, 15, v0
v_lshrrev_b32 v4, 5, v0
v_lshl_add_u32 v3, v4, 4, v3
v_lshl_add_u32 v4, v3, 3, v2
v_lshl_add_u32 v2, v3, 4, v2
s_mul_i32 s76, s73, {10*FB}
s_add_u32 s76, s76, {WF}
s_lshl_b32 s74, s72, 9
s_add_u32 s76, s76, s74
s_waitcnt vmcnt(0)""")
    for j in range(5):
        a(f"ds_read_b64_tr_b16 {vr(16+4*j,2)}, v1 offset:{64*j}")
        a(f"ds_read_b64_tr_b16 {vr(18+4*j,2)}, v1 offset:{64*j+8*320}")
    a(f"s_cmp_eq_u32 s77, 16\ns_cbranch_scc1 {name}_tx")
    for j in range(5):
        a(f"s_waitcnt lgkmcnt({8-2*j})")
        a(f"buffer_store_dwordx4 {vr(16+4*j,4)}, v2, s[32:35], s76 offen {st_w}")
        if j < 4:
            a(f"s_add_u32 s76, s76, {2*FB}")
    a(f"s_branch {name}_gate\n{name}_tx:")
    for j in range(5):
        a(f"s_waitcnt lgkmcnt({8-2*j})")
        a(f"buffer_store_dwordx2 {vr(16+4*j,2)}, v4, s[32:35], s76 offen {st_w}")
        a(f"buffer_store_dwordx2 {vr(18+4*j,2)}, v4, s[32:35], s76 offen offset:256 {st_w}")
        if j < 4:
            a(f"s_add_u32 s76, s76, {2*FB}")
    a(f"s_branch {name}_gate")
    a(f"""{name}_idle:
s_mov_b32 s19, 0
s_waitcnt lgkmcnt(0)
s_cmp_lt_u32 s3, 4
s_cbranch_scc1 {name + "_join" if fused else Lend}
s_sub_u32 s3, s3, 4
s_waitcnt lgkmcnt(0)""")
    srd(a, 20, 4, 2048 * 1280)
    srd(a, 32, 16, WS_END)
    a(f"{name}_gate:")
    srd(a, 24, 78, 1280)
    a(f"""v_mul_u32_u24 v1, 20, v0
s_lshl_b32 s47, s2, 3
s_lshl_b32 s48, s3, 1
s_add_u32 s47, s47, s48
s_mul_i32 s48, s47, 1280
buffer_load_dwordx4 v[40:43], v1, s[24:27], 0 offen
buffer_load_dword v44, v1, s[24:27], 0 offen offset:16
buffer_load_dwordx4 v[48:51], v1, s[20:23], s48 offen
buffer_load_dword v52, v1, s[20:23], s48 offen offset:16
buffer_load_dwordx4 v[56:59], v1, s[20:23], s48 offen offset:1280
buffer_load_dword v60, v1, s[20:23], s48 offen offset:1296
v_mov_b32 v2, 0
v_mov_b32 v3, 0
v_lshlrev_b32 v4, 2, v0
s_cmp_lg_u32 s3, {99 if fused else 3}
s_cbranch_scc1 {name}_nofl
s_cmp_ge_u32 s2, 8
s_cbranch_scc1 {name}_nofl
s_lshl_b32 s49, s2, 12
s_add_u32 s49, s49, {FLG}
s_mov_b32 exec_hi, 0
buffer_store_dword v2, v4, s[32:35], s49 offen sc1
s_mov_b32 exec_hi, -1
{name}_nofl:
s_waitcnt vmcnt(0)""")
    for i in range(5):
        a(f"v_dot2_f32_bf16 v2, v{48+i}, v{40+i}, v2")
        a(f"v_dot2_f32_bf16 v3, v{56+i}, v{40+i}, v3")
    a("s_nop 3")
    for d in ("row_shr:1 row_mask:0xf bank_mask:0xf bound_ctrl:0", "row_shr:2 row_mask:0xf bank_mask:0xf bound_ctrl:0",
              "row_shr:4 row_mask:0xf bank_mask:0xf bound_ctrl:0", "row_shr:8 row_mask:0xf bank_mask:0xf bound_ctrl:0",
              "row_bcast:15 row_mask:0xa bank_mask:0xf", "row_bcast:31 row_mask:0xc bank_mask:0xf"):
        a(f"v_add_f32_dpp v2, v2, v2 {d}\nv_add_f32_dpp v3, v3, v3 {d}\ns_nop 0")
    a(f"""v_mul_f32 v2, {hex(f2u(-1.4426950408889634))}, v2
v_mul_f32 v3, {hex(f2u(-1.4426950408889634))}, v3
v_exp_f32 v2, v2
v_exp_f32 v3, v3
s_nop 0
v_add_f32 v2, 1.0, v2
v_add_f32 v3, 1.0, v3
v_rcp_f32 v2, v2
v_rcp_f32 v3, v3
s_lshl_b32 s49, s47, 2
s_add_u32 s49, s49, {GV}
v_mov_b32 v4, 0
s_mov_b32 exec_lo, 0
s_mov_b32 exec_hi, 0x80000000
buffer_store_dwordx2 v[2:3], v4, s[32:35], s49 offen sc1""")
    if fused:
        if ldfirst:
            a(f"s_branch {name}_join")
            a.lines[mark_c:] = a.lines[mark_l:] + a.lines[mark_c:mark_l]
        return
    stamp.flush(a, 0, 4, 0)
    a(f"{Lend}:\ns_endpgm")
    kernel_desc(a, name, NV, 102 if stamp.ENABLED else 96)
```

```python
from common import *
import stamp

SLOT = 53248
NSLOT = 3
K1_LDS = NSLOT * SLOT
NST = 10
XR = 8
WR = 48
ACC = 80
VXB, VXS, VX = 240, 241, 242
VWB, VW = 243, 247
VEP = 251
NV = 256
MM = "v_mfma_f32_16x16x32_bf16"

def acc(mi, nj):
    return ACC + (mi * 4 + nj) * 4

UNR = [1]
HALF0 = [True]
def hout(mi):
    return 240 if mi == 0 else ACC + 16 * mi

def xoffs(mi, perm):
    return 4096 * (mi >> 1) + 1024 * (mi & 1)

def xread(mi, perm):
    return f"ds_read_b128 {vr(XR+4*mi,4)}, v{VX} offset:{xoffs(mi, perm)}"

def wreads(buf, ks):
    r = []
    for nj in range(4):
        for hf in range(2):
            r.append(f"ds_read_b64_tr_b16 {vr(WR+16*buf+4*nj+2*hf,2)}, v{VW+nj} offset:{8192*ks + 1024*hf}")
    return r

def step(a, buf, swap, ks_next, pend, pre=None, mid=None):
    w = [(("w", i), r) for i, r in enumerate(wreads(1 - buf, ks_next))]
    x = [(("x", mi), xread(mi, swap)) for mi in range(10)]
    sched = {}
    if mid is None:
        for mi in range(10): sched[(mi, 3)] = x[mi]
        for i in range(8): sched[(i, 1)] = w[i]
    else:
        sched[(1, 3)] = x[0]; sched[(2, 1)] = x[1]
        for mi in range(2, 10): sched[(mi, 3)] = x[mi]
        for i in range(7): sched[(3 + i, 1)] = w[i]
        sched[(9, 0)] = w[6]; sched[(8, 1)] = w[5]; sched[(9, 1)] = w[7]
    pre = list(pre or [])
    old = list(pend); new = []
    def need(pred):
        idx = [i for i, t in enumerate(old) if pred(t)]
        if idx:
            n = len(old) - 1 - max(idx) + len(new)
            k = min(n, 15)
            a(f"s_waitcnt lgkmcnt({k})")
            keep = max(0, k - len(new))
            del old[:len(old) - min(keep, len(old))]
    for mi in range(10):
        for nj in range(4):
            if mi == 0:
                need(lambda t: t == ("w", 2 * nj) or t == ("w", 2 * nj + 1) or t == ("x", 0))
            elif nj == 0 and ("x", mi) in old:
                need(lambda t: t[0] == "x" and t[1] <= min(mi + 3, 9))
            W = vr(WR + 16 * buf + 4 * nj, 4); X = vr(XR + 4 * mi, 4)
            A, B = (X, W) if swap else (W, X)
            c = vr(acc(mi, nj), 4)
            a(f"{MM} {c}, {A}, {B}, {c}")
            if mi == 1 and nj == 3 and mid is not None:
                assert not pre
                mid(); old = []
            if (mi, nj) in sched:
                t, r = sched[(mi, nj)]
                a(r); new.append(t)
            elif pre:
                a(pre.pop(0))
                if pre and mid is not None:
                    a(pre.pop(0))
    return new

def mainloop(a, swap):
    L = a.label("k1loop"); Lnb = a.label("k1nb")
    a(f"""s_mov_b32 s36, 0
s_mov_b32 s37, 0
v_mov_b32 v{VXS}, v{VXB}
v_mov_b32 v{VX}, v{VXB}""")
    for nj in range(4):
        a(f"v_mov_b32 v{VW+nj}, v{VWB+nj}")
    stamp.mark(a, 1)
    a("s_barrier")
    stamp.mark(a, 4 if stamp.TODEBUG is not None else 2)
    pre = [f"s_add_u32 s36, s36, {SLOT}", f"s_cmp_eq_u32 s36, {SLOT*NSLOT}", "s_cselect_b32 s36, 0, s36", "s_add_u32 s37, s37, 1",
           f"v_add_u32 v{VXS}, s36, v{VXB}", f"v_add_u32 v{VX}, s36, v{VXB}"] + [f"v_add_u32 v{VW+nj}, s36, v{VWB+nj}" for nj in range(4)] + [f"s_cmp_eq_u32 s37, {NST}"]
    def mid():
        a(f"""s_waitcnt lgkmcnt(0)
s_cbranch_scc1 {Lnb}
s_barrier
{Lnb}:""")
    scratch = Asm()
    entry = step(scratch, 1, swap, 0, [], pre, lambda: None)
    rd = {("x", mi): xread(mi, swap) for mi in range(10)}
    rd.update({("w", i): r for i, r in enumerate(wreads(0, 0))})
    for t in entry:
        a(rd[t])
    if HALF0[0]:
        bar = lambda: a("s_waitcnt lgkmcnt(0)\ns_barrier")
        p = step(a, 0, swap, 1, entry, [f"v_xor_b32 v{VX}, 64, v{VXS}"], bar)
        p = step(a, 1, swap, 0, p, pre, bar)
        assert p == entry and (NST - 1) % UNR[0] == 0
    a(".p2align 5")
    a(f"{L}:")
    for u in range(UNR[0]):
        if u < UNR[0] - 1:
            m = lambda: a("s_waitcnt lgkmcnt(0)\ns_barrier")
        else:
            m = mid
        p = step(a, 0, swap, 1, entry, [f"v_xor_b32 v{VX}, 64, v{VXS}"])
        p = step(a, 1, swap, 0, p, pre, m)
        assert p == entry, p
    a(f"""s_cmp_lg_u32 s37, {NST}
s_cbranch_scc1 {L}
s_waitcnt lgkmcnt(0)
s_nop 7""")
    stamp.mark(a, 5 if stamp.TODEBUG is not None else 4 if stamp.REAL else 3)

def gen_k1(a, name, rot_enable="xcdw", nvar=3, nt_x="", nt_w="", st_h="sc1", st_qk="sc1", st_v="sc1", st_w="sc1", wb=False, codepf=True, fast=True, delay=None, mix=True, pfd=0, fused=False, defer=False, unr=3, vperm=False, clus=False, ldfirst=True, earlyx=True, half0=True, spf=0, spf0=2, gudelay=0, help=0, helpx=False, lprio=3, vmul=1, itlb=0, tgu=True, pads={'spec': 0, 'compute': 0x224, 'v': 0x800}):
    def gap(key):
        if key in pads:
            a.c("(unreachable filler: the code before ends in a branch; keeps 4 KB page boundaries out of the serial stretches that follow)")
            a(".p2align 12")
            if pads[key]:
                a(f".fill {pads[key]//4}, 4, 0xbf800000")
    HALF0[0] = half0
    UNR[0] = unr
    def done():
        if fused:
            a(f"s_branch {name}_join")
        else:
            stamp.flush(a, 0, 4, 0)
            a("s_endpgm")
    kernel_head(a, name)
    Lend = f"{name}_end"
    a(f"s_cmp_ge_u32 s2, 256\ns_cbranch_scc1 {Lend}")
    stamp.init(a)
    if delay:
        mask, ticks = delay
        a(f"""s_and_b32 s40, s2, 7
s_lshr_b32 s41, {mask}, s40
s_bitcmp1_b32 s41, 0
s_cbranch_scc0 {name}_nodelay
s_memrealtime s[42:43]
s_waitcnt lgkmcnt(0)
s_add_u32 s44, s42, {ticks}
{name}_dl:
s_memrealtime s[42:43]
s_waitcnt lgkmcnt(0)
s_cmp_lt_u32 s42, s44
s_cbranch_scc1 {name}_dl
{name}_nodelay:""")
    a.c("""==== phase 1: projections.  Tile of this workgroup: s18 = 160-row block, s19 = column slab (0-11 gate/up, 12-16 Q|K, 17-19 V)""")
    a(f"""s_load_dwordx4 s[4:7], s[0:1], 0
s_load_dwordx2 s[8:9], s[0:1], 16
s_load_dwordx4 s[12:15], s[0:1], 32
s_load_dwordx2 s[10:11], s[0:1], 48
s_load_dwordx2 s[16:17], s[0:1], 80
s_load_dwordx2 s[78:79], s[0:1], 56
v_lshrrev_b32 v1, 6, v0
v_and_b32 v0, 63, v0
v_readfirstlane_b32 s3, v1
s_and_b32 s40, s2, 7
s_mov_b32 s55, s3
s_lshl_b32 s40, s40, 5
s_lshr_b32 s41, s2, 3
s_add_u32 s38, s40, s41
s_cmp_eq_u32 s38, 255
s_cbranch_scc1 {name}_idle
s_mul_i32 s42, s38, 1009
s_lshr_b32 s42, s42, 16
s_mul_i32 s43, s42, 65
s_sub_u32 s43, s38, s43
s_mul_i32 s18, s43, 205
s_lshr_b32 s18, s18, 10
s_mul_i32 s39, s18, 5
s_sub_u32 s39, s43, s39
s_cmp_lt_u32 s38, 235
s_cbranch_scc1 {name}_dec
s_sub_u32 s43, s38, 235
s_lshr_b32 s18, s43, 2
s_add_u32 s18, s18, 8
s_and_b32 s39, s43, 3
{name}_dec:
s_mul_i32 s19, s42, 3
s_lshl_b32 s43, s42, 1
s_add_u32 s43, s43, 9
s_cmp_lt_u32 s39, 3
s_cselect_b32 s19, s19, s43
s_add_u32 s19, s19, s39
s_cmp_ge_u32 s3, 4
{"s_cbranch_scc0 " + name + "_compute" if ldfirst else "s_cbranch_scc1 " + name + "_loader"}""")
    mark_c = len(a.lines)
    gap("compute")
    a(f"{name}_compute:")
    a.c("""---- MFMA waves 0-3 ----""")
    if codepf:
        a.c("""wave 0: read 16 lines of this kernel's own code so that they are in L2 when they are fetched""")
        a(f"""s_cmp_lg_u32 s3, 0
s_cbranch_scc1 {name}_nocp
s_getpc_b64 s[56:57]
{name}_pc:
s_sub_u32 s56, s56, {name}_pc-{name}
s_subb_u32 s57, s57, 0
{chr(10).join(f"s_load_dword s60, s[56:57], {4096*k}" for k in range(1, itlb + 1))}
s_lshl_b32 s58, s41, 11
v_lshlrev_b32 v1, 7, v0
v_add_u32 v1, s58, v1
s_mov_b32 s59, code_end-{name}
v_cmp_gt_u32 vcc, s59, v1
s_and_b64 exec, vcc, 0xffff
s_cbranch_execz {name}_cpx
global_load_dword v255, v1, s[56:57]
{name}_cpx:
s_mov_b64 exec, -1
{name}_nocp:""")
    if fused:
        a.c("""workgroup 0, wave 1: publish a per-launch tag (d_debug[0]); hand-off flags in d_ws carry it, so older contents never match""")
        a(f"""s_lshl_b32 s56, s2, 3
s_add_u32 s56, s56, s3
s_cmp_lg_u32 s56, 1
s_cbranch_scc1 {name}_notag
s_load_dwordx2 s[56:57], s[0:1], 72
s_memrealtime s[58:59]
v_mov_b32 v1, 0
s_waitcnt lgkmcnt(0)
s_or_b32 s58, s58, 1
v_mov_b32 v2, s58
s_mov_b64 exec, 1
global_store_dword v1, v2, s[56:57] sc1
s_mov_b64 exec, -1
{name}_notag:""")
    a(f"""v_and_b32 v1, 15, v0
v_lshrrev_b32 v2, 4, v0
v_bfe_u32 v3, v0, 2, 2
v_lshl_add_u32 v6, v2, 3, v3
v_lshlrev_b32 v6, 8, v6
v_and_b32 v4, 3, v0
v_lshl_add_u32 v6, v4, 3, v6
v_and_b32 v5, 1, v2
v_lshl_add_u32 v5, v5, 2, v3
v_lshrrev_b32 v3, 1, v1
v_xor_b32 v3, v3, v2
v_lshlrev_b32 v3, 4, v3
v_and_b32 v4, 8, v1
v_lshl_add_u32 v3, v1, 7, v3
v_lshl_add_u32 v{VXB}, v4, 7, v3
s_mul_i32 s46, s18, 5
s_mov_b32 s47, 5
s_cmp_eq_u32 s18, 12
s_cmov_b32 s47, 4
s_cmp_eq_u32 s19, 19
s_cbranch_scc1 {name}_spec
s_lshl_b32 s45, s3, 1
v_xor_b32 v5, s45, v5
v_lshl_add_u32 v6, v5, 5, v6
v_add_u32 v{VWB}, 20480, v6
v_xor_b32 v{VWB+1}, 32, v{VWB}
v_add_u32 v{VWB+2}, 16384, v{VWB}
v_add_u32 v{VWB+3}, 16384, v{VWB+1}
s_sub_u32 s48, s19, 17
s_lshl_b32 s48, s48, 8
s_lshl_b32 s49, s3, 5
s_add_u32 s48, s48, s49
s_movk_i32 s49, 128
s_branch {name}_cont
{name}_spec:
s_and_b32 s45, s3, 1
s_lshl_b32 s48, s45, 6
s_add_u32 s48, s48, 512
s_lshl_b32 s45, s45, 2
v_xor_b32 v5, s45, v5
v_lshl_add_u32 v6, v5, 5, v6
v_add_u32 v{VWB}, 32768, v6
v_xor_b32 v{VWB+1}, 32, v{VWB}
v_xor_b32 v{VWB+2}, 64, v{VWB}
v_xor_b32 v{VWB+3}, 96, v{VWB}
s_lshr_b32 s45, s3, 1
s_lshl_b32 s46, s18, 3
s_lshl_b32 s49, s45, 2
s_add_u32 s46, s46, s49
s_lshl_b32 s45, s45, 14
v_add_u32 v{VXB}, s45, v{VXB}
s_mov_b32 s47, 4
s_mov_b32 s49, 32
{name}_cont:""")
    for i in range(4):
        a(f"v_mov_b32 v{VEP+i}, 0")
    for i in range(160):
        a(f"v_mov_b32 v{ACC+i}, 0")
    a("s_waitcnt lgkmcnt(0)")
    srd(a, 20, 16, WS_END)
    a(f"""s_cmp_ge_u32 s19, 17
s_cbranch_scc1 {name}_v
s_cmp_lt_u32 s19, 12
s_cbranch_scc1 {name}_loop""")
    a.c("""Q/K: destination offsets (planes of 4 dims per head and 32-row tile)""")
    a(f"{name}_qk:")
    c = 1.4426950408889634 * (20.0 ** -0.5)
    a(f"""s_sub_u32 s48, s19, 12
s_lshl_b32 s48, s48, 6
s_lshl_b32 s49, s3, 3
s_add_u32 s48, s48, s49
s_add_u32 s49, s48, 32""")
    for sd in range(2):
        a(f"""s_cmp_lt_u32 s{48+sd}, 160
s_cselect_b32 s{52+sd}, {hex(f2u(c))}, 1.0
s_cselect_b32 s{50+sd}, {QF}, {KV}
s_cselect_b32 s54, 0, 160
s_sub_u32 s{48+sd}, s{48+sd}, s54""")
    a(f"""v_lshlrev_b32 v11, 4, v1
s_mov_b32 s54, {HEADB}""")
    for sd in range(2):
        for j in range(2):
            if True:
                e = VEP + sd * 2 + j
                a(f"""v_add_u32 v8, s{48+sd}, v2
v_add_u32 v8, {4*j}, v8
v_mul_u32_u24 v9, 205, v8
v_lshrrev_b32 v9, 10, v9
v_mul_u32_u24 v12, 5, v9
v_sub_u32 v8, v8, v12
v_lshrrev_b32 v12, 1, v8
v_and_b32 v13, 1, v8
v_lshl_add_u32 v13, v13, 1, v12
v_cmp_eq_u32 vcc, 4, v8
v_mad_u32_u24 v9, v9, s54, v11
v_add_u32 v9, s{50+sd}, v9
v_cndmask_b32 v12, v13, v8, vcc
v_lshlrev_b32 v12, 8, v12
v_add_u32 v{e}, v9, v12""")
    a.c("""K loop: 10 stages of 64, LDS ring of 3; D = W^T x^T (lane = row of x)""")
    a(f"{name}_loop:")
    mainloop(a, False)
    a(f"s_cmp_lt_u32 s19, 12\ns_cbranch_scc1 {name}_gu_epi")
    a(f"""v_mov_b32 v8, s52
v_mov_b32 v9, s52
v_mov_b32 v10, s53
v_mov_b32 v11, s53
s_mul_i32 s49, s46, {TILE}""")
    Ldq = f"{name}_qk_done"
    for p in range(5):
        if p == 4:
            a(f"s_cmp_eq_u32 s47, 4\ns_cbranch_scc1 {Ldq}")
        for nj in range(4):
            sc = 8 + 2 * (nj >> 1)
            r, r2 = acc(2 * p, nj), acc(2 * p + 1, nj)
            for x in (r, r + 2, r2, r2 + 2):
                a(f"v_pk_mul_f32 {vr(x,2)}, {vr(x,2)}, {vr(sc,2)}")
            a(f"""v_cvt_pk_bf16_f32 v{r}, v{r}, v{r+1}
v_cvt_pk_bf16_f32 v{r+1}, v{r+2}, v{r+3}
v_cvt_pk_bf16_f32 v{r+2}, v{r2}, v{r2+1}
v_cvt_pk_bf16_f32 v{r+3}, v{r2+2}, v{r2+3}
buffer_store_dwordx4 {vr(r,4)}, v{VEP+nj}, s[20:23], s49 offen {st_qk}""")
        if p < 4:
            a(f"s_add_u32 s49, s49, {TILE}")
    a(f"{Ldq}:")
    if wb:
        stamp.mark(a, 5)
        a(f"s_waitcnt vmcnt(0)\ns_cmp_lg_u32 s3, 0\ns_cbranch_scc1 {Ldq}x\nbuffer_wbl2 sc1\n{Ldq}x:")
    done()
    gap("gu")
    a.c("""gate/up epilogue: gelu_tanh(g) * u = g * u / (1 + exp2(g * (B + A g^2))), stored as operand fragments""")
    a(f"{name}_gu_epi:")
    CA, CB, ONE = 8, 10, 12
    A_ = -2.0 * 0.7978845608028654 * 1.4426950408889634 * 0.044715
    B_ = -2.0 * 0.7978845608028654 * 1.4426950408889634
    a(f"""v_mov_b32 v{CA}, {hex(f2u(A_))}
v_mov_b32 v{CA+1}, {hex(f2u(A_))}
v_mov_b32 v{CB}, {hex(f2u(B_))}
v_mov_b32 v{CB+1}, {hex(f2u(B_))}
v_mov_b32 v{ONE}, 1.0
v_mov_b32 v{ONE+1}, 1.0
v_lshrrev_b32 v14, 3, v1
v_mul_u32_u24 v14, {FB - 128}, v14
v_lshl_add_u32 v14, v1, 4, v14
v_lshl_add_u32 v14, v2, 8, v14
s_lshl_b32 s48, s19, {1 if mix else 2}
s_add_u32 s48, s48, s3
s_cmp_ge_u32 s3, 2
s_cselect_b32 s50, {22 if mix else 0}, 0
s_add_u32 s48, s48, s50
s_lshl_b32 s48, s48, 10
s_mul_i32 s49, s46, {2*FB}
s_add_u32 s49, s49, s48
s_add_u32 s49, s49, {AF + FH}""")
    Ldone = f"{name}_gu_done"
    T0 = 16
    cnt = 0
    for mi in range(10):
        if mi == 8:
            a(f"s_cmp_eq_u32 s47, 4\ns_cbranch_scc1 {Ldone}")
        b = acc(mi, 0)
        pairs = [(b + 0, b + 8), (b + 2, b + 10), (b + 4, b + 12), (b + 6, b + 14)]
        out = hout(mi) if defer else 32 + 4 * (mi % 2)
        for q, (g, u) in enumerate(pairs):
            a(f"v_pk_mul_f32 {vr(T0+2*q,2)}, {vr(g,2)}, {vr(g,2)}")
        for q, (g, u) in enumerate(pairs):
            a(f"v_pk_fma_f32 {vr(T0+2*q,2)}, {vr(T0+2*q,2)}, {vr(CA,2)}, {vr(CB,2)}")
        for q, (g, u) in enumerate(pairs):
            a(f"v_pk_mul_f32 {vr(T0+2*q,2)}, {vr(T0+2*q,2)}, {vr(g,2)}")
        for q in range(8):
            a(f"v_exp_f32 v{T0+q}, v{T0+q}")
        for q, (g, u) in enumerate(pairs):
            a(f"v_pk_mul_f32 {vr(24+2*q,2)}, {vr(g,2)}, {vr(u,2)}")
        for q, (g, u) in enumerate(pairs):
            a(f"v_pk_add_f32 {vr(T0+2*q,2)}, {vr(T0+2*q,2)}, {vr(ONE,2)}")
        for q in range(8):
            a(f"v_rcp_f32 v{T0+q}, v{T0+q}")
        a("s_nop 0")
        for q in range(4):
            a(f"v_pk_mul_f32 {vr(24+2*q,2)}, {vr(24+2*q,2)}, {vr(T0+2*q,2)}")
        for q in range(4):
            a(f"v_cvt_pk_bf16_f32 v{out+q}, v{24+2*q}, v{25+2*q}")
        if not defer:
            a(f"buffer_store_dwordx4 {vr(out,4)}, v14, s[20:23], s49 offen offset:{128*(mi&1)} {st_h}")
            if mi & 1 and mi < 9:
                a(f"s_add_u32 s49, s49, {2*FB}")
    a(f"{Ldone}:")
    if defer == "post":
        a(f"""v_mov_b32 v244, v14
s_mov_b32 s79, s49
s_add_u32 s78, s49, {8*FB}
s_cmp_eq_u32 s47, 4
s_cselect_b32 s78, 0x80000000, s78
s_branch {name}_join2""")
    elif defer:
        for mi in range(10):
            if mi == 8:
                a(f"s_cmp_eq_u32 s47, 4\ns_cbranch_scc1 {name}_join")
            a(f"buffer_store_dwordx4 {vr(hout(mi),4)}, v14, s[20:23], s49 offen offset:{128*(mi&1)} {st_h}")
            if mi & 1 and mi < 9:
                a(f"s_add_u32 s49, s49, {2*FB}")
        a(f"s_branch {name}_join")
    done()
    gap("v")
    a.c("""V: same loop with the operands swapped (lane = column), stored as the A operand of the P V product""")
    a(f"{name}_v:")
    a(f"s_mov_b32 s54, {HEADB}")
    if vperm:
        a("v_lshrrev_b32 v13, 2, v0\nv_and_b32 v14, 3, v0")
    col, pc = ("v13", "v14") if vperm else ("v1", "v2")
    for nj in range(4):
        a(f"""v_add_u32 v8, s48, {col}
v_add_u32 v8, {16*(nj&1)}, v8""")
        if nj >= 2:
            a("v_add_u32 v8, s49, v8")
        a(f"""v_mul_u32_u24 v11, 205, v8
v_lshrrev_b32 v11, 12, v11
v_mul_u32_u24 v12, 20, v11
v_sub_u32 v10, v8, v12
v_bfe_u32 v12, v10, 2, 2
v_xor_b32 v12, v12, {pc}
v_lshlrev_b32 v12, 4, v12
v_lshl_add_u32 v12, v10, 6, v12
v_mad_u32_u24 v11, v11, s54, v12
v_add_u32 v{VEP+nj}, {KV + 1280}, v11""")
    mainloop(a, True)
    a(f"s_mul_i32 s49, s46, {TILE}")
    Ldv = f"{name}_v_done"
    if vperm:
        a(f"""s_mul_i32 s50, s3, 20480
s_add_u32 s50, s50, {SLOT + 20480}
v_lshrrev_b32 v8, 2, v1
v_add_u32 v8, v8, v2
v_and_b32 v8, 3, v8
v_lshlrev_b32 v8, 4, v8
v_lshl_add_u32 v8, v1, 6, v8
v_add_u32 v8, s50, v8
v_lshrrev_b32 v9, 4, v0
v_add_u32 v9, v9, v0
v_and_b32 v9, 3, v9
v_and_b32 v10, 60, v0
v_add_u32 v9, v9, v10
v_lshlrev_b32 v9, 4, v9
v_add_u32 v9, s50, v9""")
    def cvt(p, nj):
        r, r2 = acc(2 * p, nj), acc(2 * p + 1, nj)
        a(f"""v_cvt_pk_bf16_f32 v{r}, v{r}, v{r+1}
v_cvt_pk_bf16_f32 v{r+1}, v{r+2}, v{r+3}
v_cvt_pk_bf16_f32 v{r+2}, v{r2}, v{r2+1}
v_cvt_pk_bf16_f32 v{r+3}, v{r2+2}, v{r2+3}""")
    for p in range(5):
        if p == 4:
            a(f"s_cmp_eq_u32 s47, 4\ns_cbranch_scc1 {Ldv}")
        for nj in range(4):
            cvt(p, nj)
            r = acc(2 * p, nj)
            if vperm:
                a(f"ds_write_b128 v8, {vr(r,4)} offset:{1024*(4*p+nj)}")
            else:
                a(f"buffer_store_dwordx4 {vr(r,4)}, v{VEP+nj}, s[20:23], s49 offen {st_v}")
        if vperm:
            for nj in range(4):
                a(f"ds_read_b128 {vr(acc(2*p+1, nj),4)}, v9 offset:{1024*(4*p+nj)}")
            for nj in range(4):
                a(f"s_waitcnt lgkmcnt({3-nj})")
                a(f"buffer_store_dwordx4 {vr(acc(2*p+1, nj),4)}, v{VEP+nj}, s[20:23], s49 offen {st_v}")
        if p < 4:
            a(f"s_add_u32 s49, s49, {TILE}")
    a(f"{Ldv}:")
    if wb:
        stamp.mark(a, 5)
        a(f"s_waitcnt vmcnt(0)\ns_cmp_lg_u32 s3, 0\ns_cbranch_scc1 {Ldv}x\nbuffer_wbl2 sc1\n{Ldv}x:")
    done()
    mark_l = len(a.lines)
    a.c("""---- loader waves 4-7: LDS-DMA of x and weight slices, one barrier per stage ----""")
    a(f"{name}_loader:")
    if fast:
        a(f"s_setprio {lprio}")
    if gudelay:
        a(f"""s_cmp_ge_u32 s19, 12
s_cbranch_scc1 {name}_nogd
s_memrealtime s[42:43]
s_waitcnt lgkmcnt(0)
s_add_u32 s44, s42, {gudelay}
{name}_gd:
s_memrealtime s[42:43]
s_waitcnt lgkmcnt(0)
s_cmp_lt_u32 s42, s44
s_cbranch_scc1 {name}_gd
{name}_nogd:""")
    a(f"""s_sub_u32 s3, s3, 4
v_lshrrev_b32 v10, 3, v0
v_mul_u32_u24 v10, 1280, v10
v_and_b32 v11, 7, v0
v_lshrrev_b32 v12, 4, v0""")
    def wcols():
        a(f"""s_lshr_b32 s54, s3, 1
s_movk_i32 s56, 3072
s_lshl_b32 s57, s19, {7 if mix else 8}
s_cmp_ge_u32 s19, 12
s_cmovk_i32 s56, 3840
s_sub_u32 s58, s19, 12
s_lshl_b32 s58, s58, 9
s_lshl_b32 s60, s54, 8
s_add_u32 s58, s58, s60
s_cmp_ge_u32 s19, 12
s_cselect_b32 s57, s58, s57
s_cmp_eq_u32 s19, 19
s_cmovk_i32 s57, 3584
v_and_b32 v13, 15, v0
v_mul_u32_u24 v14, s56, v12
v_add_u32 v14, s57, v14
s_lshl_b32 s63, s56, 6""")
    if rot_enable == "xcd":
        a("s_and_b32 s59, s2, 7\ns_mul_i32 s59, s59, 5\ns_lshr_b32 s59, s59, 2")
    elif rot_enable == "xcdw":
        a(f"s_and_b32 s59, s2, 1\ns_mul_i32 s59, s59, {4 if clus else 5}")
    elif rot_enable == "xcdx":
        a("s_bfe_u32 s59, s2, 0x20001\ns_mul_i32 s59, s59, 5\ns_lshr_b32 s59, s59, 1")
    elif rot_enable:
        a(f"""s_lshl_b32 s59, s39, 1
s_mul_i32 s60, s18, 3
s_add_u32 s59, s59, s60
s_mul_i32 s60, s59, 205
s_lshr_b32 s60, s60, 11
s_mul_i32 s60, s60, 10
s_sub_u32 s59, s59, s60""")
    else:
        a("s_mov_b32 s59, 0")
    a(f"""s_mov_b32 s36, 0
s_cmp_eq_u32 s19, 19
s_cbranch_scc1 {name}_ldspec""")
    def srdw():
        a(f"""s_cmp_eq_u32 s54, 0
s_cselect_b32 s24, s12, s14
s_cselect_b32 s25, s13, s15
s_mov_b32 s26, {640*3072}
s_cmp_ge_u32 s19, 12
s_cselect_b32 s24, s6, s24
s_cselect_b32 s25, s7, s25
s_cmov_b32 s26, {640*3840}
s_and_b32 s25, s25, 0xffff
s_mov_b32 s27, 0x20000""")
    def srds():
        a("s_waitcnt lgkmcnt(0)")
        srd(a, 20, 4, 2048 * 1280)
        srdw()
    def xoff(dst, e, top):
        a(f"""v_add_u32 v15, {top}, v12
v_xor_b32 v15, v15, v11
v_lshl_add_u32 v15, v15, 4, v10
v_add_u32 v{dst}, {e*8*1280 - 1024*(e%4)}, v15""")
    def woffs(regular):
        a(f"""s_lshl_b32 s60, s56, 2
s_sub_u32 s60, s60, 1024""")
        if regular:
            a(f"""s_cmp_lt_u32 s19, 12
s_cselect_b32 s69, {1536 - 128 if mix else 0}, 0
s_cselect_b32 s68, 3, 0""")
        for hf in range(2):
            d = 6 + 2 * hf
            a(f"v_lshlrev_b32 v15, 1, v12\nv_xor_b32 v15, v15, v13")
            if hf:
                a("v_xor_b32 v15, 8, v15")
            if regular:
                a(f"""v_lshrrev_b32 v16, 1, v15
v_xor_b32 v16, v16, v15
v_and_b32 v16, 1, v16
v_mul_u32_u24 v16, s68, v16
v_xor_b32 v15, v15, v16""")
            a(f"v_lshl_add_u32 v{d}, v15, 4, v14")
            if regular:
                a(f"v_lshrrev_b32 v15, 3, v15\nv_mad_u32_u24 v{d}, v15, s69, v{d}")
            if hf:
                a(f"v_add_u32 v{d}, s60, v{d}\nv_add_u32 v{d}, s60, v{d}")
            a(f"v_add_u32 v{d+1}, s60, v{d}")
    def advance():
        a(f"""s_add_u32 s59, s59, 1
s_cmp_eq_u32 s59, {NST}
s_cselect_b32 s59, 0, s59
s_add_u32 s36, s36, {SLOT}
s_cmp_eq_u32 s36, {SLOT*NSLOT}
s_cselect_b32 s36, 0, s36""")
    def tail(nper):
        Ll = a.label("k1ld")
        return Ll
    a(f"""s_and_b32 s60, s3, 2
s_lshl_b32 s60, s60, 1""")
    xoff(1, 0, "s60")
    a(f"""s_mul_i32 s61, s18, 20
s_add_u32 s61, s61, s3
s_mul_i32 s61, s61, {8*1280}
s_lshl_b32 s65, s3, 10
s_lshl_b32 s62, s59, 7
s_add_u32 s62, s62, s61
s_mov_b32 m0, s65""")
    stamp.mark(a, 1)
    a("s_waitcnt lgkmcnt(0)")
    stamp.mark(a, 2)
    srd(a, 20, 4, 2048 * 1280)
    if earlyx:
        a(f"buffer_load_dwordx4 v1, s[20:23], s62 offen {nt_x} lds")
        for e in range(1, 5):
            a(f"s_add_u32 m0, m0, 4096\ns_add_u32 s62, s62, {32*1280}\nbuffer_load_dwordx4 v1, s[20:23], s62 offen {nt_x} lds")
    wcols()
    woffs(True)
    a(f"""s_and_b32 s60, s3, 1
s_lshl_b32 s67, s60, 4
s_mul_i32 s67, s67, s56
s_lshl_b32 s66, s54, 14
s_lshl_b32 s60, s60, 12
s_add_u32 s66, s66, s60
s_add_u32 s66, s66, 20480
s_lshl_b32 s68, s56, 5""")
    srdw()
    def mk_issue_reg(var):
        X = f"""s_add_u32 m0, s36, s65
s_nop 0
buffer_load_dwordx4 v1, s[20:23], s62 offen {nt_x} lds
buffer_load_dwordx4 v2, s[20:23], s62 offen offset:1024 {nt_x} lds
buffer_load_dwordx4 v3, s[20:23], s62 offen offset:2048 {nt_x} lds
buffer_load_dwordx4 v4, s[20:23], s62 offen offset:3072 {nt_x} lds
s_add_u32 m0, m0, 4096
s_nop 0
buffer_load_dwordx4 v5, s[20:23], s62 offen {nt_x} lds"""
        def W(so, lo):
            return f"""s_add_u32 m0, s36, {lo}
s_nop 0
buffer_load_dwordx4 v6, s[24:27], {so} offen {nt_w} lds
buffer_load_dwordx4 v7, s[24:27], {so} offen offset:1024 {nt_w} lds
buffer_load_dwordx4 v8, s[24:27], {so} offen offset:2048 {nt_w} lds
buffer_load_dwordx4 v9, s[24:27], {so} offen offset:3072 {nt_w} lds"""
        items = [("s65", 4096 * e, (f"s_add_u32 s74, s62, {32*1280*e}\n" if e else "") + f"buffer_load_dwordx4 v1, s[20:23], {'s74' if e else 's62'} offen {nt_x} lds") for e in range(5)]
        for so, lo in (("s64", "s66"), ("s69", "s73")):
            items += [(lo, 0, f"buffer_load_dwordx4 v{6+e}, s[24:27], {so} offen offset:{1024*e} {nt_w} lds") for e in range(4)]
        r = [0, 5, 9][var] if nvar <= 3 else round(13 * var / nvar)
        items = items[r:] + items[:r]
        lines = []; cur = None
        for b, add, ld in items:
            if (b, add) != cur:
                lines.append(f"s_add_u32 m0, s36, {b}")
                lines.append(f"s_add_u32 m0, m0, {add}" if add else "s_nop 0")
                cur = (b, add)
            lines.append(ld)
        lines = "\n".join(lines).split("\n")
        k = [i for i, l in enumerate(lines) if l.startswith("buffer_load")][3]
        def issue(part=None):
            if part == "w":
                a(f"""s_mul_i32 s64, s59, s63
s_add_u32 s64, s64, s67
s_add_u32 s69, s64, s68""")
                a(W("s64", "s66")); a(W("s69", "s73"))
                advance()
                return
            if part in (None, 0):
                a(f"""s_lshl_b32 s62, s59, 7
s_add_u32 s62, s62, s61
s_mul_i32 s64, s59, s63
s_add_u32 s64, s64, s67
s_add_u32 s69, s64, s68""")
                a("\n".join(lines[:k+1]))
            if part in (None, 1):
                a("\n".join(lines[k+1:]))
            if part == 0: return
            advance()
        return issue
    def clus_setup():
        a(f"""s_mul_i32 s70, s18, 37
s_lshr_b32 s70, s70, 8
s_mul_i32 s70, s70, 7
s_sub_u32 s70, s18, s70
v_lshrrev_b32 v17, 1, v0
v_mul_u32_u24 v17, 7, v17
v_add_u32 v17, s70, v17
v_cmp_gt_u32 vcc, 0x80, v17
v_mul_u32_u24 v17, s56, v17
v_add_u32 v17, s57, v17
s_movk_i32 s70, 128
s_movk_i32 s71, 256
s_cmp_lt_u32 s19, 12
s_cmovk_i32 s70, {1536 if mix else 128}
s_cmovk_i32 s71, 0
s_cselect_b32 s28, s12, s6
s_cselect_b32 s29, s13, s7
s_and_b32 s29, s29, 0xffff
s_mov_b32 s30, s26
s_mov_b32 s31, 0x20000
v_and_b32 v18, 1, v0
v_mad_u32_u24 v17, v18, s70, v17
v_subrev_u32 v20, s71, v17
v_mov_b32 v18, -1
v_cndmask_b32 v17, v18, v17, vcc
v_cndmask_b32 v20, v18, v20, vcc
v_and_b32 v18, 31, v0
v_mul_u32_u24 v18, 1280, v18
v_lshrrev_b32 v19, 5, v0
v_lshl_add_u32 v18, v19, 7, v18
s_lshl_b32 s70, s39, 5
s_mul_i32 s71, s18, 160
s_add_u32 s70, s70, s71
s_mul_i32 s70, s70, 1280""")
    def cluster(ahead):
        L = a.label("clus")
        a(f"""s_cmp_lg_u32 s3, 3
s_cbranch_scc1 {L}
s_add_u32 s71, s59, {ahead}
s_cmp_ge_u32 s71, {NST}
s_cselect_b32 s72, {NST}, 0
s_sub_u32 s71, s71, s72
s_lshl_b32 s72, s71, 7
s_add_u32 s72, s72, s70
s_mul_i32 s71, s71, s63
buffer_load_dword v19, v18, s[20:23], s72 offen
buffer_load_dword v19, v17, s[24:27], s71 offen
buffer_load_dword v19, v20, s[28:31], s71 offen
{L}:""")
    def spf_setup():
        a(f"""s_lshl_b32 s40, s38, 2
s_add_u32 s40, s40, s3
s_mul_i32 s41, s40, 2560
s_add_u32 s41, s41, {128*spf0}
s_add_u32 s44, s4, s41
s_addc_u32 s45, s5, 0
s_min_u32 s41, s40, 959
s_mul_i32 s42, s41, 4370
s_lshr_b32 s42, s42, 16
s_mul_i32 s43, s42, 15
s_sub_u32 s43, s41, s43
s_add_u32 s42, s42, {64*spf0}
s_mul_i32 s42, s42, 3840
s_lshl_b32 s43, s43, 8
s_add_u32 s42, s42, s43
s_add_u32 s46, s6, s42
s_addc_u32 s47, s7, 0
s_and_b32 s41, s40, 511
s_lshr_b32 s42, s41, 3
s_and_b32 s43, s41, 7
s_add_u32 s42, s42, {64*spf0}
s_mul_i32 s42, s42, 3072
s_mul_i32 s43, s43, 384
s_add_u32 s42, s42, s43
s_cmp_lt_u32 s40, 512
s_cselect_b32 s48, s12, s14
s_cselect_b32 s49, s13, s15
s_add_u32 s48, s48, s42
s_addc_u32 s49, s49, 0""")
    def spf_issue():
        a(f"""s_load_dword s50, s[44:45], 0
s_load_dword s50, s[44:45], 1280
s_load_dword s50, s[46:47], 0
s_load_dword s50, s[46:47], 128
s_load_dword s50, s[48:49], 0
s_load_dword s50, s[48:49], 128
s_load_dword s50, s[48:49], 256
s_add_u32 s44, s44, 128
s_addc_u32 s45, s45, 0
s_add_u32 s46, s46, {64*3840}
s_addc_u32 s47, s47, 0
s_add_u32 s48, s48, {64*3072}
s_addc_u32 s49, s49, 0""")
    def help_setup():
        a(f"""s_mul_i32 s70, s18, 37
s_lshr_b32 s70, s70, 8
s_mul_i32 s70, s70, 7
s_sub_u32 s70, s18, s70
s_mul_i32 s71, s39, 7
s_add_u32 s70, s70, s71
v_lshrrev_b32 v17, 3, v0
v_mul_u32_u24 v17, 21, v17
v_add_u32 v17, s70, v17
v_cmp_gt_u32 vcc, 64, v17
v_mul_u32_u24 v17, 3840, v17
v_and_b32 v18, 7, v0
v_lshl_add_u32 v17, v18, 7, v17
s_lshl_b32 s70, s42, 10
v_add_u32 v17, s70, v17
v_mov_b32 v18, -1
v_cndmask_b32 v17, v18, v17, vcc
s_mov_b32 s28, s6
s_and_b32 s29, s7, 0xffff
s_mov_b32 s30, {640*3840}
s_mov_b32 s31, 0x20000
s_lshl_b32 s72, s19, 2
s_add_u32 s72, s72, s3
s_and_b32 s70, s72, 3
s_cmp_lt_u32 s72, 48
s_cselect_b32 s72, s70, 0""")
        if helpx:
            a(f"""s_mul_i32 s70, s39, 54
v_add_u32 v20, s70, v0
v_cmp_gt_u32 vcc, 54, v0
v_mul_u32_u24 v20, 1280, v20
v_cndmask_b32 v20, v18, v20, vcc
s_mul_i32 s70, s18, {160*1280}""")
    def help_issue(ahead):
        L = a.label("help")
        a(f"""s_cmp_lt_u32 s72, {2 if helpx else 3}
s_cbranch_scc1 {L}
s_add_u32 s71, s59, {ahead}
s_cmp_ge_u32 s71, {NST}
s_cselect_b32 s74, {NST}, 0
s_sub_u32 s71, s71, s74""")
        if helpx:
            a(f"""s_cmp_eq_u32 s72, 3
s_cbranch_scc1 {L}w
s_lshl_b32 s71, s71, 7
s_add_u32 s71, s71, s70
buffer_load_dword v19, v20, s[20:23], s71 offen
s_branch {L}
{L}w:""")
        a(f"""s_mul_i32 s71, s71, {64*3840}
buffer_load_dword v19, v17, s[28:31], s71 offen
{L}:""")
    def ring(issue, nper):
        Ll = a.label("k1ld"); Ls = a.label("k1sk")
        if not (earlyx and nper == 13):
            issue()
        stamp.mark(a, 3)
        if spf:
            spf_setup()
            for i in range(2):
                spf_issue()
        hp = help and nper == 13
        if hp:
            help_setup()
            for i in range(help):
                help_issue(i)
        issue(0)
        stamp.mark(a, 5)
        if half0:
            a(f"s_waitcnt vmcnt({NFIRST + (4 if nper == 13 and earlyx else 0)})\ns_barrier")
        a(f"s_waitcnt vmcnt({NFIRST})")
        stamp.mark(a, 6)
        a("s_barrier")
        issue(1)
        if hp:
            help_issue(help - 1)
        if spf:
            for i in range(spf - 1):
                spf_issue()
        a(f"s_mov_b32 s37, 1\n{Ll}:")
        if spf:
            a(f"s_cmp_ge_u32 s37, {NST - spf0 - spf}\ns_cbranch_scc1 {Ls}")
            spf_issue()
            a(f"{Ls}:")
        issue()
        if hp:
            a(f"s_cmp_ge_u32 s37, {NST - 1 - help}\ns_cbranch_scc1 {Ls}h")
            help_issue(help - 1)
            a(f"{Ls}h:")
        a(f"""s_waitcnt vmcnt({nper})
s_barrier
s_add_u32 s37, s37, 1
s_cmp_lt_u32 s37, {NST-1}
s_cbranch_scc1 {Ll}
s_waitcnt lgkmcnt(0)
s_branch {name}_tjob""")
    NFIRST = 4
    a("s_add_u32 s73, s66, 8192")
    if earlyx:
        mk_issue_reg(0)("w")
    if nvar > 1:
        a(f"""s_mul_i32 s60, s39, {vmul}
s_add_u32 s60, s60, s18
s_mul_i32 s72, s60, {(256 + nvar - 1)//nvar}
s_lshr_b32 s72, s72, 8
s_mul_i32 s72, s72, {nvar}
s_sub_u32 s60, s60, s72""")
        for v in range(1, nvar):
            a(f"s_cmp_eq_u32 s60, {v}\ns_cbranch_scc1 {name}_var{v}")
    ring(mk_issue_reg(0), 13)
    for v in range(1, nvar):
        a(f"{name}_var{v}:")
        ring(mk_issue_reg(v), 13)
    gap("spec")
    a(f"{name}_ldspec:")
    for e in range(4):
        xoff(1 + e, e, 4 * (e >> 1))
    wcols()
    woffs(False)
    a(f"""s_lshl_b32 s61, s18, 8
s_lshl_b32 s60, s3, 6
s_add_u32 s61, s61, s60
s_mul_i32 s61, s61, 1280
s_lshl_b32 s65, s3, 13
s_lshl_b32 s67, s3, 4
s_mul_i32 s67, s67, s56
s_lshl_b32 s66, s3, 12
s_add_u32 s66, s66, 32768""")
    srds()
    def issue_spec(part=None):
        if part in (None, 0):
            a(f"""s_lshl_b32 s62, s59, 7
s_add_u32 s62, s62, s61
s_mul_i32 s64, s59, s63
s_add_u32 m0, s36, s65
s_add_u32 s64, s64, s67
buffer_load_dwordx4 v1, s[20:23], s62 offen {nt_x} lds
buffer_load_dwordx4 v2, s[20:23], s62 offen offset:1024 {nt_x} lds
buffer_load_dwordx4 v3, s[20:23], s62 offen offset:2048 {nt_x} lds
buffer_load_dwordx4 v4, s[20:23], s62 offen offset:3072 {nt_x} lds""")
        if part in (None, 1):
            a(f"""s_add_u32 m0, m0, 4096
s_add_u32 s69, s62, {32*1280}
buffer_load_dwordx4 v1, s[20:23], s69 offen {nt_x} lds
buffer_load_dwordx4 v2, s[20:23], s69 offen offset:1024 {nt_x} lds
buffer_load_dwordx4 v3, s[20:23], s69 offen offset:2048 {nt_x} lds
buffer_load_dwordx4 v4, s[20:23], s69 offen offset:3072 {nt_x} lds
s_add_u32 m0, s36, s66
s_nop 0
buffer_load_dwordx4 v6, s[24:27], s64 offen {nt_w} lds
buffer_load_dwordx4 v7, s[24:27], s64 offen offset:1024 {nt_w} lds
buffer_load_dwordx4 v8, s[24:27], s64 offen offset:2048 {nt_w} lds
buffer_load_dwordx4 v9, s[24:27], s64 offen offset:3072 {nt_w} lds""")
        if part == 0: return
        advance()
    ring(issue_spec, 12)
    a.c("""re-layout of w_o / w_down into MFMA fragments (LDS transpose reads)""")
    if tgu:
        TSEL = f"""s_mov_b32 s32, s16
s_and_b32 s33, s17, 0xffff
s_mov_b32 s34, {WS_END}
s_mov_b32 s35, 0x20000
s_mul_i32 s70, s19, 13
s_add_u32 s70, s70, s18
s_lshl_b32 s70, s70, 2
s_add_u32 s70, s70, s3
s_mov_b32 s71, s70
s_cmp_lt_u32 s70, 544
s_cbranch_scc1 {name}_tyes
s_waitcnt vmcnt(0)
s_barrier
s_branch {name}_gate
{name}_tyes:"""
    else:
        TSEL = """s_mul_i32 s70, s3, 255
s_add_u32 s70, s70, s38
s_cmp_lt_u32 s70, 544
s_cselect_b32 s71, s70, 0"""
    a(f"""{name}_tjob:
{TSEL}
s_lshr_b32 s72, s71, 2
s_and_b32 s73, s71, 3
s_mul_i32 s76, s72, 20
s_sub_u32 s74, s72, 32
s_mul_i32 s74, s74, 80
s_add_u32 s74, s74, 16
s_cmp_ge_u32 s72, 32
s_cselect_b32 s76, s74, s76
s_cselect_b32 s77, 16, 0
s_sub_u32 s74, s72, 40
s_lshl_b32 s74, s74, 4
s_cmp_lt_u32 s72, 40
s_cselect_b32 s28, s8, s10
s_cselect_b32 s29, s9, s11
s_mov_b32 s30, {1536*1280}
s_cmov_b32 s30, {640*1280}
s_cselect_b32 s74, s76, s74
s_cselect_b32 s77, s77, 0
s_and_b32 s29, s29, 0xffff
s_mov_b32 s31, 0x20000
s_mul_i32 s74, s74, 1280
s_mul_i32 s75, s73, 320
s_add_u32 s74, s74, s75
s_mul_i32 s75, s3, 5120
s_add_u32 s75, s75, {SLOT}""")
    for i in range(5):
        a(f"""v_add_u32 v8, {64*i}, v0
v_mul_u32_u24 v9, 205, v8
v_lshrrev_b32 v9, 12, v9
v_mul_u32_u24 v10, 20, v9
v_sub_u32 v8, v8, v10
v_lshrrev_b32 v10, 2, v9
v_mad_u32_u24 v9, v10, s77, v9
v_mul_u32_u24 v9, 1280, v9
v_lshl_add_u32 v11, v8, 4, v9
s_add_u32 m0, s75, {1024*i}
s_nop 0
buffer_load_dwordx4 v11, s[28:31], s74 offen lds""")
    srd(a, 32, 16, WS_END)
    a(f"""s_waitcnt vmcnt(5)
s_barrier""")
    a(f"""s_cmp_ge_u32 s70, 544
s_cbranch_scc1 {name}_gate""")
    a(f"""v_lshrrev_b32 v1, 5, v0
v_bfe_u32 v2, v0, 2, 2
v_lshl_add_u32 v1, v1, 2, v2
v_mul_u32_u24 v1, 320, v1
v_bfe_u32 v2, v0, 4, 1
v_lshl_add_u32 v1, v2, 5, v1
v_and_b32 v2, 3, v0
v_lshl_add_u32 v1, v2, 3, v1
v_add_u32 v1, s75, v1
v_bfe_u32 v2, v0, 4, 1
v_mul_u32_u24 v2, {FB}, v2
v_and_b32 v3, 15, v0
v_lshrrev_b32 v4, 5, v0
v_lshl_add_u32 v3, v4, 4, v3
v_lshl_add_u32 v4, v3, 3, v2
v_lshl_add_u32 v2, v3, 4, v2
s_mul_i32 s76, s73, {10*FB}
s_add_u32 s76, s76, {WF}
s_lshl_b32 s74, s72, 9
s_add_u32 s76, s76, s74
s_waitcnt vmcnt(0)""")
    for j in range(5):
        a(f"ds_read_b64_tr_b16 {vr(16+4*j,2)}, v1 offset:{64*j}")
        a(f"ds_read_b64_tr_b16 {vr(18+4*j,2)}, v1 offset:{64*j+8*320}")
    a(f"s_cmp_eq_u32 s77, 16\ns_cbranch_scc1 {name}_tx")
    for j in range(5):
        a(f"s_waitcnt lgkmcnt({8-2*j})")
        a(f"buffer_store_dwordx4 {vr(16+4*j,4)}, v2, s[32:35], s76 offen {st_w}")
        if j < 4:
            a(f"s_add_u32 s76, s76, {2*FB}")
    a(f"s_branch {name}_gate\n{name}_tx:")
    for j in range(5):
        a(f"s_waitcnt lgkmcnt({8-2*j})")
        a(f"buffer_store_dwordx2 {vr(16+4*j,2)}, v4, s[32:35], s76 offen {st_w}")
        a(f"buffer_store_dwordx2 {vr(18+4*j,2)}, v4, s[32:35], s76 offen offset:256 {st_w}")
        if j < 4:
            a(f"s_add_u32 s76, s76, {2*FB}")
    a(f"s_branch {name}_gate")
    a(f"""{name}_idle:
s_mov_b32 s19, 0
s_waitcnt lgkmcnt(0)
s_cmp_lt_u32 s3, 4
s_cbranch_scc1 {name + "_join" if fused else Lend}
s_sub_u32 s3, s3, 4
s_waitcnt lgkmcnt(0)""")
    srd(a, 20, 4, 2048 * 1280)
    srd(a, 32, 16, WS_END)
    a.c("""gate: g = sigmoid(x_row . gate_w) for two rows per loader wave""")
    a(f"{name}_gate:")
    srd(a, 24, 78, 1280)
    a(f"""v_mul_u32_u24 v1, 20, v0
s_lshl_b32 s47, s2, 3
s_lshl_b32 s48, s3, 1
s_add_u32 s47, s47, s48
s_mul_i32 s48, s47, 1280
buffer_load_dwordx4 v[40:43], v1, s[24:27], 0 offen
buffer_load_dword v44, v1, s[24:27], 0 offen offset:16
buffer_load_dwordx4 v[48:51], v1, s[20:23], s48 offen
buffer_load_dword v52, v1, s[20:23], s48 offen offset:16
buffer_load_dwordx4 v[56:59], v1, s[20:23], s48 offen offset:1280
buffer_load_dword v60, v1, s[20:23], s48 offen offset:1296
v_mov_b32 v2, 0
v_mov_b32 v3, 0
v_lshlrev_b32 v4, 2, v0
s_cmp_lg_u32 s3, {99 if fused else 3}
s_cbranch_scc1 {name}_nofl
s_cmp_ge_u32 s2, 8
s_cbranch_scc1 {name}_nofl
s_lshl_b32 s49, s2, 12
s_add_u32 s49, s49, {FLG}
s_mov_b32 exec_hi, 0
buffer_store_dword v2, v4, s[32:35], s49 offen sc1
s_mov_b32 exec_hi, -1
{name}_nofl:
s_waitcnt vmcnt(0)""")
    for i in range(5):
        a(f"v_dot2_f32_bf16 v2, v{48+i}, v{40+i}, v2")
        a(f"v_dot2_f32_bf16 v3, v{56+i}, v{40+i}, v3")
    a("s_nop 3")
    for d in ("row_shr:1 row_mask:0xf bank_mask:0xf bound_ctrl:0", "row_shr:2 row_mask:0xf bank_mask:0xf bound_ctrl:0",
              "row_shr:4 row_mask:0xf bank_mask:0xf bound_ctrl:0", "row_shr:8 row_mask:0xf bank_mask:0xf bound_ctrl:0",
              "row_bcast:15 row_mask:0xa bank_mask:0xf", "row_bcast:31 row_mask:0xc bank_mask:0xf"):
        a(f"v_add_f32_dpp v2, v2, v2 {d}\nv_add_f32_dpp v3, v3, v3 {d}\ns_nop 0")
    a(f"""v_mul_f32 v2, {hex(f2u(-1.4426950408889634))}, v2
v_mul_f32 v3, {hex(f2u(-1.4426950408889634))}, v3
v_exp_f32 v2, v2
v_exp_f32 v3, v3
s_nop 0
v_add_f32 v2, 1.0, v2
v_add_f32 v3, 1.0, v3
v_rcp_f32 v2, v2
v_rcp_f32 v3, v3
s_lshl_b32 s49, s47, 2
s_add_u32 s49, s49, {GV}
v_mov_b32 v4, 0
s_mov_b32 exec_lo, 0
s_mov_b32 exec_hi, 0x80000000
buffer_store_dwordx2 v[2:3], v4, s[32:35], s49 offen sc1""")
    if fused:
        if ldfirst:
            a(f"s_branch {name}_join")
            a.lines[mark_c:] = a.lines[mark_l:] + a.lines[mark_c:mark_l]
        return
    stamp.flush(a, 0, 4, 0)
    a(f"{Lend}:\ns_endpgm")
    kernel_desc(a, name, NV, 102 if stamp.ENABLED else 96)
```

```python
from common import *
import stamp

K2_LDS = HEADB
Q16, Q8 = 4, 8
K16, K8 = 10, 14
V0, V1 = 16, 20
P = 24
S = [32, 48]
O = 64
VA, VB, VG, VK, VA2 = 80, 81, 82, 83, 84
VL = 3
RING = 88
NSL = 7
GA = 8
M16 = "v_mfma_f32_32x32x16_bf16"
M8 = "v_mfma_f32_32x32x8bf16_1k"
U = 8

EXP = set()
LAYOUTS = [(4, 8, 10, 14, 16, 20, 24, [32, 48], 64),
           (4, 12, 8, 14, 16, 20, 24, [32, 48], 64),
           (4, 8, 26, 30, 18, 22, 10, [32, 48], 64),
           (4, 8, 76, 10, 12, 16, 20, [28, 44], 60),
           (4, 8, 76, 74, 66, 70, 10, [18, 34], 50)]
def tile(a0, t, base, job0=None, job1=None):
    def a(s):
        if "noexec" in EXP and "exec" in s: return
        if "nods" in EXP and s.startswith("ds_"): return
        if "nowait" in EXP and s.startswith("s_waitcnt"): return
        if "half" in EXP and t % 2 and (s.startswith("ds_") or "exec" in s or s.startswith("s_waitcnt")): return
        if "half" in EXP and s.startswith("s_waitcnt lgkmcnt(1)"): return
        if "half" in EXP and s.startswith("s_waitcnt lgkmcnt(3)"): s = "s_waitcnt lgkmcnt(0)"
        if "kb128" in EXP and s.startswith("ds_read2st64"):
            s = f"ds_read_b128 {vr(K16,4)}, v{VL} offset:{(t + 2 - base) * TILE}"
        a0(s)
    if "nojob" in EXP and t >= 16:
        job0 = job1 = None
    s0, s1 = S[t % 2], S[(t + 1) % 2]
    ko = (t + 2 - base) * TILE
    vo = (t - base) * TILE
    assert ko + 16 < 65536
    def ex(lo, hi):
        for i in range(lo, hi):
            a(f"v_exp_f32 v{s0+i}, v{s0+i}")
    def cv(lo, hi):
        for i in range(lo, hi):
            a(f"v_cvt_pk_bf16_f32 v{P+i}, v{s0+2*i}, v{s0+2*i+1}")
    last = t == 63
    if not last:
        a("s_waitcnt lgkmcnt(3)" if t < 62 else "s_waitcnt lgkmcnt(2)")
        a(f"{M16} {vr(s1,16)}, {vr(K16,4)}, {vr(Q16,4)}, 0")
    if t < 62:
        a(f"ds_read2st64_b64 {vr(K16,4)}, v{VK} offset0:{ko//512} offset1:{ko//512+1}")
    ex(0, 5)
    a("s_waitcnt lgkmcnt(1)" if t < 62 else "s_waitcnt lgkmcnt(0)")
    a(f"{M16} {vr(O,16)}, {vr(V0,4)}, {vr(P,4)}, {vr(O,16)}")
    if job0: job0()
    ex(5, 8)
    cv(0, 4)
    if not last:
        a(f"{M8} {vr(s1,16)}, {vr(K8,2)}, {vr(Q8,2)}, {vr(s1,16)}")
    if t < 62:
        a(f"ds_read_b64 {vr(K8,2)}, v{VB} offset:{ko}")
    ex(8, 13)
    a(f"{M16} {vr(O,16)}, {vr(V1,4)}, {vr(P+4,4)}, {vr(O,16)}")
    a("s_mov_b64 exec, s[30:31]")
    a(f"ds_read_b128 {vr(V0,4)}, v{VA} offset:{vo}")
    a(f"ds_read_b128 {vr(V1,4)}, v{VA2} offset:{vo}")
    a("s_mov_b64 exec, -1")
    if job1: job1()
    ex(13, 16)
    cv(4, 8)

MM = "v_mfma_f32_16x16x32_bf16"
MX = "v_mfma_f32_16x16x16bf16_1k"
STG = 13312
TDEAD = 42
RDY = 8 * STG
PTMP = 252
NFR = 41
LDF = [""]
BB = 62
def bfrag(n, reg):
    i, c = n // 9, n % 9
    if i < 4:
        return f"buffer_load_dwordx4 {vr(reg,4)}, v{VL}, s[20:23], s{BB+c} offen offset:{i*1024} {LDF[0]}"
    return f"s_add_u32 s73, s{BB+c}, {1024*i}\nbuffer_load_dwordx4 {vr(reg,4)}, v{VL}, s[20:23], s73 offen {LDF[0]}"

def gen_k2(a, name, prios={0:3, 2:2, 3:1, 4:3, 11:2, 14:1, 16:3, 35:2, 40:1, 42:0, 43:3, 56:2, 61:1, 63:0}, lead=4, lead2=0, pubo=2, puby=0,
           st_o="sc1", pf0=18, rot=True, slp=2, nosync=False, tailmarks=False, b1=3, fused=True, st_out="", exp=(), defer=False, tall=22, hold1=None, map84=False, yprio=False, npre=NFR, pstep=1, wat=2, wgap=2, warm=0, am=None, ppoll=False, osplit=False, hoist=True, lay=0, shift=0x7d0, wbl=None, early=False):
    global Q16, Q8, K16, K8, V0, V1, P, S, O
    Q16, Q8, K16, K8, V0, V1, P, S, O = LAYOUTS[lay]
    EXP.clear(); EXP.update(exp)
    hm = lambda i: stamp.mark(a, 6) if i == 2 else None
    tm = (lambda i: stamp.mark(a, i)) if tailmarks else (lambda i: None)
    Lend = f"{name}_end"
    LD = "sc1"
    LDF[0] = LD
    Lj = a.label("join")
    EARLY = f"s_cmp_ge_u32 s3, 4\ns_cbranch_scc1 {Lj}e\ns_waitcnt vmcnt(0)\ns_barrier\n{Lj}e:" if early else ""
    a.c("""==== hand-off 1: stores drained -> barrier -> counter; the last Q/K/V producer raises the go flags\n==== phase 2: attention for head s18, query tile s19 (one per wave); K/V of the head staged in LDS""")
    if shift is not None:
        a.c("(unreachable filler, as above)")
        a(".p2align 12")
        if shift:
            a(f".fill {shift//4}, 4, 0xbf800000")
    if defer:
        a(f"""{name}_join:
s_mov_b64 exec, -1
s_mov_b32 s78, 0x80000000
s_mov_b32 s79, 0x80000000
v_mov_b32 v244, 0
{name}_join2:""")
    else:
        a(f"{name}_join:")
    a(f"""s_mov_b64 exec, -1
s_setprio 0
s_mov_b32 s3, s55
{EARLY}
s_mov_b32 s74, s19
s_load_dwordx2 s[6:7], s[0:1], 72
s_load_dwordx2 s[4:5], s[0:1], 64
v_mbcnt_lo_u32_b32 v0, -1, 0
v_mbcnt_hi_u32_b32 v0, -1, v0
s_and_b32 s40, s2, 7
s_lshr_b32 s41, s2, 3
s_lshl_b32 s18, s40, 2
s_lshr_b32 s42, s41, 3
s_add_u32 s18, s18, s42
s_mul_i32 s43, s18, {HEADB}
v_lshlrev_b32 v{VL}, 4, v0
s_lshl_b32 s45, s3, 10
s_add_u32 s46, s43, s45
s_add_u32 s46, s46, {KV}
s_mov_b32 m0, s45
s_and_b32 s19, s41, 7
s_lshl_b32 s19, s19, 3
s_add_u32 s19, s19, s3
v_and_b32 v1, 31, v0
v_lshrrev_b32 v2, 5, v0
v_bfe_u32 v85, v1, 2, 2
v_xor_b32 v85, v85, v2
v_lshlrev_b32 v85, 4, v85
v_lshl_add_u32 v{VA}, v1, 6, v85
v_add_u32 v{VA}, 1280, v{VA}
v_xor_b32 v{VA2}, 32, v{VA}
v_and_b32 v{VB}, 7, v1
v_lshlrev_b32 v{VB}, 4, v{VB}
v_and_b32 v85, 8, v1
v_add_u32 v{VB}, v85, v{VB}
v_and_b32 v85, 16, v1
v_lshl_add_u32 v{VB}, v85, 3, v{VB}
v_lshl_add_u32 v{VK}, v2, 8, v{VB}
v_add_u32 v{VB}, 1024, v{VB}
s_mul_i32 s44, s19, {TILE}
s_add_u32 s44, s44, s43
s_lshl_b32 s47, s19, 7
s_add_u32 s47, s47, {GV}
v_lshlrev_b32 v{VG}, 2, v1
v_mov_b32 v37, 0
s_waitcnt lgkmcnt(0)
s_cmp_lg_u32 s3, {lead}
s_cbranch_scc1 {Lj}s
global_load_dword v36, v37, s[6:7] sc1
{Lj}s:""")
    srd(a, 20, 16, WS_END)
    srd(a, 24, 4, 2048 * 1280)
    if map84:
        a("""s_and_b32 s60, s40, 3
s_lshl_b32 s60, s60, 3
s_lshr_b32 s42, s41, 2
s_add_u32 s60, s60, s42
s_and_b32 s61, s40, 4
s_and_b32 s42, s41, 3
s_add_u32 s61, s61, s42
s_lshl_b32 s42, s42, 1""")
    else:
        a("""s_lshl_b32 s60, s40, 2
s_lshr_b32 s42, s41, 3
s_add_u32 s60, s60, s42
s_and_b32 s61, s41, 7
s_mov_b32 s42, s61""")
    a(f"""s_add_u32 s75, s3, {"s42" if rot else "0"}
s_and_b32 s75, s75, 7
s_mul_i32 s48, s75, 6144
s_add_u32 s48, s48, {FH}
s_mul_i32 s71, s60, {4*FB}
s_add_u32 s71, s71, {AF}
s_add_u32 s62, s71, s48
s_mul_i32 s72, s61, {5*FB}
s_add_u32 s72, s72, {WF}
s_add_u32 s66, s72, s48
s_mul_i32 s76, s3, {STG}""")
    for j in range(1, 4):
        a(f"s_add_u32 s{62+j}, s{61+j}, {FB}")
    for j in range(1, 5):
        a(f"s_add_u32 s{66+j}, s{65+j}, {FB}")
    a(f"""s_mov_b32 s30, 0x000fffff
s_mov_b32 s31, 0x000fffff
v_cmp_eq_u32 vcc, 20, v1
v_mov_b32 v85, 0x3f803f80
v_mov_b32 v86, 0
v_cndmask_b32 v{V0}, v86, v85, vcc
v_mov_b32 v{Q8}, 0
v_mov_b32 v{Q8+1}, 0""")
    for i in range(1, 8):
        a(f"v_mov_b32 v{V0+i}, v{V0}")
    for i in range(16):
        a(f"v_mov_b32 v{O+i}, 0")
    for i in range(8):
        a(f"v_mov_b32 v{P+i}, 0")
    if warm:
        a(f"""s_and_b32 s48, s60, 3
v_lshl_add_u32 v252, v0, 2, s48
v_mul_u32_u24 v253, 205, v252
v_lshrrev_b32 v253, 12, v253
v_mul_u32_u24 v254, 20, v253
v_sub_u32 v254, v252, v254
v_cmp_gt_u32 vcc, 100, v252
v_mul_u32_u24 v253, {FB}, v253
v_lshl_add_u32 v252, v254, 7, v253
s_lshl_b32 s48, s75, 11
s_lshl_b32 s49, s75, 9
s_add_u32 s49, s49, {FX - 2048}
v_mov_b32 v253, s48
v_mov_b32 v255, s49
v_cmp_gt_u32 s[48:49], 16, v254
v_mov_b32 v254, -1
s_nop 0
v_cndmask_b32 v253, v255, v253, s[48:49]
v_add_u32 v252, v252, v253
v_cndmask_b32 v252, v254, v252, vcc""")
    stamp.mark(a, 1)
    if early:
        a(f"s_cmp_lt_u32 s3, 4\ns_cbranch_scc1 {Lj}d")
    a("s_waitcnt vmcnt(0)\ns_barrier")
    if stamp.TODEBUG is None: stamp.mark(a, 5)
    a(f"""s_cmp_lg_u32 s3, {lead}
s_cbranch_scc1 {Lj}d
s_mov_b32 s49, 0
{Lj}t:
v_readfirstlane_b32 s77, v36
s_add_u32 s49, s49, 1
s_cmp_ge_u32 s49, 0x40000
s_cbranch_scc1 {Lj}u
s_cmp_lg_u32 s77, 0
s_cbranch_scc1 {Lj}u
global_load_dword v36, v37, s[6:7] sc1
s_waitcnt vmcnt(0)
s_branch {Lj}t
{Lj}u:
v_mov_b32 v34, s77
s_lshl_b32 s48, s2, 2
s_add_u32 s48, s48, {FALL}
s_mov_b32 s50, {FQKV}
v_lshlrev_b32 v33, 11, v0
s_mov_b64 exec, 1
s_cmp_lt_u32 s74, 12
s_cbranch_scc1 {Lj}n
v_mov_b32 v35, 1
global_atomic_add v35, v37, v35, s[6:7] offset:128 sc0 sc1
s_waitcnt vmcnt(0)
v_readfirstlane_b32 s49, v35
s_cmp_lg_u32 s49, 98
s_cbranch_scc1 {Lj}n
s_mov_b64 exec, 0xffff
buffer_store_dword v34, v33, s[20:23], s50 offen sc1
s_mov_b64 exec, 1
global_store_dword v37, v37, s[6:7] offset:128 sc1
{Lj}n:
{'' if defer or wbl else 'buffer_store_dword v34, v37, s[20:23], s48 offen sc1'}
s_and_b32 s48, s2, 15
s_lshl_b32 s48, s48, 11
s_add_u32 s48, s48, {FQKV}
s_mov_b32 s49, 0
{Lj}:
buffer_load_dword v33, v37, s[20:23], s48 offen sc1
s_add_u32 s49, s49, 1
s_waitcnt vmcnt(0)
v_cmp_ne_u32 vcc, s77, v33
s_cmp_ge_u32 s49, 0x40000
s_cbranch_scc1 {Lj}x
s_cbranch_vccnz {Lj}
{Lj}x:
s_mov_b64 exec, -1
{Lj}d:
s_barrier""")
    stamp.mark(a, 2)
    if hold1:
        Lh = a.label("hold1")
        a(f"""s_waitcnt lgkmcnt(0)
s_add_u32 s101, s96, {hold1}
{Lh}:
s_memrealtime s[98:99]
s_waitcnt lgkmcnt(0)
s_cmp_lt_u32 s98, s101
s_cbranch_scc1 {Lh}""")
    a(f"""buffer_load_dwordx4 v{VL}, s[20:23], s46 offen {LD} lds
buffer_load_dwordx2 {vr(Q16,2)}, v{VK}, s[20:23], s44 offen {LD}
buffer_load_dwordx2 {vr(Q16+2,2)}, v{VK}, s[20:23], s44 offen offset:512 {LD}
s_mov_b32 exec_hi, 0
buffer_load_dwordx2 {vr(Q8,2)}, v{VB}, s[20:23], s44 offen {LD}
s_mov_b32 exec_hi, -1""")
    for i in range(3):
        a(f"s_add_u32 m0, m0, 8192\ns_add_u32 s46, s46, 8192\nbuffer_load_dwordx4 v{VL}, s[20:23], s46 offen {LD} lds")
    a(f"""v_lshl_add_u32 v{VB}, v2, 18, v{VB}
s_waitcnt vmcnt({2 if b1 == 3 else 0})
s_barrier""")
    hm(2)
    a(f"""ds_read2st64_b64 {vr(K16,4)}, v{VK} offset0:0 offset1:1
ds_read_b64 {vr(K8,2)}, v{VB}
s_waitcnt lgkmcnt(0)
{M16} {vr(S[0],16)}, {vr(K16,4)}, {vr(Q16,4)}, 0
{M8} {vr(S[0],16)}, {vr(K8,2)}, {vr(Q8,2)}, {vr(S[0],16)}
ds_read2st64_b64 {vr(K16,4)}, v{VK} offset0:5 offset1:6
ds_read_b64 {vr(K8,2)}, v{VB} offset:{TILE}
s_mov_b64 exec, s[30:31]
ds_read_b128 {vr(V0,4)}, v{VA}
ds_read_b128 {vr(V1,4)}, v{VA2}
s_mov_b64 exec, -1
s_nop 7
s_nop 3""")
    def kv():
        a(f"s_add_u32 m0, m0, 8192\ns_add_u32 s46, s46, 8192\nbuffer_load_dwordx4 v{VL}, s[20:23], s46 offen {LD} lds")
    wl = []
    for n in range(NFR, 54):
        i, c = n // 9, n % 9
        wl.append(f"s_add_u32 m0, s76, {1024*(n - NFR)}\ns_add_u32 s73, s{BB+c}, {1024*i}\nbuffer_load_dwordx4 v{VL}, s[20:23], s73 offen {LD} lds")
    pf = [bfrag(n, RING + 4 * n) for n in range(npre)]
    if pstep > 1:
        pf = sum([[x] + [''] * (pstep - 1) for x in pf], [])
    def pub_all():
        Lf = a.label("fall")
        a(f"""s_cmp_lg_u32 s3, {lead}
s_cbranch_scc1 {Lf}
s_lshl_b32 s48, s2, 2
s_add_u32 s48, s48, {FALL}
v_mov_b32 v85, s77
v_mov_b32 v86, 0
s_mov_b64 exec, 1
buffer_store_dword v85, v86, s[20:23], s48 offen sc1
s_mov_b64 exec, -1
{Lf}:""")
    def chk_all():
        La = a.label("alld")
        a(f"""s_cmp_lg_u32 s3, {lead}
s_cbranch_scc1 {La}d
s_mov_b32 s48, {FALL}
s_mov_b32 s49, 0
{La}:
buffer_load_dwordx4 v[88:91], v{VL}, s[20:23], s48 offen sc1
s_add_u32 s49, s49, 1
s_waitcnt vmcnt(0)
v_xor_b32 v88, s77, v88
v_xor_b32 v89, s77, v89
v_xor_b32 v90, s77, v90
v_xor_b32 v91, s77, v91
v_or3_b32 v88, v88, v89, v90
v_or_b32 v88, v88, v91
v_cmp_ne_u32 vcc, 0, v88
s_cmp_ge_u32 s49, 0x40000
s_cbranch_scc1 {La}d
s_cbranch_vccz {La}d
s_sleep {slp}
s_branch {La}
{La}d:""")
    post = defer == 'post'
    if post:
        pf0 = tall + 1
    base = 0
    for t in range(64):
        if t in prios:
            a(f"s_setprio {prios[t]}")
        if t in (23, 46):
            a(f"v_add_u32 v{VA}, {23*TILE}, v{VA}\nv_add_u32 v{VB}, {23*TILE}, v{VB}\nv_add_u32 v{VK}, {23*TILE}, v{VK}\nv_add_u32 v{VA2}, {23*TILE}, v{VA2}")
            base = t
        j0 = j1 = None
        if t < 8:
            j0 = j1 = kv
        elif post and 8 <= t < 13:
            import k1
            def hs(mi):
                so = "s78" if mi >= 8 else "s79"
                a(f"buffer_store_dwordx4 {vr(k1.hout(mi),4)}, v244, s[20:23], {so} offen offset:{128*(mi&1)} sc1")
                if mi & 1 and mi < 7:
                    a(f"s_add_u32 s79, s79, {2*FB}")
            j0 = (lambda m=2*(t-8): hs(m)); j1 = (lambda m=2*(t-8)+1: hs(m))
        elif post and t >= pf0:
            if pf: j1 = (lambda x=pf.pop(0): a(x))
            if pf and t < 42 and len(pf) > 62 - t: j0 = (lambda x=pf.pop(0): a(x))
        elif pf0 <= t < pf0 + len(pf):
            j1 = (lambda x=pf[t - pf0]: a(x))
        if TDEAD < t <= TDEAD + len(wl):
            j0 = (lambda x=wl[t - TDEAD - 1]: a(x))
        if warm and t == warm:
            assert j0 is None
            j0 = lambda: a(f"buffer_load_dword v253, v252, s[20:23], s72 offen {LD}")
        a(f"Ltile{t}:")
        tile(a, t, base, j0, j1)
        if fused and 24 <= t < 40 and t % 2 == 0:
            Lt = a.label("tag2")
            a(f"s_cmp_lg_u32 s3, {(t - 24) // 2}\ns_cbranch_scc1 {Lt}\nv_mov_b32 v85, 0\nglobal_load_dword v87, v85, s[6:7] sc1\n{Lt}:")
        if t == TDEAD:
            a("s_barrier")
            a(f"v_mov_b32 v85, {RDY}\nv_mov_b32 v86, 0\nds_write_b32 v85, v86\nds_write_b32 v85, v86 offset:4")
        if t == b1:
            a("s_waitcnt vmcnt(14)" if b1 == 7 else "s_waitcnt vmcnt(6)")
            hm(5)
            a("s_barrier")
            if defer and not post:
                pub_all()
        if wbl and t == wbl:
            Lb = a.label("wbl")
            a(f"s_cmp_lg_u32 s3, {lead}\ns_cbranch_scc1 {Lb}\nbuffer_wbl2 sc1\ns_waitcnt vmcnt(0)\n{Lb}:")
            pub_all()
        if t == 15:
            if fused and not post:
                chk_all()
            a("s_waitcnt vmcnt(0)\ns_barrier")
            if post:
                pub_all()
            elif fused:
                a(f"buffer_load_dword v{VG}, v{VG}, s[20:23], s47 offen sc1")
            hm(6)
        if post and t == tall:
            chk_all()
            a(f"s_barrier\nbuffer_load_dword v{VG}, v{VG}, s[20:23], s47 offen sc1")
    assert (not pf) if post else pf0 + len(pf) <= 64
    a(f"""s_waitcnt lgkmcnt(0)
{M16} {vr(O,16)}, {vr(V0,4)}, {vr(P,4)}, {vr(O,16)}
{M16} {vr(O,16)}, {vr(V1,4)}, {vr(P+4,4)}, {vr(O,16)}""")
    Lfin = a.label("k2fin"); Lfb = a.label("k2fb")
    stamp.mark(a, 3)
    a.c("""O / l with guard: the exponentials were taken without subtracting the row max, which is exact as long as nothing left the\nfloat range; l >= 2^-40 and l + sum|O| <= 2^100 is checked here, otherwise this wave redoes its rows with the true max""")
    a("Lattend:")
    T = S[0]
    a(f"""s_mul_i32 s48, s19, {2*FB}
s_add_u32 s48, s48, {AF}
s_lshl_b32 s50, s18, 9
s_add_u32 s50, s50, s48
s_lshl_b32 s49, s18, 7
s_add_u32 s49, s49, s48
s_add_u32 s49, s49, {FX}
v_lshrrev_b32 v{T+4}, 4, v1
v_mul_u32_u24 v{T+4}, {FB}, v{T+4}
v_and_b32 v{T+5}, 15, v1
v_lshl_add_u32 v{T+6}, v{T+5}, 3, v{T+4}
v_lshl_add_u32 v{T+4}, v{T+5}, 4, v{T+4}
v_lshl_add_u32 v{T+7}, v2, 8, v{T+4}
s_lshr_b32 s51, s19, 3
s_lshl_b32 s51, s51, 12
s_lshl_b32 s48, s18, 2
s_add_u32 s51, s51, s48
s_add_u32 s51, s51, {FLG}
s_mov_b32 s54, {hex(f2u(2.0**100))}
s_mov_b32 s55, {hex(f2u(2.0**-40))}
s_nop 3
v_mov_b32 v{T}, v{O+8}
v_mov_b32 v{T+1}, v{O+8}
s_nop 1
v_permlane32_swap_b32 v{T}, v{T+1}""")
    a(f"v_add_f32 v{T+2}, abs(v{O}), abs(v{O+1})\nv_add_f32 v{T+3}, abs(v{O+2}), v{T+1}")
    for i in range(3, 12):
        r = T + 2 + (i & 1)
        a(f"v_add_f32 v{r}, abs(v{O+i}), v{r}")
    a(f"""v_add_f32 v{T+2}, v{T+2}, v{T+3}
v_cmp_nge_f32 s[56:57], v{T+1}, s55
v_cmp_nle_f32 vcc, v{T+2}, s54
s_or_b64 vcc, vcc, s[56:57]
s_cbranch_vccnz {Lfb}
{Lfin}:
v_rcp_f32 v{T+1}, v{T+1}
s_nop 0
v_mul_f32 v{T+1}, v{VG}, v{T+1}""")
    for i in range(12):
        a(f"v_mul_f32 v{O+i}, v{T+1}, v{O+i}")
    for i in range(6):
        a(f"v_cvt_pk_bf16_f32 v{T+8+i}, v{O+2*i}, v{O+2*i+1}")
    a(f"""buffer_store_dwordx4 {vr(T+8,4)}, v{T+7}, s[20:23], s50 offen {st_o}
s_mov_b32 exec_hi, 0
buffer_store_dwordx2 {vr(T+12,2)}, v{T+6}, s[20:23], s49 offen {st_o}
s_mov_b32 exec_hi, -1
s_setprio 0""")
    if yprio:
        Ly = a.label("yp")
        a(f"s_cmp_lt_u32 s3, 4\ns_cbranch_scc1 {Ly}\ns_setprio 1\n{Ly}:")
    a.c("""==== phase 3: out = (1-g) * H @ w_down + (g*O) @ w_o, 64x80 tile, K split over the 8 waves; hand-off 2 publishes O""")
    a(f"""v_and_b32 v1, 15, v0
v_lshlrev_b32 v1, 2, v1
s_lshl_b32 s48, s60, 8
s_add_u32 s48, s48, {GV}""")
    for mi in range(4):
        a(f"buffer_load_dword v{4+mi}, v1, s[20:23], s48 offen offset:{64*mi} {LD}")
    a("s_waitcnt vmcnt(6)")
    if fused:
        a("v_readfirstlane_b32 s77, v87\ns_nop 1")
    a(f"""v_lshlrev_b32 v2, 2, v0
v_mov_b32 v1, {"s77" if fused else "1"}
s_lshr_b32 s48, s60, 2
s_lshl_b32 s48, s48, 12
s_add_u32 s48, s48, {FLG}""")
    out = ["st", "st"] + ["g"] * 4
    def wait_for(pred):
        idx = [i for i, x in enumerate(out) if pred(x)]
        if not idx:
            return
        a(f"s_waitcnt vmcnt({len(out) - 1 - max(idx)})")
        del out[:max(idx) + 1]
    reg = {n: RING + 4 * n for n in range(NFR)}
    Lw = a.label("k2poll"); Lw2 = a.label("k2polld")
    tmp = PTMP
    WR = []; XWs = []; pool = []; wq = []
    def refill(i):
        free = pool + [reg[n] for n in range(9 * i, 9 * i + 9)]
        del pool[:]
        if i == 0:
            a(f"v_add_u32 v{tmp+2}, s76, v{VL}\nv_lshlrev_b32 v{tmp+3}, 3, v0")
        while free and len(reg) < 54:
            n = len(reg); reg[n] = free.pop(0)
            a(f"ds_read_b128 {vr(reg[n],4)}, v{tmp+2} offset:{1024*(n - NFR)}")
        publish(i)
        if i < wat:
            pool.extend(free)
            return []
        if i == wat:
            for k in range(10):
                r = free.pop(0); WR.append(r)
                pre = f"s_lshl_b32 s73, s75, 11\ns_add_u32 s73, s73, s72\n" if k == 0 else f"s_add_u32 s73, s73, {FB}\n" if k % 2 == 0 else ""
                wq.append(pre + f"buffer_load_dwordx4 {vr(r,4)}, v{VL}, s[20:23], s73 offen offset:{1024*(k&1)} {LD}")
            XWs.extend(free[:3]); del free[:3]
            for j in range(5):
                pre = f"s_lshl_b32 s73, s75, 9\ns_add_u32 s73, s73, s72\ns_add_u32 s73, s73, {FX}\n" if j == 0 else f"s_add_u32 s73, s73, {FB}\n"
                wq.append(pre + f"buffer_load_dwordx2 {vr(XWs[j//2] + 2*(j%2),2)}, v{tmp+3}, s[20:23], s73 offen {LD}")
            while wq and not wgap:
                a(wq.pop(0)); out.append("w")
        return free
    def await_o(WR, AR, XW, XA, tmp):
        a(f"""s_lshl_b32 s52, s75, 11
s_add_u32 s52, s52, s71
s_lshl_b32 s49, s75, 9
s_add_u32 s49, s49, s71
s_add_u32 s49, s49, {FX}
s_lshl_b32 s53, s75, 2
s_lshl_b32 s53, 15, s53
v_mov_b32 v{tmp}, {RDY}
s_mov_b32 s55, 0
s_cmp_lg_u32 s3, {lead2}
s_cbranch_scc1 {Lw2}""")
        PR = spare[16]
        def poll(L, Lx, want):
            def look(reg):
                return f"""v_cmp_eq_u32 vcc, s77, v{reg}
s_add_u32 s55, s55, 1
s_cmp_ge_u32 s55, {1 if nosync else 0x40000}
s_cselect_b32 s54, -1, vcc_lo
v_mov_b32 v{tmp+1}, s54
ds_write_b32 v{tmp}, v{tmp+1}
s_and_b32 s56, s54, {want}
s_cmp_lg_u32 s56, {want}"""
            if not ppoll:
                a(f"""s_mov_b32 exec_hi, 0
{L}:
buffer_load_dword v1, v2, s[20:23], s48 offen sc1
s_waitcnt vmcnt(0)
{look(1)}
s_cbranch_scc1 {L}
s_mov_b32 exec_hi, -1""")
            else:
                a(f"""s_mov_b32 exec_hi, 0
buffer_load_dword v{PR}, v2, s[20:23], s48 offen sc1
s_sleep 8
{L}:
buffer_load_dword v{PR+1}, v2, s[20:23], s48 offen sc1
s_waitcnt vmcnt(1)
{look(PR)}
s_cbranch_scc0 {L}e
buffer_load_dword v{PR}, v2, s[20:23], s48 offen sc1
s_waitcnt vmcnt(1)
{look(PR+1)}
s_cbranch_scc1 {L}
{L}e:
s_mov_b32 exec_hi, -1""")
        poll(Lw, None, "s53")
        a(f"""s_branch {Lw2}x
{Lw2}:
ds_read_b32 v1, v{tmp}
s_add_u32 s55, s55, 1
s_waitcnt lgkmcnt(0)
v_readfirstlane_b32 s54, v1
s_cmp_ge_u32 s55, 0x400000
s_cselect_b32 s54, -1, s54
s_and_b32 s54, s54, s53
s_cmp_eq_u32 s54, s53
s_cbranch_scc1 {Lw2}x
s_sleep 1
s_branch {Lw2}
{Lw2}x:""")
        tm(1)
        for mi in range(4):
            if mi == 2 and osplit:
                selectors()
            for k in range(2):
                a(f"buffer_load_dwordx4 {vr(AR[4*k+mi],4)}, v{VL}, s[20:23], s52 offen offset:{1024*k} sc1")
            a(f"buffer_load_dwordx2 {vr(XA[mi],2)}, v{tmp+3}, s[20:23], s49 offen sc1")
            if mi < 3:
                a(f"s_add_u32 s52, s52, {FB}\ns_add_u32 s49, s49, {FB}")
            out.extend(["o"] * 3)
        Lr = a.label("k2rest")
        a(f"""s_cmp_lg_u32 s3, {lead2}
s_cbranch_scc1 {Lr}x
s_cmp_eq_u32 s54, -1
s_cbranch_scc1 {Lr}x""")
        poll(Lr, None, "-1")
        a(f"{Lr}x:")
    def publish(i):
        for pos, br in ((pubo, "s_cbranch_scc0"), (puby, "s_cbranch_scc1")):
            if i != pos:
                continue
            n = len(out) - 1 - max(k for k, x in enumerate(out) if x == "st")
            Lnp = a.label("k2np")
            a(f"""s_cmp_lt_u32 s3, 4
{br} {Lnp}
s_setprio 0
s_waitcnt vmcnt({n})
s_mov_b64 exec, 1
v_mov_b32 v{PT}, {RDY}
v_mov_b32 v{PT+1}, 1
ds_add_rtn_u32 v{PT+1}, v{PT}, v{PT+1} offset:4
s_waitcnt lgkmcnt(0)
v_readfirstlane_b32 s54, v{PT+1}
s_cmp_lg_u32 s54, 7
s_cbranch_scc1 {Lnp}y
buffer_store_dword v1, v2, s[20:23], s51 offen sc1
{Lnp}y:
s_mov_b64 exec, -1""")
            tm(6)
            a(f"{Lnp}:")
    PT = PTMP
    publish(-1)
    spare = []
    for i in range(6):
        if i == 4:
            a("s_waitcnt lgkmcnt(0)")
        for mi in range(4):
            for ni in range(5):
                d = GA + 4 * (mi * 5 + ni)
                c = "0" if i == 0 else vr(d, 4)
                a(f"{MM} {vr(d,4)}, {vr(reg[9*i+4+ni],4)}, {vr(reg[9*i+mi],4)}, {c}")
                if wq and (mi * 5 + ni) % wgap == wgap - 1:
                    a(wq.pop(0)); out.append("w")
        spare += refill(i)
    assert not wq
    XW = [XWs[j // 2] + 2 * (j % 2) for j in range(5)]
    AR = spare[:8]; XA = [spare[8 + k // 2] + 2 * (k % 2) for k in range(4)]
    spare = spare[10:]
    if stamp.TODEBUG is None and (tailmarks or not stamp.REAL): stamp.mark(a, 4)
    wait_for(lambda x: x == "g")
    a("s_nop 4")
    for mi in range(4):
        a(f"v_sub_f32 v{tmp}, 1.0, v{4+mi}\nv_mov_b32 v{tmp+1}, v{tmp}")
        for q in range(10):
            d = GA + 20 * mi + 2 * q
            a(f"v_pk_mul_f32 {vr(d,2)}, {vr(d,2)}, {vr(tmp,2)}")
    SS = STG + 64
    SELR = spare[:4]
    def selectors():
        a(f"""s_and_b32 s57, s3, 3
s_lshl_b32 s57, s57, 6
s_add_u32 s57, s57, s76
v_lshlrev_b32 v4, 3, v0
v_add_u32 v4, s57, v4
v_bfe_u32 v5, v0, 2, 2
v_mul_u32_u24 v5, {SS}, v5
v_lshrrev_b32 v6, 4, v0
v_lshl_add_u32 v5, v6, 5, v5
v_and_b32 v7, 3, v0
v_lshl_add_u32 v5, v7, 3, v5
s_lshl_b32 s57, s3, 9
v_add_u32 v5, s57, v5
v_and_b32 v7, 15, v0
v_sub_u32 v6, v7, v6
v_mov_b32 v1, 0x3f803f80""")
        for p in range(4):
            a(f"v_cmp_eq_u32 vcc, {4*p}, v6\ns_nop 1\nv_cndmask_b32 v{SELR[p]}, 0, v1, vcc")
            for q in range(1, 4):
                a(f"v_mov_b32 v{SELR[p]+q}, v{SELR[p]}")
    await_o(WR, AR, XW, XA, tmp)
    assert out[-12:] == ["o"] * 12
    if not osplit:
        selectors()
    def flush(g):
        d = GA + 4 * g
        a(f"v_cvt_pk_bf16_f32 v{d}, v{d}, v{d+1}\nv_cvt_pk_bf16_f32 v{d+1}, v{d+2}, v{d+3}\nds_write_b64 v4, {vr(d,2)} offset:{512*g}")
    for mi in range(4):
        for k in range(3):
            a(f"s_waitcnt vmcnt({11 - 3*mi - k})" + (" lgkmcnt(0)" if mi + k == 0 else ""))
            if am == 3 * mi + k: tm(5)
            for ni in range(5):
                d = GA + 4 * (mi * 5 + ni)
                if k < 2:
                    a(f"{MM} {vr(d,4)}, {vr(WR[2*ni+k],4)}, {vr(AR[4*k+mi],4)}, {vr(d,4)}")
                else:
                    a(f"{MX} {vr(d,4)}, {vr(XW[ni],2)}, {vr(XA[mi],2)}, {vr(d,4)}")
                if mi and k == 1:
                    flush(5 * (mi - 1) + ni)
    tm(2)
    a("s_nop 3")
    for ni in range(5):
        flush(15 + ni)
    if am is None: tm(5)
    a(f"""v_lshrrev_b32 v1, 4, v0
v_lshl_add_u32 v1, v7, 2, v1
v_and_b32 v2, 15, v1
v_mul_u32_u24 v2, 1280, v2
v_lshrrev_b32 v1, 4, v1
v_lshl_add_u32 v7, v1, 3, v2
s_mul_i32 s48, s60, {64*1280}
s_mul_i32 s49, s61, 160
s_add_u32 s48, s48, s49""")
    for u in range(3):
        a(f"""s_add_u32 s49, s3, {8*u}
s_mul_i32 s50, s49, 205
s_lshr_b32 s50, s50, 10
s_mul_i32 s{52+u}, s50, {16*1280 - 5*32}
s_lshl_b32 s49, s49, 5
s_add_u32 s{52+u}, s{52+u}, s49
s_add_u32 s{52+u}, s{52+u}, s48""")
    a("s_waitcnt lgkmcnt(0)\ns_barrier")
    a.c("""sum of the 8 partial tiles: transpose reads line up the partials of one element, an MFMA against 0/1 selectors adds them""")
    a("Lfinal:")
    Lo = a.label("k2o")
    RB = spare[4]
    assert spare[4:16] == [RB + 4 * i for i in range(12)] or True
    RBs = spare[4:16]
    def rd(u):
        for p in range(4):
            for hf in range(2):
                a(f"ds_read_b64_tr_b16 {vr(RBs[4*u+p] + 2*hf, 2)}, v5 offset:{4096*u + 128*p + 4*STG*hf}")
    def mm(u, pend):
        for p in range(4):
            a(f"s_waitcnt lgkmcnt({min(15, pend + 6 - 2*p)})")
            c = "0" if p == 0 else vr(GA + 4 * u, 4)
            a(f"{MM} {vr(GA+4*u,4)}, {vr(RBs[4*u+p],4)}, {vr(SELR[p],4)}, {c}")
    def fin(u):
        r = GA + 4 * u
        a(f"v_cvt_pk_bf16_f32 v{r}, v{r}, v{r+1}")
        a(f"v_cvt_pk_bf16_f32 v{r+1}, v{r+2}, v{r+3}")
        a(f"buffer_store_dwordx2 {vr(r,2)}, v7, s[24:27], s{52+u} offen {st_out}")
    rd(0); rd(1)
    mm(0, 8)
    a(f"s_cmp_ge_u32 s3, 4\ns_cbranch_scc1 {Lo}")
    rd(2)
    mm(1, 8)
    a("s_nop 1")
    fin(0)
    mm(2, 0)
    fin(1)
    a("s_nop 4")
    fin(2)
    stamp.flush(a, 0 if fused else 1, 4 if not stamp.ENABLED else 7, 0, drain=False)
    a("s_endpgm")
    a(f"{Lo}:")
    mm(1, 0)
    fin(0)
    a("s_nop 4")
    fin(1)
    stamp.flush(a, 0 if fused else 1, 4 if not stamp.ENABLED else 7, 0, drain=False)
    a("s_endpgm")
    a.c("""fallback: pass 1 finds the true row max, pass 2 repeats the softmax with it subtracted (C operand of the score MFMA)""")
    NM = S[1]
    Lp1 = a.label("k2p1"); Lp2 = a.label("k2p2")
    a(f"""{Lfb}:
v_bfe_u32 v85, v1, 2, 2
v_xor_b32 v85, v85, v2
v_lshlrev_b32 v85, 4, v85
v_lshl_add_u32 v{VA}, v1, 6, v85
v_add_u32 v{VA}, 1280, v{VA}
v_xor_b32 v{VA2}, 32, v{VA}
v_and_b32 v{VB}, 7, v1
v_lshlrev_b32 v{VB}, 4, v{VB}
v_and_b32 v85, 8, v1
v_add_u32 v{VB}, v85, v{VB}
v_and_b32 v85, 16, v1
v_lshl_add_u32 v{VB}, v85, 3, v{VB}
v_lshl_add_u32 v{VK}, v2, 8, v{VB}
v_add_u32 v{VB}, 1024, v{VB}
s_add_u32 s46, s43, {KV}
s_mov_b32 s37, 0
v_mov_b32 v85, 0xff7fffff
{Lp1}:
buffer_load_dwordx2 {vr(K16,2)}, v{VK}, s[20:23], s46 offen {LD}
buffer_load_dwordx2 {vr(K16+2,2)}, v{VK}, s[20:23], s46 offen offset:512 {LD}
buffer_load_dwordx2 {vr(K8,2)}, v{VB}, s[20:23], s46 offen {LD}
s_waitcnt vmcnt(0)
{M16} {vr(S[0],16)}, {vr(K16,4)}, {vr(Q16,4)}, 0
{M8} {vr(S[0],16)}, {vr(K8,2)}, {vr(Q8,2)}, {vr(S[0],16)}
s_nop 7
s_nop 7""")
    for i in range(8):
        a(f"v_max3_f32 v85, v85, v{S[0]+2*i}, v{S[0]+2*i+1}")
    a(f"""s_add_u32 s46, s46, {TILE}
s_add_u32 s37, s37, 1
s_cmp_lt_u32 s37, 64
s_cbranch_scc1 {Lp1}
v_mov_b32 v86, v85
s_nop 1
v_permlane32_swap_b32 v85, v86
s_nop 1
v_max_f32 v85, v85, v86""")
    for i in range(16):
        a(f"v_sub_f32 v{NM+i}, 0, v85")
        a(f"v_mov_b32 v{O+i}, 0")
    a(f"""s_add_u32 s46, s43, {KV}
s_mov_b32 s37, 0
{Lp2}:
buffer_load_dwordx2 {vr(K16,2)}, v{VK}, s[20:23], s46 offen {LD}
buffer_load_dwordx2 {vr(K16+2,2)}, v{VK}, s[20:23], s46 offen offset:512 {LD}
buffer_load_dwordx2 {vr(K8,2)}, v{VB}, s[20:23], s46 offen {LD}
s_mov_b64 exec, s[30:31]
buffer_load_dwordx4 {vr(V0,4)}, v{VA}, s[20:23], s46 offen {LD}
buffer_load_dwordx4 {vr(V1,4)}, v{VA2}, s[20:23], s46 offen {LD}
s_mov_b64 exec, -1
s_waitcnt vmcnt(0)
{M16} {vr(S[0],16)}, {vr(K16,4)}, {vr(Q16,4)}, {vr(NM,16)}
{M8} {vr(S[0],16)}, {vr(K8,2)}, {vr(Q8,2)}, {vr(S[0],16)}
s_nop 7
s_nop 7""")
    for i in range(16):
        a(f"v_exp_f32 v{S[0]+i}, v{S[0]+i}")
    a("s_nop 0")
    for i in range(8):
        a(f"v_cvt_pk_bf16_f32 v{P+i}, v{S[0]+2*i}, v{S[0]+2*i+1}")
    a(f"""s_nop 1
{M16} {vr(O,16)}, {vr(V0,4)}, {vr(P,4)}, {vr(O,16)}
{M16} {vr(O,16)}, {vr(V1,4)}, {vr(P+4,4)}, {vr(O,16)}
s_add_u32 s46, s46, {TILE}
s_add_u32 s37, s37, 1
s_cmp_lt_u32 s37, 64
s_cbranch_scc1 {Lp2}
s_nop 7
s_nop 7
v_mov_b32 v{T}, v{O+8}
v_mov_b32 v{T+1}, v{O+8}
v_lshrrev_b32 v{T+4}, 4, v1
v_mul_u32_u24 v{T+4}, {FB}, v{T+4}
v_and_b32 v{T+5}, 15, v1
v_lshl_add_u32 v{T+6}, v{T+5}, 3, v{T+4}
v_lshl_add_u32 v{T+4}, v{T+5}, 4, v{T+4}
v_lshl_add_u32 v{T+7}, v2, 8, v{T+4}
v_permlane32_swap_b32 v{T}, v{T+1}
s_nop 1
s_branch {Lfin}
{Lend}:
s_endpgm
code_end:""")
    kernel_desc(a, name, 256, 102 if stamp.ENABLED else 96)
```

```python
import sys
from gen import build
F = dict(fused=True, aslist=True, real=True)
V = {
 "fur": dict(**F),
 "pl": dict(**F, k1=dict(st_qk="", st_v="")),
 "plall": dict(**F, k1=dict(st_qk="", st_v="", st_h="", st_w="")),
 "vp": dict(**F, k1=dict(vperm=True)),
 "ntq": dict(**F, k1=dict(st_qk="sc1 nt", st_v="sc1 nt", st_h="sc1 nt")),
 "noearly": dict(**F, k2=dict(early=False)),
 "wb8": dict(**F, k1=dict(st_h=""), k2=dict(wbl=8)),
 "wb4": dict(**F, k1=dict(st_h=""), k2=dict(wbl=4)),
 "late": dict(**F, k1=dict(defer=True)),
 "z1": dict(**F, k2=dict(ppoll=True, osplit=True)),
 "z2": dict(**F, k2=dict(pubo=1, puby=0)),
 "z3": dict(**F, k2=dict(pubo=2, puby=-1)),
 "z4": dict(**F, k2=dict(wgap=0)),
 "z5": dict(**F, k2=dict(wgap=3, osplit=True)),
 "u1": dict(**F, k1=dict(unr=1, pads={'compute': 0x1000 - 0x5d8, 'v': 0})),
 "nopad": dict(**F, k1=dict(pads={}), k2=dict(shift=None)),
 "it0": dict(**F, k1=dict(itlb=10), k2=dict(shift=0)),
 "it4": dict(**F, k1=dict(itlb=10), k2=dict(shift=1024-80)),
 **{f"sk{i}": dict(**F, k2=dict(shift=i*256)) for i in range(0, 17)},
 **{f"sh{i}": dict(**F, k2=dict(shift=i)) for i in range(0, 64, 4)},
 "nv4": dict(**F, k1=dict(nvar=4)),
 "nv5": dict(**F, k1=dict(nvar=5)),
 "nv6": dict(**F, k1=dict(nvar=6)),
 "nv72": dict(**F, k1=dict(nvar=7, vmul=3)),
 "nv52": dict(**F, k1=dict(nvar=5, vmul=2)),
 "nv1": dict(**F, k1=dict(nvar=1)),
 "nv2": dict(**F, k1=dict(nvar=2)),
 "lp0": dict(**F, k1=dict(lprio=0)),
 "rxcd": dict(**F, k1=dict(rot_enable="xcd")),
 "nmix": dict(**F, k1=dict(mix=False)),
 "l1": dict(**F, k2=dict(lay=1)), "l2": dict(**F, k2=dict(lay=2)), "l3": dict(**F, k2=dict(lay=3)), "l4": dict(**F, k2=dict(lay=4)),
 "c333": dict(**F, k2=dict(pubo=3, puby=3, wat=3, tailmarks=True)),
 "c442": dict(**F, k2=dict(pubo=4, puby=4, wat=2, tailmarks=True)),
 "c552": dict(**F, k2=dict(pubo=5, puby=5, wat=2, tailmarks=True)),
 "c522": dict(**F, k2=dict(pubo=5, puby=2, wat=2, tailmarks=True)),
 "c511": dict(**F, k2=dict(pubo=5, puby=1, wat=2, tailmarks=True)),
 "np": dict(**F, k2=dict(ppoll=False, tailmarks=True)),
 "ns": dict(**F, k2=dict(osplit=False, tailmarks=True)),
 "nn": dict(**F, k2=dict(osplit=False, ppoll=False, tailmarks=True)),
 "am0": dict(**F, k2=dict(am=0, tailmarks=True)),
 "am5": dict(**F, k2=dict(am=5, tailmarks=True)),
 "am11": dict(**F, k2=dict(am=11, tailmarks=True)),
 "nw": dict(**F, k2=dict(warm=0, tailmarks=True)),
 "w57": dict(**F, k2=dict(warm=57, tailmarks=True)),
 "w60g0": dict(**F, k2=dict(warm=60, wgap=0, tailmarks=True)),
 "w30": dict(**F, k2=dict(warm=30, tailmarks=True)),
 "g0": dict(**F, k2=dict(wgap=0, tailmarks=True)),
 "g1": dict(**F, k2=dict(wgap=1, tailmarks=True)),
 "g3": dict(**F, k2=dict(wgap=3, tailmarks=True)),
 "g4": dict(**F, k2=dict(wgap=4, tailmarks=True)),
 "w2a": dict(**F, k2=dict(pubo=2, puby=-1, tailmarks=True)),
 "w2b": dict(**F, k2=dict(pubo=2, puby=1, tailmarks=True)),
 "w2c": dict(**F, k2=dict(pubo=1, puby=0, tailmarks=True)),
 "w3": dict(**F, k2=dict(pubo=3, puby=0, wat=3, tailmarks=True)),
 "n32": dict(**F, k2=dict(npre=32)),
 "n22": dict(**F, k2=dict(npre=22, pstep=2)),
 "n27": dict(**F, k2=dict(npre=27)),
 "n36": dict(**F, k2=dict(npre=36)),
 "hp1": dict(**F, k1=dict(help=1)),
 "hp2": dict(**F, k1=dict(help=2)),
 "hp2x": dict(**F, k1=dict(help=2, helpx=True)),
 "hp1x": dict(**F, k1=dict(help=1, helpx=True)),
 "gd5": dict(**F, k1=dict(gudelay=50)),
 "gd10": dict(**F, k1=dict(gudelay=100)),
 "gd15": dict(**F, k1=dict(gudelay=150)),
 "y11": dict(**F, k2=dict(pubo=1, puby=1, yprio=True, tailmarks=True)),
 "y21": dict(**F, k2=dict(pubo=2, puby=1, yprio=True, tailmarks=True)),
 "y10": dict(**F, k2=dict(pubo=1, puby=0, yprio=True, tailmarks=True)),
 "y20": dict(**F, k2=dict(pubo=2, puby=0, yprio=True, tailmarks=True)),
 "q22": dict(**F, k2=dict(pubo=2, puby=2, tailmarks=True)),
 "q32": dict(**F, k2=dict(pubo=3, puby=2, tailmarks=True)),
 "q33": dict(**F, k2=dict(pubo=3, puby=3, tailmarks=True)),
 "q11": dict(**F, k2=dict(pubo=1, puby=1, tailmarks=True)),
 "q31": dict(**F, k2=dict(pubo=3, puby=1, tailmarks=True)),
 "m84": dict(**F, k2=dict(map84=True)),
 "pf16": dict(**F, k2=dict(pf0=16)),
 "pf21": dict(**F, k2=dict(pf0=21)),
 "norot": dict(**F, k1=dict(rot_enable=False)),
 "sp1": dict(**F, k1=dict(rot_enable=False, spf=1)),
 "sp2": dict(**F, k1=dict(rot_enable=False, spf=2)),
 "sp3": dict(**F, k1=dict(rot_enable=False, spf=3)),
 "sp21": dict(**F, k1=dict(rot_enable=False, spf=2, spf0=1)),
 "h12": dict(fused=True, aslist=True, hold=0, k2=dict(hold1=1200)),
 "h14": dict(fused=True, aslist=True, hold=0, k2=dict(hold1=1400)),
 "h15": dict(fused=True, aslist=True, hold=0, k2=dict(hold1=1500)),
 "h16": dict(fused=True, aslist=True, hold=0, k2=dict(hold1=1600)),
 "h18": dict(fused=True, aslist=True, hold=0, k2=dict(hold1=1800)),
 "h22": dict(fused=True, aslist=True, hold=0, k2=dict(hold1=2200)),
 "post": dict(**F, k1=dict(defer="post"), k2=dict(defer="post", prios={0:3, 2:2, 3:1, 4:3, 11:2, 14:1, 16:3, 20:2, 22:1, 23:3, 36:2, 40:1, 42:3, 56:2, 61:1, 63:0})),
 "xhalf": dict(**F, k2=dict(exp=("half",))),
 "xkb": dict(**F, k2=dict(exp=("kb128",))),
 "noh": dict(**F, k1=dict(half0=False, unr=2)),
 "h9": dict(**F, k1=dict(unr=9)),
 "u2": dict(**F, k1=dict(unr=2)),
 "u5": dict(**F, k1=dict(unr=5)),
 "nomix": dict(**F, k1=dict(mix=False)),
 "nocp": dict(**F, k1=dict(codepf=False)),
 "pf22": dict(**F, k2=dict(pf0=22)),
 "xjob": dict(**F, k2=dict(exp=("nojob",))),
 "xwait": dict(**F, k2=dict(exp=("nowait",))),
 "xds": dict(**F, k2=dict(exp=("nods", "nowait"))),
 "xall": dict(**F, k2=dict(exp=("nods", "nowait", "nojob"))),
 "osc1": dict(**F, k2=dict(st_out="sc1")),
 "ont": dict(**F, k2=dict(st_out="nt")),
 "osc01": dict(**F, k2=dict(st_out="sc0 sc1")),
 "nolf": dict(**F, k1=dict(ldfirst=False)),
 "noex": dict(**F, k1=dict(earlyx=False)),
 "ft": dict(**F, k2=dict(tailmarks=True)),
 "b7": dict(**F, k2=dict(b1=7, prios={0:3, 5:2, 7:1, 8:3, 13:2, 15:1, 16:3, 34:2, 39:1, 41:0, 42:3, 56:2, 61:1, 63:0})),
 "slp0": dict(**F, k2=dict(slp=0)),
}
for n in sys.argv[1:]:
    build(f"d_{n}.s", stamp=True, **V[n])
    build(f"t_{n}.s", stamp=False, **V[n])
```

```python
from common import *
import stamp

SLOT = 53248
NSLOT = 3
K1_LDS = NSLOT * SLOT
NST = 10
XR = 8
WR = 48
ACC = 80
VXB, VXS, VX = 240, 241, 242
VWB, VW = 243, 247
VEP = 251
NV = 256
MM = "v_mfma_f32_16x16x32_bf16"

def acc(mi, nj):
    return ACC + (mi * 4 + nj) * 4

UNR = [1]
HALF0 = [True]
def hout(mi):
    return 240 if mi == 0 else ACC + 16 * mi

def xoffs(mi, perm):
    return 4096 * (mi >> 1) + 1024 * (mi & 1)

def xread(mi, perm):
    return f"ds_read_b128 {vr(XR+4*mi,4)}, v{VX} offset:{xoffs(mi, perm)}"

def wreads(buf, ks):
    r = []
    for nj in range(4):
        for hf in range(2):
            r.append(f"ds_read_b64_tr_b16 {vr(WR+16*buf+4*nj+2*hf,2)}, v{VW+nj} offset:{8192*ks + 1024*hf}")
    return r

def step(a, buf, swap, ks_next, pend, pre=None, mid=None):
    w = [(("w", i), r) for i, r in enumerate(wreads(1 - buf, ks_next))]
    x = [(("x", mi), xread(mi, swap)) for mi in range(10)]
    sched = {}
    if mid is None:
        for mi in range(10): sched[(mi, 3)] = x[mi]
        for i in range(8): sched[(i, 1)] = w[i]
    else:
        sched[(1, 3)] = x[0]; sched[(2, 1)] = x[1]
        for mi in range(2, 10): sched[(mi, 3)] = x[mi]
        for i in range(7): sched[(3 + i, 1)] = w[i]
        sched[(9, 0)] = w[6]; sched[(8, 1)] = w[5]; sched[(9, 1)] = w[7]
    pre = list(pre or [])
    old = list(pend); new = []
    def need(pred):
        idx = [i for i, t in enumerate(old) if pred(t)]
        if idx:
            n = len(old) - 1 - max(idx) + len(new)
            k = min(n, 15)
            a(f"s_waitcnt lgkmcnt({k})")
            keep = max(0, k - len(new))
            del old[:len(old) - min(keep, len(old))]
    for mi in range(10):
        for nj in range(4):
            if mi == 0:
                need(lambda t: t == ("w", 2 * nj) or t == ("w", 2 * nj + 1) or t == ("x", 0))
            elif nj == 0 and ("x", mi) in old:
                need(lambda t: t[0] == "x" and t[1] <= min(mi + 3, 9))
            W = vr(WR + 16 * buf + 4 * nj, 4); X = vr(XR + 4 * mi, 4)
            A, B = (X, W) if swap else (W, X)
            c = vr(acc(mi, nj), 4)
            a(f"{MM} {c}, {A}, {B}, {c}")
            if mi == 1 and nj == 3 and mid is not None:
                assert not pre
                mid(); old = []
            if (mi, nj) in sched:
                t, r = sched[(mi, nj)]
                a(r); new.append(t)
            elif pre:
                a(pre.pop(0))
                if pre and mid is not None:
                    a(pre.pop(0))
    return new

def mainloop(a, swap):
    L = a.label("k1loop"); Lnb = a.label("k1nb")
    a(f"""s_mov_b32 s36, 0
s_mov_b32 s37, 0
v_mov_b32 v{VXS}, v{VXB}
v_mov_b32 v{VX}, v{VXB}""")
    for nj in range(4):
        a(f"v_mov_b32 v{VW+nj}, v{VWB+nj}")
    stamp.mark(a, 1)
    a("s_barrier")
    stamp.mark(a, 4 if stamp.TODEBUG is not None else 2)
    pre = [f"s_add_u32 s36, s36, {SLOT}", f"s_cmp_eq_u32 s36, {SLOT*NSLOT}", "s_cselect_b32 s36, 0, s36", "s_add_u32 s37, s37, 1",
           f"v_add_u32 v{VXS}, s36, v{VXB}", f"v_add_u32 v{VX}, s36, v{VXB}"] + [f"v_add_u32 v{VW+nj}, s36, v{VWB+nj}" for nj in range(4)] + [f"s_cmp_eq_u32 s37, {NST}"]
    def mid():
        a(f"""s_waitcnt lgkmcnt(0)
s_cbranch_scc1 {Lnb}
s_barrier
{Lnb}:""")
    scratch = Asm()
    entry = step(scratch, 1, swap, 0, [], pre, lambda: None)
    rd = {("x", mi): xread(mi, swap) for mi in range(10)}
    rd.update({("w", i): r for i, r in enumerate(wreads(0, 0))})
    for t in entry:
        a(rd[t])
    if HALF0[0]:
        bar = lambda: a("s_waitcnt lgkmcnt(0)\ns_barrier")
        p = step(a, 0, swap, 1, entry, [f"v_xor_b32 v{VX}, 64, v{VXS}"], bar)
        p = step(a, 1, swap, 0, p, pre, bar)
        assert p == entry and (NST - 1) % UNR[0] == 0
    a(".p2align 5")
    a(f"{L}:")
    for u in range(UNR[0]):
        if u < UNR[0] - 1:
            m = lambda: a("s_waitcnt lgkmcnt(0)\ns_barrier")
        else:
            m = mid
        p = step(a, 0, swap, 1, entry, [f"v_xor_b32 v{VX}, 64, v{VXS}"])
        p = step(a, 1, swap, 0, p, pre, m)
        assert p == entry, p
    a(f"""s_cmp_lg_u32 s37, {NST}
s_cbranch_scc1 {L}
s_waitcnt lgkmcnt(0)
s_nop 7""")
    stamp.mark(a, 5 if stamp.TODEBUG is not None else 4 if stamp.REAL else 3)

def gen_k1(a, name, rot_enable="xcdw", nvar=3, nt_x="", nt_w="", st_h="sc1", st_qk="sc1", st_v="sc1", st_w="sc1", wb=False, codepf=True, fast=True, delay=None, mix=True, pfd=0, fused=False, defer=False, unr=3, vperm=False, clus=False, ldfirst=True, earlyx=True, half0=True, spf=0, spf0=2, gudelay=0, help=0, helpx=False, lprio=3, vmul=1, itlb=0, pads={'spec': 0, 'compute': 0x224, 'v': 0x800}):
    def gap(key):
        if key in pads:
            a.c("(unreachable filler: the code before ends in a branch; keeps 4 KB page boundaries out of the serial stretches that follow)")
            a(".p2align 12")
            if pads[key]:
                a(f".fill {pads[key]//4}, 4, 0xbf800000")
    HALF0[0] = half0
    UNR[0] = unr
    def done():
        if fused:
            a(f"s_branch {name}_join")
        else:
            stamp.flush(a, 0, 4, 0)
            a("s_endpgm")
    kernel_head(a, name)
    Lend = f"{name}_end"
    a(f"s_cmp_ge_u32 s2, 256\ns_cbranch_scc1 {Lend}")
    stamp.init(a)
    if delay:
        mask, ticks = delay
        a(f"""s_and_b32 s40, s2, 7
s_lshr_b32 s41, {mask}, s40
s_bitcmp1_b32 s41, 0
s_cbranch_scc0 {name}_nodelay
s_memrealtime s[42:43]
s_waitcnt lgkmcnt(0)
s_add_u32 s44, s42, {ticks}
{name}_dl:
s_memrealtime s[42:43]
s_waitcnt lgkmcnt(0)
s_cmp_lt_u32 s42, s44
s_cbranch_scc1 {name}_dl
{name}_nodelay:""")
    a.c("""==== phase 1: projections.  Tile of this workgroup: s18 = 160-row block, s19 = column slab (0-11 gate/up, 12-16 Q|K, 17-19 V)""")
    a(f"""s_load_dwordx4 s[4:7], s[0:1], 0
s_load_dwordx2 s[8:9], s[0:1], 16
s_load_dwordx4 s[12:15], s[0:1], 32
s_load_dwordx2 s[10:11], s[0:1], 48
s_load_dwordx2 s[16:17], s[0:1], 80
s_load_dwordx2 s[78:79], s[0:1], 56
v_lshrrev_b32 v1, 6, v0
v_and_b32 v0, 63, v0
v_readfirstlane_b32 s3, v1
s_and_b32 s40, s2, 7
s_mov_b32 s55, s3
s_lshl_b32 s40, s40, 5
s_lshr_b32 s41, s2, 3
s_add_u32 s38, s40, s41
s_cmp_eq_u32 s38, 255
s_cbranch_scc1 {name}_idle
s_mul_i32 s42, s38, 1009
s_lshr_b32 s42, s42, 16
s_mul_i32 s43, s42, 65
s_sub_u32 s43, s38, s43
s_mul_i32 s18, s43, 205
s_lshr_b32 s18, s18, 10
s_mul_i32 s39, s18, 5
s_sub_u32 s39, s43, s39
s_cmp_lt_u32 s38, 235
s_cbranch_scc1 {name}_dec
s_sub_u32 s43, s38, 235
s_lshr_b32 s18, s43, 2
s_add_u32 s18, s18, 8
s_and_b32 s39, s43, 3
{name}_dec:
s_mul_i32 s19, s42, 3
s_lshl_b32 s43, s42, 1
s_add_u32 s43, s43, 9
s_cmp_lt_u32 s39, 3
s_cselect_b32 s19, s19, s43
s_add_u32 s19, s19, s39
s_cmp_ge_u32 s3, 4
{"s_cbranch_scc0 " + name + "_compute" if ldfirst else "s_cbranch_scc1 " + name + "_loader"}""")
    mark_c = len(a.lines)
    gap("compute")
    a(f"{name}_compute:")
    a.c("""---- MFMA waves 0-3 ----""")
    if codepf:
        a.c("""wave 0: read 16 lines of this kernel's own code so that they are in L2 when they are fetched""")
        a(f"""s_cmp_lg_u32 s3, 0
s_cbranch_scc1 {name}_nocp
s_getpc_b64 s[56:57]
{name}_pc:
s_sub_u32 s56, s56, {name}_pc-{name}
s_subb_u32 s57, s57, 0
{chr(10).join(f"s_load_dword s60, s[56:57], {4096*k}" for k in range(1, itlb + 1))}
s_lshl_b32 s58, s41, 11
v_lshlrev_b32 v1, 7, v0
v_add_u32 v1, s58, v1
s_mov_b32 s59, code_end-{name}
v_cmp_gt_u32 vcc, s59, v1
s_and_b64 exec, vcc, 0xffff
s_cbranch_execz {name}_cpx
global_load_dword v255, v1, s[56:57]
{name}_cpx:
s_mov_b64 exec, -1
{name}_nocp:""")
    if fused:
        a.c("""workgroup 0, wave 1: publish a per-launch tag (d_debug[0]); hand-off flags in d_ws carry it, so older contents never match""")
        a(f"""s_lshl_b32 s56, s2, 3
s_add_u32 s56, s56, s3
s_cmp_lg_u32 s56, 1
s_cbranch_scc1 {name}_notag
s_load_dwordx2 s[56:57], s[0:1], 72
s_memrealtime s[58:59]
v_mov_b32 v1, 0
s_waitcnt lgkmcnt(0)
s_or_b32 s58, s58, 1
v_mov_b32 v2, s58
s_mov_b64 exec, 1
global_store_dword v1, v2, s[56:57] sc1
s_mov_b64 exec, -1
{name}_notag:""")
    a(f"""v_and_b32 v1, 15, v0
v_lshrrev_b32 v2, 4, v0
v_bfe_u32 v3, v0, 2, 2
v_lshl_add_u32 v6, v2, 3, v3
v_lshlrev_b32 v6, 8, v6
v_and_b32 v4, 3, v0
v_lshl_add_u32 v6, v4, 3, v6
v_and_b32 v5, 1, v2
v_lshl_add_u32 v5, v5, 2, v3
v_lshrrev_b32 v3, 1, v1
v_xor_b32 v3, v3, v2
v_lshlrev_b32 v3, 4, v3
v_and_b32 v4, 8, v1
v_lshl_add_u32 v3, v1, 7, v3
v_lshl_add_u32 v{VXB}, v4, 7, v3
s_mul_i32 s46, s18, 5
s_mov_b32 s47, 5
s_cmp_eq_u32 s18, 12
s_cmov_b32 s47, 4
s_cmp_eq_u32 s19, 19
s_cbranch_scc1 {name}_spec
s_lshl_b32 s45, s3, 1
v_xor_b32 v5, s45, v5
v_lshl_add_u32 v6, v5, 5, v6
v_add_u32 v{VWB}, 20480, v6
v_xor_b32 v{VWB+1}, 32, v{VWB}
v_add_u32 v{VWB+2}, 16384, v{VWB}
v_add_u32 v{VWB+3}, 16384, v{VWB+1}
s_sub_u32 s48, s19, 17
s_lshl_b32 s48, s48, 8
s_lshl_b32 s49, s3, 5
s_add_u32 s48, s48, s49
s_movk_i32 s49, 128
s_branch {name}_cont
{name}_spec:
s_and_b32 s45, s3, 1
s_lshl_b32 s48, s45, 6
s_add_u32 s48, s48, 512
s_lshl_b32 s45, s45, 2
v_xor_b32 v5, s45, v5
v_lshl_add_u32 v6, v5, 5, v6
v_add_u32 v{VWB}, 32768, v6
v_xor_b32 v{VWB+1}, 32, v{VWB}
v_xor_b32 v{VWB+2}, 64, v{VWB}
v_xor_b32 v{VWB+3}, 96, v{VWB}
s_lshr_b32 s45, s3, 1
s_lshl_b32 s46, s18, 3
s_lshl_b32 s49, s45, 2
s_add_u32 s46, s46, s49
s_lshl_b32 s45, s45, 14
v_add_u32 v{VXB}, s45, v{VXB}
s_mov_b32 s47, 4
s_mov_b32 s49, 32
{name}_cont:""")
    for i in range(4):
        a(f"v_mov_b32 v{VEP+i}, 0")
    for i in range(160):
        a(f"v_mov_b32 v{ACC+i}, 0")
    a("s_waitcnt lgkmcnt(0)")
    srd(a, 20, 16, WS_END)
    a(f"""s_cmp_ge_u32 s19, 17
s_cbranch_scc1 {name}_v
s_cmp_lt_u32 s19, 12
s_cbranch_scc1 {name}_loop""")
    a.c("""Q/K: destination offsets (planes of 4 dims per head and 32-row tile)""")
    a(f"{name}_qk:")
    c = 1.4426950408889634 * (20.0 ** -0.5)
    a(f"""s_sub_u32 s48, s19, 12
s_lshl_b32 s48, s48, 6
s_lshl_b32 s49, s3, 3
s_add_u32 s48, s48, s49
s_add_u32 s49, s48, 32""")
    for sd in range(2):
        a(f"""s_cmp_lt_u32 s{48+sd}, 160
s_cselect_b32 s{52+sd}, {hex(f2u(c))}, 1.0
s_cselect_b32 s{50+sd}, {QF}, {KV}
s_cselect_b32 s54, 0, 160
s_sub_u32 s{48+sd}, s{48+sd}, s54""")
    a(f"""v_lshlrev_b32 v11, 4, v1
s_mov_b32 s54, {HEADB}""")
    for sd in range(2):
        for j in range(2):
            if True:
                e = VEP + sd * 2 + j
                a(f"""v_add_u32 v8, s{48+sd}, v2
v_add_u32 v8, {4*j}, v8
v_mul_u32_u24 v9, 205, v8
v_lshrrev_b32 v9, 10, v9
v_mul_u32_u24 v12, 5, v9
v_sub_u32 v8, v8, v12
v_lshrrev_b32 v12, 1, v8
v_and_b32 v13, 1, v8
v_lshl_add_u32 v13, v13, 1, v12
v_cmp_eq_u32 vcc, 4, v8
v_mad_u32_u24 v9, v9, s54, v11
v_add_u32 v9, s{50+sd}, v9
v_cndmask_b32 v12, v13, v8, vcc
v_lshlrev_b32 v12, 8, v12
v_add_u32 v{e}, v9, v12""")
    a.c("""K loop: 10 stages of 64, LDS ring of 3; D = W^T x^T (lane = row of x)""")
    a(f"{name}_loop:")
    mainloop(a, False)
    a(f"s_cmp_lt_u32 s19, 12\ns_cbranch_scc1 {name}_gu_epi")
    a(f"""v_mov_b32 v8, s52
v_mov_b32 v9, s52
v_mov_b32 v10, s53
v_mov_b32 v11, s53
s_mul_i32 s49, s46, {TILE}""")
    Ldq = f"{name}_qk_done"
    for p in range(5):
        if p == 4:
            a(f"s_cmp_eq_u32 s47, 4\ns_cbranch_scc1 {Ldq}")
        for nj in range(4):
            sc = 8 + 2 * (nj >> 1)
            r, r2 = acc(2 * p, nj), acc(2 * p + 1, nj)
            for x in (r, r + 2, r2, r2 + 2):
                a(f"v_pk_mul_f32 {vr(x,2)}, {vr(x,2)}, {vr(sc,2)}")
            a(f"""v_cvt_pk_bf16_f32 v{r}, v{r}, v{r+1}
v_cvt_pk_bf16_f32 v{r+1}, v{r+2}, v{r+3}
v_cvt_pk_bf16_f32 v{r+2}, v{r2}, v{r2+1}
v_cvt_pk_bf16_f32 v{r+3}, v{r2+2}, v{r2+3}
buffer_store_dwordx4 {vr(r,4)}, v{VEP+nj}, s[20:23], s49 offen {st_qk}""")
        if p < 4:
            a(f"s_add_u32 s49, s49, {TILE}")
    a(f"{Ldq}:")
    if wb:
        stamp.mark(a, 5)
        a(f"s_waitcnt vmcnt(0)\ns_cmp_lg_u32 s3, 0\ns_cbranch_scc1 {Ldq}x\nbuffer_wbl2 sc1\n{Ldq}x:")
    done()
    gap("gu")
    a.c("""gate/up epilogue: gelu_tanh(g) * u = g * u / (1 + exp2(g * (B + A g^2))), stored as operand fragments""")
    a(f"{name}_gu_epi:")
    CA, CB, ONE = 8, 10, 12
    A_ = -2.0 * 0.7978845608028654 * 1.4426950408889634 * 0.044715
    B_ = -2.0 * 0.7978845608028654 * 1.4426950408889634
    a(f"""v_mov_b32 v{CA}, {hex(f2u(A_))}
v_mov_b32 v{CA+1}, {hex(f2u(A_))}
v_mov_b32 v{CB}, {hex(f2u(B_))}
v_mov_b32 v{CB+1}, {hex(f2u(B_))}
v_mov_b32 v{ONE}, 1.0
v_mov_b32 v{ONE+1}, 1.0
v_lshrrev_b32 v14, 3, v1
v_mul_u32_u24 v14, {FB - 128}, v14
v_lshl_add_u32 v14, v1, 4, v14
v_lshl_add_u32 v14, v2, 8, v14
s_lshl_b32 s48, s19, {1 if mix else 2}
s_add_u32 s48, s48, s3
s_cmp_ge_u32 s3, 2
s_cselect_b32 s50, {22 if mix else 0}, 0
s_add_u32 s48, s48, s50
s_lshl_b32 s48, s48, 10
s_mul_i32 s49, s46, {2*FB}
s_add_u32 s49, s49, s48
s_add_u32 s49, s49, {AF + FH}""")
    Ldone = f"{name}_gu_done"
    T0 = 16
    cnt = 0
    for mi in range(10):
        if mi == 8:
            a(f"s_cmp_eq_u32 s47, 4\ns_cbranch_scc1 {Ldone}")
        b = acc(mi, 0)
        pairs = [(b + 0, b + 8), (b + 2, b + 10), (b + 4, b + 12), (b + 6, b + 14)]
        out = hout(mi) if defer else 32 + 4 * (mi % 2)
        for q, (g, u) in enumerate(pairs):
            a(f"v_pk_mul_f32 {vr(T0+2*q,2)}, {vr(g,2)}, {vr(g,2)}")
        for q, (g, u) in enumerate(pairs):
            a(f"v_pk_fma_f32 {vr(T0+2*q,2)}, {vr(T0+2*q,2)}, {vr(CA,2)}, {vr(CB,2)}")
        for q, (g, u) in enumerate(pairs):
            a(f"v_pk_mul_f32 {vr(T0+2*q,2)}, {vr(T0+2*q,2)}, {vr(g,2)}")
        for q in range(8):
            a(f"v_exp_f32 v{T0+q}, v{T0+q}")
        for q, (g, u) in enumerate(pairs):
            a(f"v_pk_mul_f32 {vr(24+2*q,2)}, {vr(g,2)}, {vr(u,2)}")
        for q, (g, u) in enumerate(pairs):
            a(f"v_pk_add_f32 {vr(T0+2*q,2)}, {vr(T0+2*q,2)}, {vr(ONE,2)}")
        for q in range(8):
            a(f"v_rcp_f32 v{T0+q}, v{T0+q}")
        a("s_nop 0")
        for q in range(4):
            a(f"v_pk_mul_f32 {vr(24+2*q,2)}, {vr(24+2*q,2)}, {vr(T0+2*q,2)}")
        for q in range(4):
            a(f"v_cvt_pk_bf16_f32 v{out+q}, v{24+2*q}, v{25+2*q}")
        if not defer:
            a(f"buffer_store_dwordx4 {vr(out,4)}, v14, s[20:23], s49 offen offset:{128*(mi&1)} {st_h}")
            if mi & 1 and mi < 9:
                a(f"s_add_u32 s49, s49, {2*FB}")
    a(f"{Ldone}:")
    if defer == "post":
        a(f"""v_mov_b32 v244, v14
s_mov_b32 s79, s49
s_add_u32 s78, s49, {8*FB}
s_cmp_eq_u32 s47, 4
s_cselect_b32 s78, 0x80000000, s78
s_branch {name}_join2""")
    elif defer:
        for mi in range(10):
            if mi == 8:
                a(f"s_cmp_eq_u32 s47, 4\ns_cbranch_scc1 {name}_join")
            a(f"buffer_store_dwordx4 {vr(hout(mi),4)}, v14, s[20:23], s49 offen offset:{128*(mi&1)} {st_h}")
            if mi & 1 and mi < 9:
                a(f"s_add_u32 s49, s49, {2*FB}")
        a(f"s_branch {name}_join")
    done()
    gap("v")
    a.c("""V: same loop with the operands swapped (lane = column), stored as the A operand of the P V product""")
    a(f"{name}_v:")
    a(f"s_mov_b32 s54, {HEADB}")
    if vperm:
        a("v_lshrrev_b32 v13, 2, v0\nv_and_b32 v14, 3, v0")
    col, pc = ("v13", "v14") if vperm else ("v1", "v2")
    for nj in range(4):
        a(f"""v_add_u32 v8, s48, {col}
v_add_u32 v8, {16*(nj&1)}, v8""")
        if nj >= 2:
            a("v_add_u32 v8, s49, v8")
        a(f"""v_mul_u32_u24 v11, 205, v8
v_lshrrev_b32 v11, 12, v11
v_mul_u32_u24 v12, 20, v11
v_sub_u32 v10, v8, v12
v_bfe_u32 v12, v10, 2, 2
v_xor_b32 v12, v12, {pc}
v_lshlrev_b32 v12, 4, v12
v_lshl_add_u32 v12, v10, 6, v12
v_mad_u32_u24 v11, v11, s54, v12
v_add_u32 v{VEP+nj}, {KV + 1280}, v11""")
    mainloop(a, True)
    a(f"s_mul_i32 s49, s46, {TILE}")
    Ldv = f"{name}_v_done"
    if vperm:
        a(f"""s_mul_i32 s50, s3, 20480
s_add_u32 s50, s50, {SLOT + 20480}
v_lshrrev_b32 v8, 2, v1
v_add_u32 v8, v8, v2
v_and_b32 v8, 3, v8
v_lshlrev_b32 v8, 4, v8
v_lshl_add_u32 v8, v1, 6, v8
v_add_u32 v8, s50, v8
v_lshrrev_b32 v9, 4, v0
v_add_u32 v9, v9, v0
v_and_b32 v9, 3, v9
v_and_b32 v10, 60, v0
v_add_u32 v9, v9, v10
v_lshlrev_b32 v9, 4, v9
v_add_u32 v9, s50, v9""")
    def cvt(p, nj):
        r, r2 = acc(2 * p, nj), acc(2 * p + 1, nj)
        a(f"""v_cvt_pk_bf16_f32 v{r}, v{r}, v{r+1}
v_cvt_pk_bf16_f32 v{r+1}, v{r+2}, v{r+3}
v_cvt_pk_bf16_f32 v{r+2}, v{r2}, v{r2+1}
v_cvt_pk_bf16_f32 v{r+3}, v{r2+2}, v{r2+3}""")
    for p in range(5):
        if p == 4:
            a(f"s_cmp_eq_u32 s47, 4\ns_cbranch_scc1 {Ldv}")
        for nj in range(4):
            cvt(p, nj)
            r = acc(2 * p, nj)
            if vperm:
                a(f"ds_write_b128 v8, {vr(r,4)} offset:{1024*(4*p+nj)}")
            else:
                a(f"buffer_store_dwordx4 {vr(r,4)}, v{VEP+nj}, s[20:23], s49 offen {st_v}")
        if vperm:
            for nj in range(4):
                a(f"ds_read_b128 {vr(acc(2*p+1, nj),4)}, v9 offset:{1024*(4*p+nj)}")
            for nj in range(4):
                a(f"s_waitcnt lgkmcnt({3-nj})")
                a(f"buffer_store_dwordx4 {vr(acc(2*p+1, nj),4)}, v{VEP+nj}, s[20:23], s49 offen {st_v}")
        if p < 4:
            a(f"s_add_u32 s49, s49, {TILE}")
    a(f"{Ldv}:")
    if wb:
        stamp.mark(a, 5)
        a(f"s_waitcnt vmcnt(0)\ns_cmp_lg_u32 s3, 0\ns_cbranch_scc1 {Ldv}x\nbuffer_wbl2 sc1\n{Ldv}x:")
    done()
    mark_l = len(a.lines)
    a.c("""---- loader waves 4-7: LDS-DMA of x and weight slices, one barrier per stage ----""")
    a(f"{name}_loader:")
    if fast:
        a(f"s_setprio {lprio}")
    if gudelay:
        a(f"""s_cmp_ge_u32 s19, 12
s_cbranch_scc1 {name}_nogd
s_memrealtime s[42:43]
s_waitcnt lgkmcnt(0)
s_add_u32 s44, s42, {gudelay}
{name}_gd:
s_memrealtime s[42:43]
s_waitcnt lgkmcnt(0)
s_cmp_lt_u32 s42, s44
s_cbranch_scc1 {name}_gd
{name}_nogd:""")
    a(f"""s_sub_u32 s3, s3, 4
v_lshrrev_b32 v10, 3, v0
v_mul_u32_u24 v10, 1280, v10
v_and_b32 v11, 7, v0
v_lshrrev_b32 v12, 4, v0""")
    def wcols():
        a(f"""s_lshr_b32 s54, s3, 1
s_movk_i32 s56, 3072
s_lshl_b32 s57, s19, {7 if mix else 8}
s_cmp_ge_u32 s19, 12
s_cmovk_i32 s56, 3840
s_sub_u32 s58, s19, 12
s_lshl_b32 s58, s58, 9
s_lshl_b32 s60, s54, 8
s_add_u32 s58, s58, s60
s_cmp_ge_u32 s19, 12
s_cselect_b32 s57, s58, s57
s_cmp_eq_u32 s19, 19
s_cmovk_i32 s57, 3584
v_and_b32 v13, 15, v0
v_mul_u32_u24 v14, s56, v12
v_add_u32 v14, s57, v14
s_lshl_b32 s63, s56, 6""")
    if rot_enable == "xcd":
        a("s_and_b32 s59, s2, 7\ns_mul_i32 s59, s59, 5\ns_lshr_b32 s59, s59, 2")
    elif rot_enable == "xcdw":
        a(f"s_and_b32 s59, s2, 1\ns_mul_i32 s59, s59, {4 if clus else 5}")
    elif rot_enable == "xcdx":
        a("s_bfe_u32 s59, s2, 0x20001\ns_mul_i32 s59, s59, 5\ns_lshr_b32 s59, s59, 1")
    elif rot_enable:
        a(f"""s_lshl_b32 s59, s39, 1
s_mul_i32 s60, s18, 3
s_add_u32 s59, s59, s60
s_mul_i32 s60, s59, 205
s_lshr_b32 s60, s60, 11
s_mul_i32 s60, s60, 10
s_sub_u32 s59, s59, s60""")
    else:
        a("s_mov_b32 s59, 0")
    a(f"""s_mov_b32 s36, 0
s_cmp_eq_u32 s19, 19
s_cbranch_scc1 {name}_ldspec""")
    def srdw():
        a(f"""s_cmp_eq_u32 s54, 0
s_cselect_b32 s24, s12, s14
s_cselect_b32 s25, s13, s15
s_mov_b32 s26, {640*3072}
s_cmp_ge_u32 s19, 12
s_cselect_b32 s24, s6, s24
s_cselect_b32 s25, s7, s25
s_cmov_b32 s26, {640*3840}
s_and_b32 s25, s25, 0xffff
s_mov_b32 s27, 0x20000""")
    def srds():
        a("s_waitcnt lgkmcnt(0)")
        srd(a, 20, 4, 2048 * 1280)
        srdw()
    def xoff(dst, e, top):
        a(f"""v_add_u32 v15, {top}, v12
v_xor_b32 v15, v15, v11
v_lshl_add_u32 v15, v15, 4, v10
v_add_u32 v{dst}, {e*8*1280 - 1024*(e%4)}, v15""")
    def woffs(regular):
        a(f"""s_lshl_b32 s60, s56, 2
s_sub_u32 s60, s60, 1024""")
        if regular:
            a(f"""s_cmp_lt_u32 s19, 12
s_cselect_b32 s69, {1536 - 128 if mix else 0}, 0
s_cselect_b32 s68, 3, 0""")
        for hf in range(2):
            d = 6 + 2 * hf
            a(f"v_lshlrev_b32 v15, 1, v12\nv_xor_b32 v15, v15, v13")
            if hf:
                a("v_xor_b32 v15, 8, v15")
            if regular:
                a(f"""v_lshrrev_b32 v16, 1, v15
v_xor_b32 v16, v16, v15
v_and_b32 v16, 1, v16
v_mul_u32_u24 v16, s68, v16
v_xor_b32 v15, v15, v16""")
            a(f"v_lshl_add_u32 v{d}, v15, 4, v14")
            if regular:
                a(f"v_lshrrev_b32 v15, 3, v15\nv_mad_u32_u24 v{d}, v15, s69, v{d}")
            if hf:
                a(f"v_add_u32 v{d}, s60, v{d}\nv_add_u32 v{d}, s60, v{d}")
            a(f"v_add_u32 v{d+1}, s60, v{d}")
    def advance():
        a(f"""s_add_u32 s59, s59, 1
s_cmp_eq_u32 s59, {NST}
s_cselect_b32 s59, 0, s59
s_add_u32 s36, s36, {SLOT}
s_cmp_eq_u32 s36, {SLOT*NSLOT}
s_cselect_b32 s36, 0, s36""")
    def tail(nper):
        Ll = a.label("k1ld")
        return Ll
    a(f"""s_and_b32 s60, s3, 2
s_lshl_b32 s60, s60, 1""")
    xoff(1, 0, "s60")
    a(f"""s_mul_i32 s61, s18, 20
s_add_u32 s61, s61, s3
s_mul_i32 s61, s61, {8*1280}
s_lshl_b32 s65, s3, 10
s_lshl_b32 s62, s59, 7
s_add_u32 s62, s62, s61
s_mov_b32 m0, s65""")
    stamp.mark(a, 1)
    a("s_waitcnt lgkmcnt(0)")
    stamp.mark(a, 2)
    srd(a, 20, 4, 2048 * 1280)
    if earlyx:
        a(f"buffer_load_dwordx4 v1, s[20:23], s62 offen {nt_x} lds")
        for e in range(1, 5):
            a(f"s_add_u32 m0, m0, 4096\ns_add_u32 s62, s62, {32*1280}\nbuffer_load_dwordx4 v1, s[20:23], s62 offen {nt_x} lds")
    wcols()
    woffs(True)
    a(f"""s_and_b32 s60, s3, 1
s_lshl_b32 s67, s60, 4
s_mul_i32 s67, s67, s56
s_lshl_b32 s66, s54, 14
s_lshl_b32 s60, s60, 12
s_add_u32 s66, s66, s60
s_add_u32 s66, s66, 20480
s_lshl_b32 s68, s56, 5""")
    srdw()
    def mk_issue_reg(var):
        X = f"""s_add_u32 m0, s36, s65
s_nop 0
buffer_load_dwordx4 v1, s[20:23], s62 offen {nt_x} lds
buffer_load_dwordx4 v2, s[20:23], s62 offen offset:1024 {nt_x} lds
buffer_load_dwordx4 v3, s[20:23], s62 offen offset:2048 {nt_x} lds
buffer_load_dwordx4 v4, s[20:23], s62 offen offset:3072 {nt_x} lds
s_add_u32 m0, m0, 4096
s_nop 0
buffer_load_dwordx4 v5, s[20:23], s62 offen {nt_x} lds"""
        def W(so, lo):
            return f"""s_add_u32 m0, s36, {lo}
s_nop 0
buffer_load_dwordx4 v6, s[24:27], {so} offen {nt_w} lds
buffer_load_dwordx4 v7, s[24:27], {so} offen offset:1024 {nt_w} lds
buffer_load_dwordx4 v8, s[24:27], {so} offen offset:2048 {nt_w} lds
buffer_load_dwordx4 v9, s[24:27], {so} offen offset:3072 {nt_w} lds"""
        items = [("s65", 4096 * e, (f"s_add_u32 s74, s62, {32*1280*e}\n" if e else "") + f"buffer_load_dwordx4 v1, s[20:23], {'s74' if e else 's62'} offen {nt_x} lds") for e in range(5)]
        for so, lo in (("s64", "s66"), ("s69", "s73")):
            items += [(lo, 0, f"buffer_load_dwordx4 v{6+e}, s[24:27], {so} offen offset:{1024*e} {nt_w} lds") for e in range(4)]
        r = [0, 5, 9][var] if nvar <= 3 else round(13 * var / nvar)
        items = items[r:] + items[:r]
        lines = []; cur = None
        for b, add, ld in items:
            if (b, add) != cur:
                lines.append(f"s_add_u32 m0, s36, {b}")
                lines.append(f"s_add_u32 m0, m0, {add}" if add else "s_nop 0")
                cur = (b, add)
            lines.append(ld)
        lines = "\n".join(lines).split("\n")
        k = [i for i, l in enumerate(lines) if l.startswith("buffer_load")][3]
        def issue(part=None):
            if part == "w":
                a(f"""s_mul_i32 s64, s59, s63
s_add_u32 s64, s64, s67
s_add_u32 s69, s64, s68""")
                a(W("s64", "s66")); a(W("s69", "s73"))
                advance()
                return
            if part in (None, 0):
                a(f"""s_lshl_b32 s62, s59, 7
s_add_u32 s62, s62, s61
s_mul_i32 s64, s59, s63
s_add_u32 s64, s64, s67
s_add_u32 s69, s64, s68""")
                a("\n".join(lines[:k+1]))
            if part in (None, 1):
                a("\n".join(lines[k+1:]))
            if part == 0: return
            advance()
        return issue
    def clus_setup():
        a(f"""s_mul_i32 s70, s18, 37
s_lshr_b32 s70, s70, 8
s_mul_i32 s70, s70, 7
s_sub_u32 s70, s18, s70
v_lshrrev_b32 v17, 1, v0
v_mul_u32_u24 v17, 7, v17
v_add_u32 v17, s70, v17
v_cmp_gt_u32 vcc, 0x80, v17
v_mul_u32_u24 v17, s56, v17
v_add_u32 v17, s57, v17
s_movk_i32 s70, 128
s_movk_i32 s71, 256
s_cmp_lt_u32 s19, 12
s_cmovk_i32 s70, {1536 if mix else 128}
s_cmovk_i32 s71, 0
s_cselect_b32 s28, s12, s6
s_cselect_b32 s29, s13, s7
s_and_b32 s29, s29, 0xffff
s_mov_b32 s30, s26
s_mov_b32 s31, 0x20000
v_and_b32 v18, 1, v0
v_mad_u32_u24 v17, v18, s70, v17
v_subrev_u32 v20, s71, v17
v_mov_b32 v18, -1
v_cndmask_b32 v17, v18, v17, vcc
v_cndmask_b32 v20, v18, v20, vcc
v_and_b32 v18, 31, v0
v_mul_u32_u24 v18, 1280, v18
v_lshrrev_b32 v19, 5, v0
v_lshl_add_u32 v18, v19, 7, v18
s_lshl_b32 s70, s39, 5
s_mul_i32 s71, s18, 160
s_add_u32 s70, s70, s71
s_mul_i32 s70, s70, 1280""")
    def cluster(ahead):
        L = a.label("clus")
        a(f"""s_cmp_lg_u32 s3, 3
s_cbranch_scc1 {L}
s_add_u32 s71, s59, {ahead}
s_cmp_ge_u32 s71, {NST}
s_cselect_b32 s72, {NST}, 0
s_sub_u32 s71, s71, s72
s_lshl_b32 s72, s71, 7
s_add_u32 s72, s72, s70
s_mul_i32 s71, s71, s63
buffer_load_dword v19, v18, s[20:23], s72 offen
buffer_load_dword v19, v17, s[24:27], s71 offen
buffer_load_dword v19, v20, s[28:31], s71 offen
{L}:""")
    def spf_setup():
        a(f"""s_lshl_b32 s40, s38, 2
s_add_u32 s40, s40, s3
s_mul_i32 s41, s40, 2560
s_add_u32 s41, s41, {128*spf0}
s_add_u32 s44, s4, s41
s_addc_u32 s45, s5, 0
s_min_u32 s41, s40, 959
s_mul_i32 s42, s41, 4370
s_lshr_b32 s42, s42, 16
s_mul_i32 s43, s42, 15
s_sub_u32 s43, s41, s43
s_add_u32 s42, s42, {64*spf0}
s_mul_i32 s42, s42, 3840
s_lshl_b32 s43, s43, 8
s_add_u32 s42, s42, s43
s_add_u32 s46, s6, s42
s_addc_u32 s47, s7, 0
s_and_b32 s41, s40, 511
s_lshr_b32 s42, s41, 3
s_and_b32 s43, s41, 7
s_add_u32 s42, s42, {64*spf0}
s_mul_i32 s42, s42, 3072
s_mul_i32 s43, s43, 384
s_add_u32 s42, s42, s43
s_cmp_lt_u32 s40, 512
s_cselect_b32 s48, s12, s14
s_cselect_b32 s49, s13, s15
s_add_u32 s48, s48, s42
s_addc_u32 s49, s49, 0""")
    def spf_issue():
        a(f"""s_load_dword s50, s[44:45], 0
s_load_dword s50, s[44:45], 1280
s_load_dword s50, s[46:47], 0
s_load_dword s50, s[46:47], 128
s_load_dword s50, s[48:49], 0
s_load_dword s50, s[48:49], 128
s_load_dword s50, s[48:49], 256
s_add_u32 s44, s44, 128
s_addc_u32 s45, s45, 0
s_add_u32 s46, s46, {64*3840}
s_addc_u32 s47, s47, 0
s_add_u32 s48, s48, {64*3072}
s_addc_u32 s49, s49, 0""")
    def help_setup():
        a(f"""s_mul_i32 s70, s18, 37
s_lshr_b32 s70, s70, 8
s_mul_i32 s70, s70, 7
s_sub_u32 s70, s18, s70
s_mul_i32 s71, s39, 7
s_add_u32 s70, s70, s71
v_lshrrev_b32 v17, 3, v0
v_mul_u32_u24 v17, 21, v17
v_add_u32 v17, s70, v17
v_cmp_gt_u32 vcc, 64, v17
v_mul_u32_u24 v17, 3840, v17
v_and_b32 v18, 7, v0
v_lshl_add_u32 v17, v18, 7, v17
s_lshl_b32 s70, s42, 10
v_add_u32 v17, s70, v17
v_mov_b32 v18, -1
v_cndmask_b32 v17, v18, v17, vcc
s_mov_b32 s28, s6
s_and_b32 s29, s7, 0xffff
s_mov_b32 s30, {640*3840}
s_mov_b32 s31, 0x20000
s_lshl_b32 s72, s19, 2
s_add_u32 s72, s72, s3
s_and_b32 s70, s72, 3
s_cmp_lt_u32 s72, 48
s_cselect_b32 s72, s70, 0""")
        if helpx:
            a(f"""s_mul_i32 s70, s39, 54
v_add_u32 v20, s70, v0
v_cmp_gt_u32 vcc, 54, v0
v_mul_u32_u24 v20, 1280, v20
v_cndmask_b32 v20, v18, v20, vcc
s_mul_i32 s70, s18, {160*1280}""")
    def help_issue(ahead):
        L = a.label("help")
        a(f"""s_cmp_lt_u32 s72, {2 if helpx else 3}
s_cbranch_scc1 {L}
s_add_u32 s71, s59, {ahead}
s_cmp_ge_u32 s71, {NST}
s_cselect_b32 s74, {NST}, 0
s_sub_u32 s71, s71, s74""")
        if helpx:
            a(f"""s_cmp_eq_u32 s72, 3
s_cbranch_scc1 {L}w
s_lshl_b32 s71, s71, 7
s_add_u32 s71, s71, s70
buffer_load_dword v19, v20, s[20:23], s71 offen
s_branch {L}
{L}w:""")
        a(f"""s_mul_i32 s71, s71, {64*3840}
buffer_load_dword v19, v17, s[28:31], s71 offen
{L}:""")
    def ring(issue, nper):
        Ll = a.label("k1ld"); Ls = a.label("k1sk")
        if not (earlyx and nper == 13):
            issue()
        stamp.mark(a, 3)
        if spf:
            spf_setup()
            for i in range(2):
                spf_issue()
        hp = help and nper == 13
        if hp:
            help_setup()
            for i in range(help):
                help_issue(i)
        issue(0)
        stamp.mark(a, 5)
        if half0:
            a(f"s_waitcnt vmcnt({NFIRST + (4 if nper == 13 and earlyx else 0)})\ns_barrier")
        a(f"s_waitcnt vmcnt({NFIRST})")
        stamp.mark(a, 6)
        a("s_barrier")
        issue(1)
        if hp:
            help_issue(help - 1)
        if spf:
            for i in range(spf - 1):
                spf_issue()
        a(f"s_mov_b32 s37, 1\n{Ll}:")
        if spf:
            a(f"s_cmp_ge_u32 s37, {NST - spf0 - spf}\ns_cbranch_scc1 {Ls}")
            spf_issue()
            a(f"{Ls}:")
        issue()
        if hp:
            a(f"s_cmp_ge_u32 s37, {NST - 1 - help}\ns_cbranch_scc1 {Ls}h")
            help_issue(help - 1)
            a(f"{Ls}h:")
        a(f"""s_waitcnt vmcnt({nper})
s_barrier
s_add_u32 s37, s37, 1
s_cmp_lt_u32 s37, {NST-1}
s_cbranch_scc1 {Ll}
s_waitcnt lgkmcnt(0)
s_branch {name}_tjob""")
    NFIRST = 4
    a("s_add_u32 s73, s66, 8192")
    if earlyx:
        mk_issue_reg(0)("w")
    if nvar > 1:
        a(f"""s_mul_i32 s60, s39, {vmul}
s_add_u32 s60, s60, s18
s_mul_i32 s72, s60, {(256 + nvar - 1)//nvar}
s_lshr_b32 s72, s72, 8
s_mul_i32 s72, s72, {nvar}
s_sub_u32 s60, s60, s72""")
        for v in range(1, nvar):
            a(f"s_cmp_eq_u32 s60, {v}\ns_cbranch_scc1 {name}_var{v}")
    ring(mk_issue_reg(0), 13)
    for v in range(1, nvar):
        a(f"{name}_var{v}:")
        ring(mk_issue_reg(v), 13)
    gap("spec")
    a(f"{name}_ldspec:")
    for e in range(4):
        xoff(1 + e, e, 4 * (e >> 1))
    wcols()
    woffs(False)
    a(f"""s_lshl_b32 s61, s18, 8
s_lshl_b32 s60, s3, 6
s_add_u32 s61, s61, s60
s_mul_i32 s61, s61, 1280
s_lshl_b32 s65, s3, 13
s_lshl_b32 s67, s3, 4
s_mul_i32 s67, s67, s56
s_lshl_b32 s66, s3, 12
s_add_u32 s66, s66, 32768""")
    srds()
    def issue_spec(part=None):
        if part in (None, 0):
            a(f"""s_lshl_b32 s62, s59, 7
s_add_u32 s62, s62, s61
s_mul_i32 s64, s59, s63
s_add_u32 m0, s36, s65
s_add_u32 s64, s64, s67
buffer_load_dwordx4 v1, s[20:23], s62 offen {nt_x} lds
buffer_load_dwordx4 v2, s[20:23], s62 offen offset:1024 {nt_x} lds
buffer_load_dwordx4 v3, s[20:23], s62 offen offset:2048 {nt_x} lds
buffer_load_dwordx4 v4, s[20:23], s62 offen offset:3072 {nt_x} lds""")
        if part in (None, 1):
            a(f"""s_add_u32 m0, m0, 4096
s_add_u32 s69, s62, {32*1280}
buffer_load_dwordx4 v1, s[20:23], s69 offen {nt_x} lds
buffer_load_dwordx4 v2, s[20:23], s69 offen offset:1024 {nt_x} lds
buffer_load_dwordx4 v3, s[20:23], s69 offen offset:2048 {nt_x} lds
buffer_load_dwordx4 v4, s[20:23], s69 offen offset:3072 {nt_x} lds
s_add_u32 m0, s36, s66
s_nop 0
buffer_load_dwordx4 v6, s[24:27], s64 offen {nt_w} lds
buffer_load_dwordx4 v7, s[24:27], s64 offen offset:1024 {nt_w} lds
buffer_load_dwordx4 v8, s[24:27], s64 offen offset:2048 {nt_w} lds
buffer_load_dwordx4 v9, s[24:27], s64 offen offset:3072 {nt_w} lds""")
        if part == 0: return
        advance()
    ring(issue_spec, 12)
    a.c("""re-layout of w_o / w_down into MFMA fragments (LDS transpose reads)""")
    a(f"""{name}_tjob:
s_mul_i32 s70, s3, 255
s_add_u32 s70, s70, s38
s_cmp_lt_u32 s70, 544
s_cselect_b32 s71, s70, 0
s_lshr_b32 s72, s71, 2
s_and_b32 s73, s71, 3
s_mul_i32 s76, s72, 20
s_sub_u32 s74, s72, 32
s_mul_i32 s74, s74, 80
s_add_u32 s74, s74, 16
s_cmp_ge_u32 s72, 32
s_cselect_b32 s76, s74, s76
s_cselect_b32 s77, 16, 0
s_sub_u32 s74, s72, 40
s_lshl_b32 s74, s74, 4
s_cmp_lt_u32 s72, 40
s_cselect_b32 s28, s8, s10
s_cselect_b32 s29, s9, s11
s_mov_b32 s30, {1536*1280}
s_cmov_b32 s30, {640*1280}
s_cselect_b32 s74, s76, s74
s_cselect_b32 s77, s77, 0
s_and_b32 s29, s29, 0xffff
s_mov_b32 s31, 0x20000
s_mul_i32 s74, s74, 1280
s_mul_i32 s75, s73, 320
s_add_u32 s74, s74, s75
s_mul_i32 s75, s3, 5120
s_add_u32 s75, s75, {SLOT}""")
    for i in range(5):
        a(f"""v_add_u32 v8, {64*i}, v0
v_mul_u32_u24 v9, 205, v8
v_lshrrev_b32 v9, 12, v9
v_mul_u32_u24 v10, 20, v9
v_sub_u32 v8, v8, v10
v_lshrrev_b32 v10, 2, v9
v_mad_u32_u24 v9, v10, s77, v9
v_mul_u32_u24 v9, 1280, v9
v_lshl_add_u32 v11, v8, 4, v9
s_add_u32 m0, s75, {1024*i}
s_nop 0
buffer_load_dwordx4 v11, s[28:31], s74 offen lds""")
    srd(a, 32, 16, WS_END)
    a(f"""s_waitcnt vmcnt(5)
s_barrier""")
    a(f"""s_cmp_ge_u32 s70, 544
s_cbranch_scc1 {name}_gate""")
    a(f"""v_lshrrev_b32 v1, 5, v0
v_bfe_u32 v2, v0, 2, 2
v_lshl_add_u32 v1, v1, 2, v2
v_mul_u32_u24 v1, 320, v1
v_bfe_u32 v2, v0, 4, 1
v_lshl_add_u32 v1, v2, 5, v1
v_and_b32 v2, 3, v0
v_lshl_add_u32 v1, v2, 3, v1
v_add_u32 v1, s75, v1
v_bfe_u32 v2, v0, 4, 1
v_mul_u32_u24 v2, {FB}, v2
v_and_b32 v3, 15, v0
v_lshrrev_b32 v4, 5, v0
v_lshl_add_u32 v3, v4, 4, v3
v_lshl_add_u32 v4, v3, 3, v2
v_lshl_add_u32 v2, v3, 4, v2
s_mul_i32 s76, s73, {10*FB}
s_add_u32 s76, s76, {WF}
s_lshl_b32 s74, s72, 9
s_add_u32 s76, s76, s74
s_waitcnt vmcnt(0)""")
    for j in range(5):
        a(f"ds_read_b64_tr_b16 {vr(16+4*j,2)}, v1 offset:{64*j}")
        a(f"ds_read_b64_tr_b16 {vr(18+4*j,2)}, v1 offset:{64*j+8*320}")
    a(f"s_cmp_eq_u32 s77, 16\ns_cbranch_scc1 {name}_tx")
    for j in range(5):
        a(f"s_waitcnt lgkmcnt({8-2*j})")
        a(f"buffer_store_dwordx4 {vr(16+4*j,4)}, v2, s[32:35], s76 offen {st_w}")
        if j < 4:
            a(f"s_add_u32 s76, s76, {2*FB}")
    a(f"s_branch {name}_gate\n{name}_tx:")
    for j in range(5):
        a(f"s_waitcnt lgkmcnt({8-2*j})")
        a(f"buffer_store_dwordx2 {vr(16+4*j,2)}, v4, s[32:35], s76 offen {st_w}")
        a(f"buffer_store_dwordx2 {vr(18+4*j,2)}, v4, s[32:35], s76 offen offset:256 {st_w}")
        if j < 4:
            a(f"s_add_u32 s76, s76, {2*FB}")
    a(f"s_branch {name}_gate")
    a(f"""{name}_idle:
s_mov_b32 s19, 0
s_waitcnt lgkmcnt(0)
s_cmp_lt_u32 s3, 4
s_cbranch_scc1 {name + "_join" if fused else Lend}
s_sub_u32 s3, s3, 4
s_waitcnt lgkmcnt(0)""")
    srd(a, 20, 4, 2048 * 1280)
    srd(a, 32, 16, WS_END)
    a.c("""gate: g = sigmoid(x_row . gate_w) for two rows per loader wave""")
    a(f"{name}_gate:")
    srd(a, 24, 78, 1280)
    a(f"""v_mul_u32_u24 v1, 20, v0
s_lshl_b32 s47, s2, 3
s_lshl_b32 s48, s3, 1
s_add_u32 s47, s47, s48
s_mul_i32 s48, s47, 1280
buffer_load_dwordx4 v[40:43], v1, s[24:27], 0 offen
buffer_load_dword v44, v1, s[24:27], 0 offen offset:16
buffer_load_dwordx4 v[48:51], v1, s[20:23], s48 offen
buffer_load_dword v52, v1, s[20:23], s48 offen offset:16
buffer_load_dwordx4 v[56:59], v1, s[20:23], s48 offen offset:1280
buffer_load_dword v60, v1, s[20:23], s48 offen offset:1296
v_mov_b32 v2, 0
v_mov_b32 v3, 0
v_lshlrev_b32 v4, 2, v0
s_cmp_lg_u32 s3, {99 if fused else 3}
s_cbranch_scc1 {name}_nofl
s_cmp_ge_u32 s2, 8
s_cbranch_scc1 {name}_nofl
s_lshl_b32 s49, s2, 12
s_add_u32 s49, s49, {FLG}
s_mov_b32 exec_hi, 0
buffer_store_dword v2, v4, s[32:35], s49 offen sc1
s_mov_b32 exec_hi, -1
{name}_nofl:
s_waitcnt vmcnt(0)""")
    for i in range(5):
        a(f"v_dot2_f32_bf16 v2, v{48+i}, v{40+i}, v2")
        a(f"v_dot2_f32_bf16 v3, v{56+i}, v{40+i}, v3")
    a("s_nop 3")
    for d in ("row_shr:1 row_mask:0xf bank_mask:0xf bound_ctrl:0", "row_shr:2 row_mask:0xf bank_mask:0xf bound_ctrl:0",
              "row_shr:4 row_mask:0xf bank_mask:0xf bound_ctrl:0", "row_shr:8 row_mask:0xf bank_mask:0xf bound_ctrl:0",
              "row_bcast:15 row_mask:0xa bank_mask:0xf", "row_bcast:31 row_mask:0xc bank_mask:0xf"):
        a(f"v_add_f32_dpp v2, v2, v2 {d}\nv_add_f32_dpp v3, v3, v3 {d}\ns_nop 0")
    a(f"""v_mul_f32 v2, {hex(f2u(-1.4426950408889634))}, v2
v_mul_f32 v3, {hex(f2u(-1.4426950408889634))}, v3
v_exp_f32 v2, v2
v_exp_f32 v3, v3
s_nop 0
v_add_f32 v2, 1.0, v2
v_add_f32 v3, 1.0, v3
v_rcp_f32 v2, v2
v_rcp_f32 v3, v3
s_lshl_b32 s49, s47, 2
s_add_u32 s49, s49, {GV}
v_mov_b32 v4, 0
s_mov_b32 exec_lo, 0
s_mov_b32 exec_hi, 0x80000000
buffer_store_dwordx2 v[2:3], v4, s[32:35], s49 offen sc1""")
    if fused:
        if ldfirst:
            a(f"s_branch {name}_join")
            a.lines[mark_c:] = a.lines[mark_l:] + a.lines[mark_c:mark_l]
        return
    stamp.flush(a, 0, 4, 0)
    a(f"{Lend}:\ns_endpgm")
    kernel_desc(a, name, NV, 102 if stamp.ENABLED else 96)
```

```python
import mbgen
from mbgen import build
def kernel(name, body, iters=200, nv=128, init=""):
    s = mbgen_kernel(name, body, iters, nv, init)
    s = s.replace("    s_memtime s[8:9]\n", "    s_memtime s[8:9]\n    s_memrealtime s[14:15]\n")
    s = s.replace("    s_memtime s[10:11]\n", "    s_memtime s[10:11]\n    s_memrealtime s[16:17]\n")
    s = s.replace("    s_subb_u32 s11, s11, s9\n", "    s_sub_u32 s11, s16, s14\n")
    return s
mbgen_kernel = mbgen.kernel
mbgen.kernel = kernel
init = ["    v_mul_u32_u24 v6, 0x9e37, v0", "    v_add_u32 v6, s6, v6", "    s_mov_b32 s20, 0x2545f491", "    s_mov_b32 s21, 0x807f807f", "    s_mov_b32 s22, 0x3f003f00"]
for i in range(8, 124):
    init.append(f"    v_mul_lo_u32 v6, v6, s20")
    init.append(f"    v_add_u32 v6, {i*7919+12345}, v6")
    init.append(f"    v_lshrrev_b32 v5, 7, v6")
    init.append(f"    v_xor_b32 v5, v5, v6")
    init.append(f"    v_and_b32 v5, s21, v5")
    init.append(f"    v_or_b32 v{i}, s22, v5")
init.append("    v_lshlrev_b32 v7, 4, v0")
for i in range(4):
    init.append(f"    ds_write_b128 v7, v[{8+4*i}:{11+4*i}] offset:{i*16384}")
init.append("    v_and_b32 v7, 0x3ff, v7")
init = "\n".join(init)

init += """
    v_and_b32 v1, 63, v0
    v_mov_b32 v2, 0
    v_cmp_gt_u32 vcc, 32, v1
    s_nop 1
    v_cndmask_b32 v28, v2, v28, vcc
    v_cndmask_b32 v29, v2, v29, vcc
    v_cndmask_b32 v30, v2, v30, vcc
    v_cndmask_b32 v31, v2, v31, vcc
    v_and_b32 v3, 31, v1
    v_cmp_gt_u32 vcc, 21, v3
    s_nop 1
""" + "\n".join(f"    v_cndmask_b32 v{i}, v2, v{i}, vcc" for i in range(44, 60)) + """
    v_cmp_gt_u32 vcc, 48, v1
    s_nop 1
""" + "\n".join(f"    v_cndmask_b32 v{i}, v2, v{i}, vcc" for i in range(8, 28)) + """
    v_cmp_gt_u32 vcc, 32, v1
    s_nop 1
""" + "\n".join(f"    v_cndmask_b32 v{i}, v2, v{i}, vcc" for i in range(8, 28) if i % 4 >= 2) + """
    v_and_b32 v3, 15, v1
    v_cmp_gt_u32 vcc, 5, v3
    s_nop 1
""" + "\n".join(f"    v_cndmask_b32 v{i}, v2, v{i}, vcc" for i in range(60, 64))

M = "v_mfma_f32_32x32x16_bf16"
M8 = "v_mfma_f32_32x32x8bf16_1k"
M16 = "v_mfma_f32_16x16x32_bf16"
ks = []
def add(n, b, it): ks.append((n, b, it, 160, init + '\n    v_mov_b32 v5, 0x44444444'))

def body(kind, opt=''):
    b = []
    for t in range(4):
        if kind == "32":
            mf = [f"{M} v[64:79], v[{32+4*(t%3)}:{35+4*(t%3)}], v[{32+4*((t+1)%3)}:{35+4*((t+1)%3)}], 0",
                  f"{M} v[80:95], v[{44+8*(t%2)}:{47+8*(t%2)}], v[112:115], v[80:95]",
                  f"{M8} v[64:79], v[28:29], v[30:31], v[64:79]",
                  f"{M} v[80:95], v[{48+8*(t%2)}:{51+8*(t%2)}], v[116:119], v[80:95]"]
            if "s" in opt:
                mf[1] = f"{M} v[80:95], v[112:115], v[{44+8*(t%2)}:{47+8*(t%2)}], v[80:95]"
                mf[3] = f"{M} v[80:95], v[116:119], v[{48+8*(t%2)}:{51+8*(t%2)}], v[80:95]"
            if "q" in opt:
                mf[0] = f"{M} v[64:79], v[{32+4*(t%3)}:{35+4*(t%3)}], v[40:43], 0"
            if "r" in opt:
                mf[0] = f"{M} v[64:79], v[40:43], v[{32+4*(t%3)}:{35+4*(t%3)}], 0"
            if "a" in opt: mf[2] = "s_nop 0"
            if "b" in opt: mf[3] = "s_nop 0"
            if "c" in opt: mf[2] = "v_mfma_f32_32x32x4_2b_bf16 v[124:155], v[28:29], v[30:31], v[124:155]" if t % 2 else "s_nop 0"
            if "d" in opt: mf[1] = f"v_smfmac_f32_32x32x32_bf16 v[80:95], v[{44+8*(t%2)}:{47+8*(t%2)}], v[112:119], v5"; mf[3] = f"v_smfmac_f32_32x32x32_bf16 v[124:139], v[60:63], v[112:119], v5"
            mf = [[x] for x in mf]
        else:
            qk = [f"{M16} v[{64+4*i}:{67+4*i}], v[{8+4*((t+i)%5)}:{11+4*((t+i)%5)}], v[{8+4*((t+i+2)%5)}:{11+4*((t+i+2)%5)}], 0" for i in range(4)]
            pv = [f"{M16} v[80:83], v[{32+4*(t%3)}:{35+4*(t%3)}], v[112:115], v[80:83]", f"{M16} v[84:87], v[60:63], v[112:115], v[84:87]",
                  f"{M16} v[88:91], v[{32+4*(t%3)}:{35+4*(t%3)}], v[116:119], v[88:91]", f"{M16} v[92:95], v[60:63], v[116:119], v[92:95]"]
            mf = [[qk[0], pv[0]], [qk[1], pv[1]], [qk[2], pv[2]], [qk[3], pv[3]]]
        for q in range(4):
            b.append("    " + mf[q][0])
            for e in range(2):
                b.append(f"    v_exp_f32 v{96+(q*4+e)}, v{32+(q*2+e+t)%12}")
            if len(mf[q]) > 1: b.append("    " + mf[q][1])
            for e in range(2, 4):
                b.append(f"    v_exp_f32 v{96+(q*4+e)}, v{32+(q*2+e+t)%12}")
            for c in range(2):
                b.append(f"    v_cvt_pk_bf16_f32 v{112+q*2+c}, v{96+q*4+2*c}, v{97+q*4+2*c}")
    return "\n".join(b)
add("z_att32", body("32"), 28)
add("z_swap", body("32", "s"), 28)
add("z_qB", body("32", "q"), 28)
add("z_qA", body("32", "r"), 28)
build(ks, "mb18.s")
```
